```python
import torch

def _softmax(x, axis=-1):
    return torch.softmax(x, dim=axis)
def _gelu(x):
    return torch.nn.functional.gelu(x, approximate="tanh")
def _silu(x):
    return torch.nn.functional.silu(x)
def _sigmoid(x):
    return torch.sigmoid(x)
def _layernorm(x, axis=-1, eps=1e-5):
    m = x.mean(dim=axis, keepdim=True)
    v = x.var(dim=axis, keepdim=True, unbiased=False)
    return (x - m) / torch.sqrt(v + eps)
def _scatter_add(tgt, idx, src, axis=0):
    return tgt.clone().index_add_(axis, idx, src)
def _segment_sum(src, seg, n):
    out = torch.zeros((n,) + src.shape[1:], dtype=src.dtype)
    return out.index_add_(0, seg, src)
def _pad(x, pw):
    flat = tuple(v for pair in reversed(pw) for v in pair)
    return torch.nn.functional.pad(x, flat)

kernel_name = 'gated_mix__linear_attn_block__glu_gated_reglu__prompt'

def setup_inputs():

    _w = (lambda a: (lambda t: t.to(torch.bfloat16) if t.is_floating_point() else t)(torch.as_tensor(a)))
    def _A_setup():
        B, S, D = 1, 2048, 448
        return {
            "x": _w((lambda *s: torch.randn(*s, dtype=torch.bfloat16) * 0.05)(B, S, D)),
            "wqkv": _w((lambda *s: torch.randn(*s, dtype=torch.bfloat16) * 0.8)(D, 3 * D)),
            "wo": _w((lambda *s: torch.randn(*s, dtype=torch.bfloat16) * 0.05)(D, D)),
        }
    _A_in = _A_setup()

    def _B_setup():
        B, S, D, F = 1, 2048, 448, 1792
        return {
            "x": _w((lambda *s: torch.randn(*s, dtype=torch.bfloat16) * 0.05)(B, S, D)),
            "W_gate": _w((lambda *s: torch.randn(*s, dtype=torch.bfloat16) * 1.6)(D, F) * (2.0 / D) ** 0.5),
            "W_up": _w((lambda *s: torch.randn(*s, dtype=torch.bfloat16) * 1.6)(D, F) * (2.0 / D) ** 0.5),
            "W_down": _w((lambda *s: torch.randn(*s, dtype=torch.bfloat16) * 1.6)(F, D) * (1.0 / F) ** 0.5),
        }
    _B_in = _B_setup()

    return {
        "A_x": _A_in["x"],
        "A_wqkv": _A_in["wqkv"],
        "A_wo": _A_in["wo"],
        "B_x": _B_in["x"],
        "B_W_gate": _B_in["W_gate"],
        "B_W_up": _B_in["W_up"],
        "B_W_down": _B_in["W_down"],
        "gate_w": _w((lambda *s: torch.randn(*s, dtype=torch.bfloat16) * 0.05)(448) * 16.0),
    }

def reference(A_x, A_wqkv, A_wo, B_x, B_W_gate, B_W_up, B_W_down, gate_w):
    def _A_ref(x, wqkv, wo):
        B, S, D = x.shape
        H = 16; Dh = D // H
        qkv = (lambda x, *d: x.permute(*d))((x @ wqkv).reshape(B, S, 3, H, Dh), 2, 0, 3, 1, 4)
        q, k, v = qkv[0], qkv[1], qkv[2]
        phi = lambda t: torch.where(t > 0, t + 1, torch.exp(t)) + 1e-6
        pq, pk = phi(q), phi(k)
        kv = torch.einsum("bhsd,bhse->bhde", pk, v)
        z = torch.einsum("bhsd->bhd", pk)
        num = torch.einsum("bhqd,bhde->bhqe", pq, kv)
        den = torch.einsum("bhqd,bhd->bhq", pq, z)[..., None] + 1e-6
        o = num / den
        return (lambda x, *d: x.permute(*d))(o, 0, 2, 1, 3).reshape(B, S, D) @ wo

    def _B_ref(x, W_gate, W_up, W_down):
        gate = torch.einsum("bsd,df->bsf", x, W_gate)
        up = torch.einsum("bsd,df->bsf", x, W_up)
        gate = gate * (lambda x, dt: x.to(dt))(gate > 0, gate.dtype)
        h = gate * up
        return torch.einsum("bsf,fd->bsd", h, W_down)

    x = A_x
    g = _sigmoid((x * gate_w).sum(-1, keepdims=True))
    a = _A_ref(x, A_wqkv, A_wo)
    b = _B_ref(x, B_W_gate, B_W_up, B_W_down)
    return g * a + (1 - g) * b
```

```python
import re, copy

_REG = re.compile(r'^(-|abs\()?([vas])(?:\[(\d+):(\d+)\]|(\d+))\)?$')
TRANS = ('v_exp_f32', 'v_log_f32', 'v_rcp_f32', 'v_rsq_f32', 'v_sqrt_f32', 'v_sin_f32', 'v_cos_f32')

def regs_of(op):
    op = op.strip()
    if op in ('vcc', 'exec', 'm0', 'scc'):
        return {op}
    if op in ('vcc_lo', 'vcc_hi'): return {'vcc'}
    if op in ('exec_lo', 'exec_hi'): return {'exec'}
    m = _REG.match(op)
    if not m: return set()
    k = m.group(2)
    if m.group(5) is not None: return {k + m.group(5)}
    return {k + str(i) for i in range(int(m.group(3)), int(m.group(4)) + 1)}

class Ins:
    __slots__ = ('text', 'op', 'cls', 'w', 'r', 'a', 'b', 'c', 'passes', 'states', 'wide')
    def __init__(self, text):
        self.text = text
        t = text.split(';')[0].strip()
        parts = t.split(None, 1)
        op = self.op = parts[0]
        rest = parts[1] if len(parts) > 1 else ''
        ops = [o.strip() for o in rest.split(',')] if rest else []
        mods = ''
        if ops:
            l = ops[-1].split(None, 1)
            ops[-1] = l[0]; mods = l[1] if len(l) > 1 else ''
        ops = [o.split(None, 1)[0] if o else o for o in ops]
        R = [regs_of(o) for o in ops]
        allr = set().union(*R) if R else set()
        self.w = set(); self.r = set(); self.a = self.b = self.c = set(); self.passes = 0; self.states = 1; self.wide = False
        if op.startswith('v_mfma'):
            self.cls = 'mfma'; self.w = R[0]; self.a, self.b, self.c = R[1], R[2], R[3]
            self.r = R[1] | R[2] | R[3]
            self.passes = 8 if '32x32' in op else 4
        elif op.startswith('v_'):
            self.cls = 'valu'
            self.w = set(R[0]); self.r = set().union(*R[1:]) if len(R) > 1 else set()
            if op.startswith('v_permlane'): self.w = set(allr); self.r = set(allr)
            if op.startswith('v_fmac') or op.startswith('v_pk_fmac'): self.r |= R[0]
            if op.startswith('v_cndmask') and len(R) == 3: self.r |= {'vcc'}
            if op.startswith('v_cmpx'): self.w |= {'exec'}
        elif op.startswith('ds_'):
            self.cls = 'ds'
            if op.startswith('ds_read') or 'permute' in op or 'swizzle' in op:
                self.w = R[0]; self.r = set().union(*R[1:])
            else:
                self.r = allr
        elif op.startswith('buffer_') or op.startswith('global_'):
            self.cls = 'vmem'
            lds = ' lds' in (' ' + text.split(';')[0])
            if 'load' in op and not lds:
                self.w = R[0]; self.r = set().union(*R[1:])
            else:
                self.r = set(allr)
                if lds: self.r |= {'m0'}
                if 'atomic' in op and 'sc0' in mods: self.w = R[0]
                if 'store' in op and ('x4' in op or 'x3' in op):
                    self.wide = True; self.a = R[0] if op.startswith('buffer_') else R[1]
        elif op == 's_nop':
            self.cls = 'nop'; self.states = int(ops[0], 0) + 1
        elif op.startswith('s_'):
            self.cls = 'salu'
            if op.startswith(('s_cmp', 's_waitcnt', 's_barrier', 's_branch', 's_cbranch', 's_sleep', 's_setprio', 's_endpgm', 's_bitcmp')):
                self.r = allr
            else:
                self.w = set(R[0]) if R else set(); self.r = set().union(*R[1:]) if len(R) > 1 else set()
                if 'saveexec' in op: self.w |= {'exec'}
        else:
            raise ValueError('unknown instruction ' + text)

def need(p, c):
    n = 0
    isv = lambda s: {x for x in s if x[0] in 'va' and x != 'vcc'}
    iss = lambda s: {x for x in s if x[0] == 's' or x == 'vcc'}
    if p.cls == 'valu':
        pw = isv(p.w); ps = iss(p.w)
        if c.cls == 'mfma' and pw & c.r: n = max(n, 2)
        if c.cls == 'valu':
            if c.op.startswith('v_permlane') and pw & c.r: n = max(n, 2)
            if c.op.startswith(('v_readfirstlane', 'v_readlane')) and pw & c.r: n = max(n, 1)
            if 'dpp' in c.text or 'row_' in c.text or 'quad_perm' in c.text:
                if pw & c.r: n = max(n, 2)
            if p.op.startswith(TRANS) and pw & c.r: n = max(n, 1)
            if ps & c.r: n = max(n, 4 if c.op.startswith(('v_readlane', 'v_writelane')) else 2)
        if p.op.startswith(TRANS) and c.cls in ('vmem', 'ds') and pw & c.r: n = max(n, 1)
        if c.cls == 'vmem' and ps & c.r: n = max(n, 5)
        if c.cls == 'salu' and ps & c.r: n = max(n, 1)
        if 'exec' in p.w and c.cls == 'mfma': n = max(n, 4)
    elif p.cls == 'mfma':
        big = p.passes == 8
        if c.cls == 'mfma':
            if p.w & (c.a | c.b): n = max(n, 12 if big else 8)
            if p.w & c.c:
                if not (p.w == c.c and p.passes == c.passes): n = max(n, 10 if big else 6)
            elif p.w & c.w: n = max(n, 10 if big else 6) if p.w != c.w else n
        elif c.cls in ('valu', 'vmem', 'ds'):
            if p.w & (c.r | c.w): n = max(n, 12 if big else 8)
            if c.cls == 'valu' and p.c & c.w: n = max(n, 7 if big else 3)
    elif p.cls == 'salu':
        if 'm0' in p.w and 'm0' in c.r: n = max(n, 1)
    elif p.cls == 'vmem':
        if p.wide and p.a & c.w: n = max(n, 2)
    return n

class Em:
    def __init__(self):
        self.out = []; self.hist = []; self.vm = []; self.lg = []; self.nops = 0; self.n_mfma = 0
    def fork(self):
        e = Em(); e.hist = list(self.hist); e.vm = list(self.vm); e.lg = list(self.lg); return e
    def raw(self, s): self.out.append(s)
    def label(self, name): self.out.append(name + ':')
    def pad_needed(self, ins):
        d = 0; worst = 0
        for p in reversed(self.hist):
            worst = max(worst, need(p, ins) - d)
            d += p.states
            if d > 20: break
        return worst
    def I(self, text):
        ins = Ins(text)
        k = self.pad_needed(ins)
        if k > 0:
            self.nops += k
            nop = Ins(f's_nop {k-1}'); self.out.append(' ' + nop.text); self.hist.append(nop)
        self.out.append(' ' + text); self.hist.append(ins)
        if len(self.hist) > 40: del self.hist[:-24]
        if ins.cls == 'mfma': self.n_mfma += 1
        return ins
    def many(self, block):
        for l in block.strip().split('\n'):
            l = l.strip()
            if not l or l.startswith(';'): continue
            if l.endswith(':'): self.label(l[:-1])
            else: self.I(l)
    def V(self, text, tag=None, cond=False):
        self.I(text)
        if not cond: self.vm.append(tag)
    def D(self, text, tag=None):
        self.I(text); self.lg.append(tag)
    def _cnt(self, q, tags, cap):
        idx = -1
        for i, t in enumerate(q):
            if t in tags: idx = i
        if idx < 0: return None
        n = len(q) - 1 - idx
        n = min(n, cap)
        del q[:len(q) - n]
        return n
    def wait(self, vm=(), lg=(), vm_all=False, lg_all=False):
        a = b = None
        if vm_all: a = 0; self.vm = []
        elif vm: a = self._cnt(self.vm, set(vm), 62)
        if lg_all: b = 0; self.lg = []
        elif lg: b = self._cnt(self.lg, set(lg), 14)
        s = []
        if a is not None: s.append(f'vmcnt({a})')
        if b is not None: s.append(f'lgkmcnt({b})')
        if s: self.I('s_waitcnt ' + ' '.join(s))
    def text(self): return '\n'.join(self.out) + '\n'
```

```python
import sys, copy
from emit import Em

NAME = 'gated_mix__linear_attn_block__glu_gated_reglu__prompt'
H_BYTES = 32 * 4 * 36 * 2048
KV_OFF = H_BYTES
C_OFF = KV_OFF + 16 * 4096
G_OFF = C_OFF + 64 * 256
WS_USED = G_OFF + 2048 * 4
LOG2E = 0x3fb8aa3b
EPS = 0x358637bd
NEG_EPS_LOG2E = 0xb5c1a2c3
LDS_BYTES = 160 * 1024

class Cfg:
    split = True
    LA = 3
    EB = 8
    dma_gap = 2
    fill = 2
    st_flag = 'sc1'
    D2 = 12
    stamps = False
    rt = False
    spin = 4000

sX, sQKV, sI0, sI1, sWS, sDBG, sWD, sWO, sOUT, sGW, sCODE = [28 + 4 * i for i in range(11)]
sW, sRB, sHEAD, sT3, sC, sRT, sCT, sQH = 72, 73, 74, 75, 76, 77, 78, 79
sM1K, sM4K, sSoF, sStepF, sSoKV, sT0, sT1, sT2, sT3b = 80, 81, 82, 83, 84, 85, 86, 87, 88
sPB, sEPS, sInit = 89, 90, 91
sPadM = 92
sLoM = 94
sHiM = 96
sM2K = 98
sSo = 99
def srd(b): return f's[{b}:{b+3}]'

vL, vL16, vL4, vD0, vD1, vD2, vDX, vHst, vAK, vAV, vNEGC, vONES, vDbg, vScW, vScR, vAG = range(1, 17)
vAX = [17, 18, 19, 20]
vAF = [[21 + 4 * w + t for t in range(4)] for w in range(3)]
vT = 36
vFR = 80
aK, aV, aA, aB = 96, 112, 128, 192
XB, KVB, FB = 0, 48 * 1024, 80 * 1024

def vr(b, n=4): return f'v[{b}:{b+n-1}]'
def ar(b, n=4): return f'a[{b}:{b+n-1}]'

def mk_srd(e, b, lo, size):
    e.I(f's_mov_b32 s{b}, s{lo}'); e.I(f's_mov_b32 s{b+1}, s{lo+1}')
    e.I(f's_mov_b32 s{b+2}, {size}'); e.I(f's_mov_b32 s{b+3}, 0x20000')

def code_prefetch(e, nbytes, tmp=vT):
    e.many(f'''
    s_getpc_b64 s[{sCODE}:{sCODE+1}]
    s_mov_b32 s{sCODE+2}, {nbytes}
    s_mov_b32 s{sCODE+3}, 0x20000
    v_lshlrev_b32 v{tmp}, 7, v0
    ''')
    e.V(f'buffer_load_dword v{tmp+1}, v{tmp}, {srd(sCODE)}, 0 offen', 'code')

def stamp(e, cfg, i):
    if cfg.stamps:
        e.wait(lg_all=True)
        e.I(('s_memrealtime' if cfg.rt else 's_memtime') + ' s[100:101]'); e.I('s_waitcnt lgkmcnt(0)')
        e.I(f'v_writelane_b32 v35, s100, {i}')

def stamp_out(e, cfg, base):
    if cfg.stamps:
        e.many(f'''
        s_lshl_b32 s{sT0}, s2, 2
        s_add_u32 s{sT0}, s{sT0}, s{sW}
        s_lshl_b32 s{sT0}, s{sT0}, 8
        s_add_u32 s{sT0}, s{sT0}, {WS_USED + base}
        v_lshlrev_b32 v34, 2, v{vL}
        ''')
        e.V(f'buffer_store_dword v35, v34, {srd(sWS)}, s{sT0} offen', 'st')

class Pool:
    def __init__(self): self.free = []
    def add(self, addr, ep): self.free.append((ep, addr)); self.free.sort()
    def take(self, ep):
        for i, (a, addr) in enumerate(self.free):
            if a <= ep: del self.free[i]; return addr
        return None
    def take_pair(self, ep):
        ok = sorted(addr for a, addr in self.free if a <= ep)
        for x in ok:
            if x + 8192 in ok:
                self.free = [(a, b) for a, b in self.free if b not in (x, x + 8192)]
                return x
        return None

class P1:
    def __init__(self, cfg):
        self.cfg = cfg
        self.pool = Pool()
        for i in range(10): self.pool.add(FB + 8192 * i, -1)
        self.fblk = {}
        self.q = []
        for s in range(7):
            self.q += [('x', s, j) for j in range(4)]
            for p in (2 * s, 2 * s + 1):
                self.q += [('f', 0, p, 0), ('f', 0, p, 1), ('kv', p)]
        for p in range(14): self.q += [('f', 1, p, 0), ('f', 1, p, 1)]
        self.epoch = -1
        self.x_read_done = -1
        self.since = 99
    def ep_of(self, ps, ks): return ks // 4 if ps == 0 else 7 + ks // self.cfg.EB
    def last_pair_of_epoch(self, ps, pair):
        ks = 2 * pair + 1
        return ks == 27 or self.ep_of(ps, ks + 1) != self.ep_of(ps, ks)
    def free_epoch(self, ps, pair):
        ep = self.ep_of(ps, 2 * pair)
        return ep + (2 if self.last_pair_of_epoch(ps, pair) else 1)
    def try_dma(self, e):
        if not self.q: return False
        d = self.q[0]
        if d[0] == 'x':
            _, s, j = d
            if s >= 3 and self.x_read_done < s - 3: return False
            e.I(f's_add_u32 m0, s{sM4K}, {XB + (s % 3) * 16384 + j * 1024}')
            e.I(f's_mov_b32 s{sSo}, {j * 7168 + s * 128}')
            e.V(f'buffer_load_dwordx4 v{vDX}, {srd(sX)}, s{sSo} offen lds', ('ep', s))
        elif d[0] == 'kv':
            p = d[1]
            if p >= 8 and self.free_epoch(0, p - 8) > self.epoch: return False
            e.I(f's_add_u32 m0, s{sM1K}, {KVB + (p % 8) * 4096}')
            e.I(f's_mov_b32 s{sSo}, {p * 32 * 2688}')
            e.V(f'buffer_load_dwordx4 v{vD2}, {srd(sQKV)}, s{sSo} offen lds', ('ep', p // 2))
        else:
            _, ps, p, img = d
            if img == 0:
                a = self.pool.take(self.epoch)
                if a is None: return False
                self.fblk[(ps, p)] = a
            a = self.fblk[(ps, p)]
            e.I(f's_add_u32 m0, s{sM1K}, {a + img * 4096}')
            if img == 0:
                if p == 0: e.I(f's_mov_b32 s{sSoF}, ' + ('0' if ps == 0 else f's{sPB}'))
                else: e.I(f's_add_u32 s{sSoF}, s{sSoF}, s{sStepF}')
            e.V(f'buffer_load_dwordx4 v{vD0 + img}, {srd(sI0 + 4 * img)}, s{sSoF} offen lds', ('ep', self.ep_of(ps, 2 * p)))
        self.q.pop(0)
        return True
    def on_epoch(self, ep):
        self.epoch = ep
        for (ps, p), a in list(self.fblk.items()):
            if self.free_epoch(ps, p) == ep: self.pool.add(a, ep)
        s = ep - 1
        if 4 <= s <= 6:
            self.pool.add(XB + (s % 3) * 16384, ep); self.pool.add(XB + (s % 3) * 16384 + 8192, ep)
        for p in (9, 11, 13):
            if self.free_epoch(0, p) == ep: self.pool.add(KVB + ((p - 1) % 8) * 4096, ep)

def steps_A(): return [(0, ks, t) for ks in range(28) for t in ('k', 'v', 0, 1, 2, 3)]
def steps_B(t3): return [(1, ks, t) for ks in range(28) for t in ((0, 1, 2, 'g') if t3 else (0, 1, 2, 3))]
GW_LDS = KVB + 6 * 4096

def issue_read(e, st, n, step, gw_addr=None):
    cfg = st.cfg
    ps, ks, t = step
    first = t == ('k' if ps == 0 else 0)
    ep = st.ep_of(ps, ks)
    if first and ep != st.epoch:
        if st.pre_barrier: st.pre_barrier(e, ep)
        for d in st.q:
            dep = d[1] if d[0] == 'x' else (d[1] // 2 if d[0] == 'kv' else st.ep_of(d[1], 2 * d[2]))
            assert dep > ep, ('DMA not issued in time', d, ep)
        e.wait(vm=[('ep', ep)])
        e.I('s_barrier')
        st.on_epoch(ep)
        if st.post_barrier: st.post_barrier(e, ep)
        if ps == 0:
            e.D(f'ds_read_b128 {ar(4*ks)}, v{vAX[0]} offset:{XB + (ep % 3) * 16384}', ('x', ks))
    if ps == 0 and ks % 4 == 0 and t in ('v', 0, 1):
        q = {'v': 1, 0: 2, 1: 3}[t]
        e.D(f'ds_read_b128 {ar(4*(ks+q))}, v{vAX[q]} offset:{XB + (ep % 3) * 16384}', ('x', ks + q))
    fr = vFR + 4 * (n % (cfg.LA + 1))
    if t == 'g':
        e.D(f'ds_read_b128 {vr(fr)}, v{vAG} offset:{ks * 32}', ('w', n))
        return
    if t in ('k', 'v'):
        reg = vAK if t == 'k' else vAV
        off = ((ks // 2) % 8) * 4096 + (ks & 1) * 2048
    else:
        a = st.fblk[(ps, ks // 2)]
        reg = vAF[a >> 16][t]; off = (a & 0xffff) + (ks & 1) * 2048
    e.D(f'ds_read_b64_tr_b16 {vr(fr,2)}, v{reg} offset:{off}', ('w', n))
    e.D(f'ds_read_b64_tr_b16 {vr(fr+2,2)}, v{reg} offset:{off+512}', ('w', n))

def issue_mfma(e, st, n, step):
    ps, ks, t = step
    fr = vFR + 4 * (n % (st.cfg.LA + 1))
    e.wait(lg=[('w', n), ('x', ks)])
    if ps == 0 and ks % 4 == 1: st.x_read_done = ks // 4
    x = ar(4 * ks)
    if t == 'k':
        e.I(f'v_mfma_f32_32x32x16_bf16 {vr(aK,16)}, {x}, {vr(fr)}, {vr(aK,16)}')
    elif t == 'v':
        c = '0' if ks == 0 else vr(aV, 16)
        e.I(f'v_mfma_f32_32x32x16_bf16 {vr(aV,16)}, {x}, {vr(fr)}, {c}')
    else:
        acc = (aA if ps == 0 else aB) + 16 * (3 if t == 'g' else t)
        c = vr(acc, 16)
        if ks == 0 and t == 'g': c = '0'
        e.I(f'v_mfma_f32_32x32x16_bf16 {vr(acc,16)}, {vr(fr)}, {x}, {c}')

def run_steps(e, st, steps, lo, hi, fillers=None):
    cfg = st.cfg
    for n in range(lo, hi):
        if n + cfg.LA < len(steps): issue_read(e, st, n + cfg.LA, steps[n + cfg.LA])
        issue_mfma(e, st, n, steps[n])
        st.since += 1
        did = False
        if st.since >= cfg.dma_gap and st.try_dma(e): st.since = 0; did = True
        if fillers is not None:
            budget = cfg.fill - (1 if did else 0)
            while budget > 0 and fillers:
                f = fillers[0]
                if f[0] == 'gate':
                    if f[1](): fillers.pop(0); continue
                    break
                fillers.pop(0); f[1](e); budget -= f[2]

def flush(e, fillers):
    for f in fillers:
        if f[0] == 'gate': assert f[1](), 'gate still closed at flush'
        else: f[1](e)
    fillers.clear()

def fI(text, cost=1): return ('i', lambda e: e.I(text), cost)
def fF(fn, cost=1): return ('i', fn, cost)

def phi_fill(acc, n, tmp):
    L = []
    for r0 in range(0, n, 4):
        for i in range(4): L.append(fI(f'v_fmamk_f32 v{tmp+i}, v{acc+r0+i}, {LOG2E:#x}, v{vNEGC}'))
        for i in range(4):
            L.append(fI(f'v_exp_f32_e64 v{tmp+i}, v{tmp+i} clamp', 2))
            L.append(fI(f'v_max_f32 v{acc+r0+i}, s{sEPS}, v{acc+r0+i}'))
        for i in range(4): L.append(fI(f'v_add_f32 v{acc+r0+i}, v{acc+r0+i}, v{tmp+i}'))
    return L

def kv_fill(st, tag):
    cfg = st.cfg
    pk, pv, tmp = vT, vT + 8, vT + 16
    L = []
    for i in range(8): L.append(fI(f'v_cvt_pk_bf16_f32 v{pv+i}, v{aV+2*i}, v{aV+2*i+1}'))
    for i in range(8): L.append(fI(f'v_cndmask_b32_e64 v{pv+i}, v{pv+i}, v{vONES}, s[{sPadM}:{sPadM+1}]'))
    L += phi_fill(aK, 16, tmp)
    for i in range(8): L.append(fI(f'v_cvt_pk_bf16_f32 v{pk+i}, v{aK+2*i}, v{aK+2*i+1}'))
    L.append(fI(f'v_mfma_f32_32x32x16_bf16 {vr(aV,16)}, {vr(pk)}, {vr(pv)}, 0', 2))
    L.append(fI(f'v_mfma_f32_32x32x16_bf16 {vr(aV,16)}, {vr(pk+4)}, {vr(pv+4)}, {vr(aV,16)}', 2))
    def alloc():
        if st.scr is None: st.scr = st.pool.take_pair(st.epoch)
        return st.scr is not None
    L.append(('gate', alloc))
    def setup(e):
        e.I(f'v_add_u32 v{vScW}, {st.scr}, v{vScW}'); e.I(f'v_add_u32 v{vScR}, {st.scr}, v{vScR}')
    L.append(fF(setup, 2))
    L.append(('delay',))
    for q in range(4):
        L.append(fF(lambda e, q=q: e.D(f'ds_write_b128 v{vScW}, {vr(aV+4*q)} offset:{q*1024}', 'scw'), 2))
    def mark(e): st.scw_epoch = st.epoch
    L.append(fF(mark, 0))
    L2 = [('gate', lambda: st.scw_epoch is not None and st.epoch > st.scw_epoch)]
    for p in range(4):
        for i in (0, 2):
            L2.append(fF(lambda e, p=p, i=i: e.D(f'ds_read2st64_b32 {vr(aK+4*p+i,2)}, v{vScR} offset0:{p*16+i} offset1:{p*16+i+1}', 'scr')))
    L2.append(('delay',))
    L2.append(fF(lambda e: e.wait(lg=['scr']), 1))
    for i in range(4): L2.append(fI(f'v_add_f32 v{aK+i}, v{aK+i}, v{aK+4+i}'))
    for i in range(4): L2.append(fI(f'v_add_f32 v{aK+8+i}, v{aK+8+i}, v{aK+12+i}'))
    for i in range(4): L2.append(fI(f'v_add_f32 v{aK+i}, v{aK+i}, v{aK+8+i}'))
    def check(e):
        e.wait(vm=['dbg'])
        e.I(f'v_cmp_ne_u32 vcc, 0, v{vDbg}')
        e.I('s_cmp_eq_u64 vcc, -1')
        e.I(f's_cbranch_scc0 L_zspin_{tag}')
        e.label(f'L_zok_{tag}')
    L2.append(fF(check, 2))
    L2.append(('gate', lambda: not st.q))
    for i in range(4):
        L2.append(fF(lambda e, i=i: e.V(f'buffer_atomic_add_f32 v{aK+i}, v{vL4}, {srd(sWS)}, s{sSoKV} offen offset:{i*256}', 'pubA'), 2))
    return L, L2

def zspin(cfg, tag):
    return f'''L_zspin_{tag}:
 s_mov_b32 s{sT0}, 0
L_zspin2_{tag}:
 s_sleep 2
 v_and_b32 v{vDbg}, 60, v{vL4}
 buffer_load_dword v{vDbg}, v{vDbg}, {srd(sDBG)}, 0 offen sc1
 s_add_u32 s{sT0}, s{sT0}, 1
 s_waitcnt vmcnt(0)
 v_cmp_ne_u32 vcc, 0, v{vDbg}
 s_nop 1
 s_cmp_eq_u64 vcc, -1
 s_cbranch_scc1 L_zok_{tag}
 s_cmp_lt_u32 s{sT0}, {cfg.spin}
 s_cbranch_scc1 L_zspin2_{tag}
 s_branch L_zok_{tag}
'''

def merge(*lists):
    out = []
    lists = [list(l) for l in lists]
    for i, l in enumerate(lists):
        for f in l:
            if f[0] == 'delay':
                k = 0
                for nx in lists[i + 1:]:
                    while nx and k < 10 and nx[0][0] == 'i':
                        out.append(nx.pop(0)); k += 1
                    if k: break
            else: out.append(f)
    return out

def f_fill(st, acc, i, ps, tmp):
    cfg = st.cfg
    L = []
    for r in range(8): L.append(fI(f'v_max_f32 v{acc+r}, 0, v{acc+r}'))
    for r in range(8): L.append(fI(f'v_mul_f32 v{acc+r}, v{acc+r}, v{acc+8+r}'))
    for r in range(4): L.append(fI(f'v_cvt_pk_bf16_f32 v{acc+8+r}, v{acc+2*r}, v{acc+2*r+1}'))
    def st_(e):
        e.I(f's_mov_b32 s{sSo}, {i * 73728 + ps * 28672}')
        e.V(f'buffer_store_dwordx4 {vr(acc+8)}, v{vHst}, {srd(sWS)}, s{sSo} offen {cfg.st_flag}', 'pubA' if ps == 0 else 'pubB')
    return L, [('gate', lambda: not st.q), fF(st_, 2)]

def signal(e, kind, idx_sreg, tag):
    e.many(f'''
    s_cmp_eq_u32 s{sW}, 0
    s_cbranch_scc0 L_sig_{tag}
    s_lshl_b32 s{sT0}, s{idx_sreg}, 8
    s_add_u32 s{sT0}, s{sT0}, {C_OFF + kind * 4096}
    s_mov_b64 exec, 1
    v_mov_b32 v33, 1
    ''')
    e.V(f'buffer_atomic_add v33, v{vL4}, {srd(sWS)}, s{sT0} offen', cond=True)
    e.I('s_mov_b64 exec, -1')
    e.label(f'L_sig_{tag}')

def poll(e, cfg, vaddr, soff, target, tag, vtmp):
    e.many(f'''
    s_mov_b32 s{sT1}, 0
    L_poll_{tag}:
    buffer_load_dword v{vtmp}, v{vaddr}, {srd(sWS)}, {soff} offen sc1
    s_add_u32 s{sT1}, s{sT1}, 1
    s_waitcnt vmcnt(0)
    v_cmp_le_u32 vcc, {target}, v{vtmp}
    s_cmp_ge_u32 s{sT1}, {cfg.spin}
    s_cbranch_scc1 L_pollx_{tag}
    s_cmp_eq_u64 vcc, -1
    s_cbranch_scc0 L_poll_{tag}
    L_pollx_{tag}:
    ''')
    e.vm = []

def prologue1(e, cfg, code_bytes):
    e.many(f'''
    s_cmp_ge_u32 s2, 256
    s_cbranch_scc1 L_end1
    s_load_dwordx16 s[4:19], s[0:1], 0
    s_load_dwordx4 s[20:23], s[0:1], 64
    s_load_dwordx2 s[24:25], s[0:1], 80
    ''')
    code_prefetch(e, code_bytes)
    t = [vT + 2 + i for i in range(10)]
    e.many(f'''
    v_and_b32 v{vL}, 63, v0
    v_lshrrev_b32 v{t[0]}, 6, v0
    v_lshlrev_b32 v{vL16}, 4, v{vL}
    v_readfirstlane_b32 s{sW}, v{t[0]}
    v_lshlrev_b32 v{vL4}, 2, v{vL}
    s_lshr_b32 s{sT0}, s2, 3
    s_and_b32 s{sT1}, s{sT0}, 7
    s_lshr_b32 s{sT2}, s{sT0}, 3
    s_and_b32 s{sRB}, s2, 4
    s_lshl_b32 s{sRB}, s{sRB}, 1
    s_add_u32 s{sRB}, s{sRB}, s{sT1}
    s_and_b32 s{sHEAD}, s2, 3
    s_lshr_b32 s{sQH}, s{sHEAD}, 1
    s_lshl_b32 s{sHEAD}, s{sHEAD}, 2
    s_add_u32 s{sHEAD}, s{sHEAD}, s{sT2}
    s_xor_b32 s{sT3}, s{sT1}, s2
    s_and_b32 s{sT3}, s{sT3}, 1
    s_and_b32 s{sC}, s2, 1
    s_lshl_b32 s{sC}, s{sC}, 2
    s_add_u32 s{sC}, s{sC}, s{sT2}
    s_lshr_b32 s{sT1}, s{sT1}, 1
    s_add_u32 s{sT1}, s{sT1}, 24
    s_cmp_eq_u32 s{sT2}, 3
    s_cselect_b32 s{sT3}, s{sT3}, 0
    s_cselect_b32 s{sC}, 3, s{sC}
    s_cselect_b32 s{sT0}, s{sT1}, s{sT0}
    s_mul_i32 s{sT1}, s{sQH}, 7
    s_add_u32 s{sC}, s{sC}, s{sT1}
    s_and_b32 s{sRT}, s2, 7
    s_lshl_b32 s{sRT}, s{sRT}, 2
    s_and_b32 s{sT1}, s{sT0}, 3
    s_add_u32 s{sRT}, s{sRT}, s{sT1}
    s_lshr_b32 s{sCT}, s{sT0}, 2
    s_lshl_b32 s{sM1K}, s{sW}, 10
    s_lshl_b32 s{sM2K}, s{sW}, 11
    s_lshl_b32 s{sM4K}, s{sW}, 12
    v_lshrrev_b32 v{t[0]}, 3, v{vL}
    v_and_b32 v{t[1]}, 7, v{vL}
    v_bfe_u32 v{t[2]}, v{vL}, 4, 1
    v_lshlrev_b32 v{t[2]}, 2, v{t[2]}
    v_xor_b32 v{t[2]}, v{t[2]}, v{t[1]}
    s_lshl_b32 s{sT0}, s{sW}, 3
    v_add_u32 v{t[3]}, s{sT0}, v{t[0]}
    ; x
    s_lshl_b32 s{sT0}, s{sRB}, 2
    s_add_u32 s{sT0}, s{sT0}, s{sW}
    s_mul_i32 s{sT0}, s{sT0}, {32*896}
    v_xor_b32 v{t[4]}, v{t[1]}, v{t[0]}
    v_lshlrev_b32 v{t[4]}, 4, v{t[4]}
    v_mul_u32_u24 v{vDX}, 896, v{t[0]}
    v_add3_u32 v{vDX}, v{vDX}, v{t[4]}, s{sT0}
    ; kv window
    s_mul_i32 s{sT0}, s{sHEAD}, 56
    s_and_b32 s{sT0}, s{sT0}, -16
    s_add_u32 s{sT0}, s{sT0}, 896
    v_lshrrev_b32 v{t[4]}, 2, v{t[2]}
    v_mul_u32_u24 v{t[4]}, 832, v{t[4]}
    v_lshl_add_u32 v{t[4]}, v{t[2]}, 4, v{t[4]}
    v_mul_u32_u24 v{vD2}, 2688, v{t[3]}
    v_add3_u32 v{vD2}, v{vD2}, v{t[4]}, s{sT0}
    ; I0 / I1
    s_lshl_b32 s{sT0}, s{sC}, 8
    s_mul_i32 s{sT1}, s{sQH}, 448
    s_add_u32 s{sT2}, s{sT1}, 128
    s_cmp_eq_u32 s{sT3}, 1
    s_cselect_b32 s{sT2}, s{sT2}, s{sT0}
    s_cselect_b32 s{sT1}, s{sT1}, s{sT0}
    s_movk_i32 s{sT0}, 3584
    s_cselect_b32 s{sT0}, 2688, s{sT0}
    s_movk_i32 s{sPB}, 128
    s_cselect_b32 s{sPB}, 256, s{sPB}
    s_cselect_b32 s{sInit}, {EPS:#x}, 0
    s_lshl_b32 s{sStepF}, s{sT0}, 5
    v_mul_u32_u24 v{t[3]}, s{sT0}, v{t[3]}
    v_lshl_add_u32 v{vD0}, v{t[2]}, 4, v{t[3]}
    v_xor_b32 v{t[4]}, 2, v{t[2]}
    v_lshl_add_u32 v{vD1}, v{t[4]}, 4, v{t[3]}
    v_add_u32 v{vD0}, s{sT1}, v{vD0}
    v_add_u32 v{vD1}, s{sT2}, v{vD1}
    s_waitcnt lgkmcnt(0)
    ''')
    mk_srd(e, sX, 4, 2048 * 896)
    mk_srd(e, sQKV, 6, 448 * 2688)
    mk_srd(e, sWS, 24, WS_USED + (1 << 20))
    e.many(f'''
    s_cmp_eq_u32 s{sT3}, 1
    s_cselect_b32 s{sI0}, s6, s12
    s_cselect_b32 s{sI0+1}, s7, s13
    s_cselect_b32 s{sI1}, s6, s14
    s_cselect_b32 s{sI1+1}, s7, s15
    s_mov_b32 s{sI0+2}, {448*3584}
    s_cselect_b32 s{sI0+2}, {448*2688}, s{sI0+2}
    s_mov_b32 s{sI1+2}, s{sI0+2}
    s_mov_b32 s{sI0+3}, 0x20000
    s_mov_b32 s{sI1+3}, 0x20000
    s_lshl_b32 s{sSoKV}, s{sHEAD}, 12
    s_add_u32 s{sSoKV}, s{sSoKV}, s{sM1K}
    s_add_u32 s{sSoKV}, s{sSoKV}, {KV_OFF}
    s_cmp_eq_u32 s{sRB}, 0
    s_cbranch_scc0 L_nozero
    v_mov_b32 v{vT+12}, 0
    v_mov_b32 v{vT+13}, 0
    v_mov_b32 v{vT+14}, 0
    v_mov_b32 v{vT+15}, 0
    s_lshl_b32 s{sT0}, s{sHEAD}, 8
    s_add_u32 s{sT0}, s{sT0}, s{sM4K}
    s_add_u32 s{sT0}, s{sT0}, {C_OFF}
    ''')
    e.V(f'buffer_store_dwordx4 {vr(vT+12)}, v{vL16}, {srd(sWS)}, s{sSoKV} offen sc1', cond=True)
    e.V(f'buffer_store_dword v{vT+12}, v{vL4}, {srd(sWS)}, s{sT0} offen sc1', cond=True)
    e.label('L_nozero')

def prologue1b(e, cfg):
    t = [vT + 2 + i for i in range(10)]
    mk_srd(e, sDBG, 22, 256)
    mk_srd(e, sGW, 18, 896)
    e.many(f'''
    v_lshrrev_b32 v{t[1]}, 5, v{vL}
    v_bfe_u32 v{t[2]}, v{vL}, 2, 2
    v_lshl_add_u32 v{t[0]}, v{t[1]}, 3, v{t[2]}
    v_lshlrev_b32 v{t[0]}, 7, v{t[0]}
    v_and_b32 v{t[2]}, 3, v{vL}
    v_lshl_add_u32 v{t[0]}, v{t[2]}, 3, v{t[0]}
    v_bfe_u32 v{t[2]}, v{vL}, 3, 1
    v_lshl_add_u32 v{t[0]}, v{t[2]}, 6, v{t[0]}
    v_bfe_u32 v{t[2]}, v{vL}, 4, 1
    v_lshl_add_u32 v{t[0]}, v{t[2]}, 5, v{t[0]}
    v_add_u32 v{vAK}, {KVB}, v{t[0]}
    v_xor_b32 v{vAV}, 64, v{vAK}
    s_cmp_eq_u32 s{sT3}, 1
    s_cselect_b32 s{sT0}, 0, 4096
    v_mad_u32_u24 v{vAF[0][0]}, v{t[2]}, s{sT0}, v{t[0]}
    s_cselect_b32 s{sT0}, 64, 32
    s_cselect_b32 s{sT1}, {4096+32}, 64
    s_movk_i32 s{sT2}, 96
    s_cselect_b32 s{sT2}, {4096+96}, s{sT2}
    v_xor_b32 v{vAF[0][1]}, s{sT0}, v{vAF[0][0]}
    v_xor_b32 v{vAF[0][2]}, s{sT1}, v{vAF[0][0]}
    v_xor_b32 v{vAF[0][3]}, s{sT2}, v{vAF[0][0]}
    ''')
    for w in (1, 2):
        for q in range(4): e.I(f'v_add_u32 v{vAF[w][q]}, {65536*w}, v{vAF[0][q]}')
    e.many(f'''
    v_and_b32 v{t[2]}, 7, v{vL}
    v_xor_b32 v{t[2]}, v{t[2]}, v{t[1]}
    v_and_b32 v{t[3]}, 31, v{vL}
    v_lshlrev_b32 v{t[4]}, 7, v{t[3]}
    v_lshl_add_u32 v{t[4]}, v{t[2]}, 4, v{t[4]}
    v_add_u32 v{vAX[0]}, s{sM4K}, v{t[4]}
    v_xor_b32 v{vAX[1]}, 32, v{vAX[0]}
    v_xor_b32 v{vAX[2]}, 64, v{vAX[0]}
    v_xor_b32 v{vAX[3]}, 96, v{vAX[0]}
    v_lshlrev_b32 v{vAG}, 4, v{t[1]}
    v_add_u32 v{vAG}, {GW_LDS}, v{vAG}
    s_mov_b32 s{sT0}, 0xf0000000
    s_bitcmp1_b32 s{sHEAD}, 0
    s_cselect_b32 s{sPadM}, 15, s{sT0}
    s_mov_b32 s{sPadM+1}, s{sPadM}
    s_mov_b32 s{sLoM}, -1
    s_mov_b32 s{sLoM+1}, 0
    s_mov_b32 s{sHiM}, 0
    s_mov_b32 s{sHiM+1}, -1
    s_mov_b32 s{sEPS}, {EPS:#x}
    v_mov_b32 v{vNEGC}, {NEG_EPS_LOG2E:#x}
    v_mov_b32 v{vONES}, 0x3f803f80
    v_add_u32 v{vScW}, s{sM4K}, v{vL16}
    v_add_u32 v{vScR}, s{sM1K}, v{vL4}
    s_lshr_b32 s{sT0}, s{sW}, 1
    s_lshl_b32 s{sT1}, s{sRB}, 1
    s_add_u32 s{sT0}, s{sT0}, s{sT1}
    s_mul_i32 s{sT0}, s{sT0}, 144
    s_mul_i32 s{sT1}, s{sQH}, 72
    s_add_u32 s{sT1}, s{sT1}, 28
    s_cmp_eq_u32 s{sT3}, 1
    s_cselect_b32 s{sT1}, s{sT1}, s{sC}
    s_add_u32 s{sT0}, s{sT0}, s{sT1}
    s_lshl_b32 s{sT0}, s{sT0}, 1
    s_and_b32 s{sT1}, s{sW}, 1
    s_add_u32 s{sT0}, s{sT0}, s{sT1}
    s_lshl_b32 s{sT0}, s{sT0}, 10
    v_add_u32 v{vHst}, s{sT0}, v{vL16}
    ''')
    for r in range(16): e.I(f'v_mov_b32 v{aK+r}, s{sEPS}')
    for r in range(128): e.I(f'v_mov_b32 v{aA+r}, s{sInit}')

def gen_phase1(cfg, code_bytes):
    e = Em()
    if cfg.stamps:
        e.I('v_mov_b32 v35, 0'); stamp(e, cfg, 0)
    prologue1(e, cfg, code_bytes)
    st = P1(cfg); st.pre_barrier = st.post_barrier = None; st.scr = None; st.scw_epoch = None
    n0 = 0
    while n0 < 10 and st.try_dma(e): n0 += 1
    prologue1b(e, cfg)
    while n0 < 30 and st.try_dma(e): n0 += 1
    stamp(e, cfg, 1)
    A = steps_A()
    def post(e, ep):
        if ep == 0:
            stamp(e, cfg, 2)
            e.many(f'''
            s_or_b32 s{sT0}, s{sRB}, s{sW}
            s_cbranch_scc1 L_noflag
            s_lshl_b32 s{sT0}, s{sHEAD}, 2
            s_mov_b64 exec, 1
            v_mov_b32 v33, 1
            ''')
            e.V(f'buffer_store_dword v33, v{vL4}, {srd(sDBG)}, s{sT0} offen sc1', cond=True)
            e.I('s_mov_b64 exec, -1')
            e.label('L_noflag')
        if ep == 5:
            e.I(f'v_and_b32 v{vDbg}, 60, v{vL4}')
            e.V(f'buffer_load_dword v{vDbg}, v{vDbg}, {srd(sDBG)}, 0 offen sc1', 'dbg')
        if ep == 6:
            e.I(f's_mov_b32 m0, {GW_LDS}')
            e.V(f'buffer_load_dwordx4 v{vL16}, {srd(sGW)}, 0 offen lds', ('ep', 7))
    st.post_barrier = post
    steps2 = A + steps_B(False); steps3 = A + steps_B(True)
    for n in range(cfg.LA): issue_read(e, st, n, A[n])
    run_steps(e, st, steps2, 0, len(A))
    stamp(e, cfg, 3)
    e.I(f's_cmp_eq_u32 s{sT3}, 1')
    e.I('s_cbranch_scc1 L_t3')
    e3 = e.fork(); st3 = copy.copy(st)
    st3.pool = copy.deepcopy(st.pool); st3.fblk = dict(st.fblk); st3.q = list(st.q)
    def pre(stx):
        def f(e, ep): e.wait(lg=['scw'])
        return f
    st.post_barrier = None; st.pre_barrier = pre(st)
    k1, k2 = kv_fill(st, 't2')
    fs = [f_fill(st, aA + 16 * i, i, 0, vT + 24) for i in range(4)]
    fill = merge(k1, fs[0][0], fs[1][0], k2, fs[2][0], fs[0][1], fs[1][1], fs[2][1], fs[3][0], fs[3][1])
    run_steps(e, st, steps2, len(A), len(steps2), fill)
    stamp(e, cfg, 4)
    flush(e, fill)
    for i in range(4):
        a, b = f_fill(st, aB + 16 * i, i, 1, vT + 24)
        flush(e, a)
        if i == 0:
            e.wait(vm=['pubA']); e.I('s_barrier')
            signal(e, 0, sHEAD, 't2kv')
        flush(e, b)
    stamp(e, cfg, 5)
    if cfg.stamps: e.wait(vm_all=True); stamp(e, cfg, 6)
    stamp_out(e, cfg, 0)
    e.I('s_endpgm')
    e3.label('L_t3')
    st3.post_barrier = None; st3.pre_barrier = pre(st3)
    k1, k2 = kv_fill(st3, 't3')
    P = aA
    def q_fill(acc, t):
        L = phi_fill(acc, 16, vT + 24)
        for i in range(8): L.append(fI(f'v_cvt_pk_bf16_f32 v{P+8*t+i}, v{acc+2*i}, v{acc+2*i+1}'))
        return L
    fill = merge(k1, q_fill(aA, 0), k2, q_fill(aA + 16, 1), q_fill(aA + 32, 2), q_fill(aA + 48, 3))
    c3 = copy.copy(cfg); c3.fill = cfg.fill + 1; st3.cfg = c3
    run_steps(e3, st3, steps3, len(A), len(steps3), fill)
    stamp(e3, cfg, 4)
    while any(f[0] == 'gate' for f in fill) or 'pubA' not in e3.vm or e3.vm.count('pubA') < 4:
        f = fill.pop(0)
        if f[0] == 'gate': assert f[1]()
        else: f[1](e3)
    e3.wait(vm=['pubA']); e3.I('s_barrier')
    signal(e3, 0, sHEAD, 't3kv')
    flush(e3, fill)
    for t in range(3): flush(e3, q_fill(aB + 16 * t, 4 + t))
    G, G1 = vT, vT + 1
    lg = aB + 48
    e3.many(f'''
    v_mul_f32 v{G}, 0xbfb8aa3b, v{lg}
    v_exp_f32 v{G}, v{G}
    v_and_b32 v{vT+2}, 7, v{vL}
    v_add_f32 v{G}, 1.0, v{G}
    v_rcp_f32 v{G}, v{G}
    v_lshlrev_b32 v{vT+2}, 8, v{vT+2}
    v_sub_f32 v{G1}, 1.0, v{G}
    s_lshl_b32 s{sT2}, s{sQH}, 11
    s_add_u32 s{sT2}, s{sT2}, {C_OFF}
    ''')
    stamp(e3, cfg, 5)
    poll(e3, cfg, vT + 2, f's{sT2}', 16, 'kv', vT + 3)
    stamp(e3, cfg, 6)
    R = aB
    e3.many(f'''
    s_lshl_b32 s{sT0}, s{sQH}, 15
    s_lshl_b32 s{sT2}, s{sW}, 13
    s_add_u32 s{sT0}, s{sT0}, s{sT2}
    s_add_u32 s{sT0}, s{sT0}, {KV_OFF}
    s_add_u32 s{sT2}, s{sT0}, 4096
    ''')
    for h in range(2):
        for q in range(4):
            e3.V(f'buffer_load_dwordx4 {vr(R+16*h+4*q)}, v{vL16}, {srd(sWS)}, s{sT0 if h == 0 else sT2} offen offset:{q*1024} sc1', ('kvl', h))
    e3.many(f'''
    s_lshl_b32 s{sT0}, s{sRB}, 2
    s_add_u32 s{sT0}, s{sT0}, s{sW}
    s_lshl_b32 s{sT0}, s{sT0}, 7
    s_add_u32 s{sT0}, s{sT0}, {G_OFF}
    v_and_b32 v{vT+2}, 124, v{vL4}
    v_mov_b32 v{vT+4}, 0
    v_add_u32 v{vT+5}, s{sM4K}, v{vL16}
    ''')
    e3.V(f'buffer_store_dword v{G1}, v{vT+2}, {srd(sWS)}, s{sT0} offen sc1', 'pubO')
    Z = vT + 4
    Q = aB + 32
    for h in range(2):
        e3.wait(vm=[('kvl', h)])
        for i in range(8): e3.I(f'v_cvt_pk_bf16_f32 v{Q+8*h+i}, v{R+16*h+2*i}, v{R+16*h+2*i+1}')
        pads = (6, 7) if h == 0 else (0, 1); m = sHiM if h == 0 else sLoM
        for i in pads: e3.I(f'v_cndmask_b32_e64 v{Q+8*h+i}, v{Q+8*h+i}, v{Z}, s[{m}:{m+1}]')
        for j in range(2):
            e3.D(f'ds_write_b128 v{vT+5}, {vr(Q+8*h+4*j)} offset:{(2*h+j)*1024}', 'kvw')
    e3.wait(lg=['kvw']); e3.I('s_barrier')
    KF = 112
    for jj in range(8):
        for j in range(2):
            e3.D(f'ds_read_b128 {ar(KF+8*jj+4*j)}, v{vL16} offset:{(2*jj+j)*1024}', ('kf', jj))
    N = [aB, aB + 16, aB + 32]
    def num(jj):
        u0 = (7 * jj) // 2; n = N[jj % 3]
        e3.wait(lg=[('kf', jj)])
        e3.I(f'v_mfma_f32_32x32x16_bf16 {vr(n,16)}, {ar(KF+8*jj)}, {vr(P+2*u0)}, 0')
        e3.I(f'v_mfma_f32_32x32x16_bf16 {vr(n,16)}, {ar(KF+8*jj+4)}, {vr(P+2*u0+4)}, {vr(n,16)}')
    num(0); num(1)
    for jj in range(8):
        n = N[jj % 3]; odd = jj & 1
        if jj + 2 < 8: num(jj + 2)
        t1, t2, fz = vT + 6, vT + 7, vT + 8
        dr = n + (0 if odd else 12)
        e3.I(f'v_add_f32 v{t1}, s{sEPS}, v{dr}'); e3.I(f'v_add_f32 v{t2}, s{sEPS}, v{dr}')
        e3.I(f'v_permlane32_swap_b32 v{t1}, v{t2}')
        d = t1 if odd else t2
        e3.I(f'v_rcp_f32 v{d}, v{d}')
        e3.I(f's_mov_b32 s{sSo}, {(jj >> 2) * 73728 + (jj & 3) * 4096}')
        e3.I(f'v_mul_f32 v{d}, v{d}, v{G}')
        m = sLoM if odd else sHiM
        e3.I(f'v_cndmask_b32_e64 v{fz}, v{d}, v{Z}, s[{m}:{m+1}]')
        padr = range(0, 4) if odd else range(12, 16)
        for r in range(16): e3.I(f'v_mul_f32 v{n+r}, v{n+r}, v{fz if r in padr else d}')
        O = vT + 12 + 8 * (jj & 1)
        for i in range(8): e3.I(f'v_cvt_pk_bf16_f32 v{O+i}, v{n+2*i}, v{n+2*i+1}')
        for j in range(2):
            e3.V(f'buffer_store_dwordx4 {vr(O+4*j)}, v{vHst}, {srd(sWS)}, s{sSo} offen offset:{j*2048} {cfg.st_flag}', 'pubO')
    stamp(e3, cfg, 7)
    if cfg.stamps: e3.wait(vm_all=True); stamp(e3, cfg, 8)
    stamp_out(e3, cfg, 0)
    e3.label('L_end1')
    e3.I('s_endpgm')
    txt = e.text() + e3.text() + zspin(cfg, 't2') + zspin(cfg, 't3')
    print(f'phase1: nops T2 {e.nops} T3 {e3.nops}', file=sys.stderr)
    return txt

def gen_phase2(cfg, code_bytes):
    e = Em()
    vDW, vDO, vH0, vH1, vA0, vA1, vG0, vG1, vOut, vRd = 4, 5, 6, 7, 8, 9, 10, 11, 12, 13
    vWr = [14, 15, 16]
    vA = [[8, 9], [17, 18]]
    WF = 64
    ACC = 128
    R = 14; RED = R * 8192; DH = 16; D = cfg.D2
    if cfg.stamps:
        e.I('v_mov_b32 v35, 0'); stamp(e, cfg, 0)
    e.many(f'''
    s_cmp_ge_u32 s2, 224
    s_cbranch_scc1 L_end2
    s_load_dwordx16 s[4:19], s[0:1], 0
    s_load_dwordx4 s[20:23], s[0:1], 64
    s_load_dwordx2 s[24:25], s[0:1], 80
    ''')
    code_prefetch(e, code_bytes)
    t = [vT + 2 + i for i in range(10)]
    e.many(f'''
    v_and_b32 v{vL}, 63, v0
    v_lshrrev_b32 v{t[0]}, 6, v0
    v_lshlrev_b32 v{vL16}, 4, v{vL}
    v_readfirstlane_b32 s{sW}, v{t[0]}
    v_lshlrev_b32 v{vL4}, 2, v{vL}
    s_lshr_b32 s{sT0}, s2, 3
    s_and_b32 s{sRT}, s2, 7
    s_lshl_b32 s{sRT}, s{sRT}, 2
    s_and_b32 s{sT1}, s{sT0}, 3
    s_add_u32 s{sRT}, s{sRT}, s{sT1}
    s_lshr_b32 s{sCT}, s{sT0}, 2
    s_lshl_b32 s{sM2K}, s{sW}, 11
    v_lshrrev_b32 v{t[0]}, 3, v{vL}
    v_and_b32 v{t[1]}, 7, v{vL}
    v_bfe_u32 v{t[2]}, v{vL}, 4, 1
    v_lshlrev_b32 v{t[2]}, 2, v{t[2]}
    v_xor_b32 v{t[2]}, v{t[2]}, v{t[1]}
    v_mul_u32_u24 v{t[0]}, 896, v{t[0]}
    v_lshl_add_u32 v{t[0]}, v{t[2]}, 4, v{t[0]}
    s_lshl_b32 s{sT0}, s{sCT}, 7
    s_mul_i32 s{sT1}, s{sW}, {16*896}
    s_mul_i32 s{sT2}, s{sW}, {112*896}
    s_add_u32 s{sT1}, s{sT1}, s{sT0}
    s_add_u32 s{sT2}, s{sT2}, s{sT0}
    v_add_u32 v{vDW}, s{sT1}, v{t[0]}
    v_add_u32 v{vDO}, s{sT2}, v{t[0]}
    s_lshl_b32 s{sT0}, s{sRT}, 2
    s_add_u32 s{sT0}, s{sT0}, s{sW}
    s_mul_i32 s{sT0}, s{sT0}, 72
    s_lshr_b32 s{sT1}, s{sW}, 1
    s_add_u32 s{sT0}, s{sT0}, s{sT1}
    s_lshl_b32 s{sT0}, s{sT0}, 10
    v_add_u32 v{vH0}, s{sT0}, v{vL16}
    v_xor_b32 v{vH1}, 1024, v{vH0}
    s_waitcnt lgkmcnt(0)
    ''')
    mk_srd(e, sWD, 16, 1792 * 896)
    mk_srd(e, sWS, 24, WS_USED + (1 << 20))
    mk_srd(e, sWO, 8, 448 * 896)
    def issue(sq, part):
        if sq >= 36: return
        if part < 2:
            if sq < 28:
                p, c = divmod(sq, 14); row = 128 * c + 64 * p; v, s = vDW, sWD
            else:
                hh, j = divmod(sq - 28, 2); row = 28 * hh - 4 * (hh & 1) + 16 * j; v, s = vDO, sWO
            e.I(f's_add_u32 m0, s{sM2K}, {(sq % R) * 8192 + part * 1024}')
            e.I(f's_mov_b32 s{sSo}, {(row + 8 * part) * 896}')
            e.V(f'buffer_load_dwordx4 v{v}, {srd(s)}, s{sSo} offen lds', ('W', sq))
        else:
            b = part - 2
            if b == 0 and sq % 2 == 0: e.I(f's_mov_b32 s{sSoF}, {sq * 2048}')
            e.V(f'buffer_load_dwordx4 {ar(8*(sq % DH)+4*b)}, v{vH0+b}, {srd(sWS)}, s{sSoF} offen offset:{(sq & 1) * 2048} sc1', ('H', sq))
    for sq in range(3):
        for p in range(4): issue(sq, p)
    mk_srd(e, sOUT, 20, 2048 * 896)
    e.many(f'''
    v_lshrrev_b32 v{t[1]}, 5, v{vL}
    v_bfe_u32 v{t[2]}, v{vL}, 2, 2
    v_lshl_add_u32 v{t[0]}, v{t[1]}, 2, v{t[2]}
    v_lshlrev_b32 v{t[0]}, 7, v{t[0]}
    v_and_b32 v{t[2]}, 3, v{vL}
    v_lshl_add_u32 v{t[0]}, v{t[2]}, 3, v{t[0]}
    v_bfe_u32 v{t[2]}, v{vL}, 3, 1
    v_lshl_add_u32 v{t[0]}, v{t[2]}, 6, v{t[0]}
    v_bfe_u32 v{t[2]}, v{vL}, 4, 1
    v_lshl_add_u32 v{t[0]}, v{t[2]}, 5, v{t[0]}
    s_and_b32 s{sT0}, s{sW}, 1
    s_lshl_b32 s{sT0}, s{sT0}, 6
    v_xor_b32 v{t[0]}, s{sT0}, v{t[0]}
    v_add_u32 v{vA[0][0]}, s{sM2K}, v{t[0]}
    v_xor_b32 v{vA[0][1]}, 64, v{vA[0][0]}
    v_add_u32 v{vA[1][0]}, 65536, v{vA[0][0]}
    v_add_u32 v{vA[1][1]}, 65536, v{vA[0][1]}
    s_lshl_b32 s{sT1}, s{sRT}, 1
    s_lshr_b32 s{sT2}, s{sW}, 1
    s_add_u32 s{sT1}, s{sT1}, s{sT2}
    s_lshl_b32 s{sT1}, s{sT1}, 5
    v_and_b32 v{t[3]}, 31, v{vL}
    v_add_u32 v{t[3]}, s{sT1}, v{t[3]}
    v_lshlrev_b32 v{t[4]}, 2, v{t[3]}
    v_xor_b32 v{t[5]}, 128, v{t[4]}
    s_mov_b32 s{sT2}, {G_OFF}
    ''')
    e.V(f'buffer_load_dword v{vG0}, v{t[4]}, {srd(sWS)}, s{sT2} offen sc1', 'g')
    e.V(f'buffer_load_dword v{vG1}, v{t[5]}, {srd(sWS)}, s{sT2} offen sc1', 'g')
    e.many(f'''
    v_mul_u32_u24 v{vOut}, 896, v{t[3]}
    v_lshl_add_u32 v{vOut}, v{t[1]}, 4, v{vOut}
    s_lshl_b32 s{sT1}, s{sCT}, 7
    s_add_u32 s{sT1}, s{sT1}, s{sT0}
    v_add_u32 v{vOut}, s{sT1}, v{vOut}
    s_mul_i32 s{sT1}, s{sW}, 12288
    s_add_u32 s{sT1}, s{sT1}, {RED}
    v_add_u32 v{vRd}, s{sT1}, v{vL16}
    ''')
    for x in (1, 2, 3):
        e.many(f'''
        s_xor_b32 s{sT1}, s{sW}, {x}
        s_mul_i32 s{sT1}, s{sT1}, 12288
        s_add_u32 s{sT1}, s{sT1}, {RED + (x - 1) * 4096}
        v_add_u32 v{vWr[x-1]}, s{sT1}, v{vL16}
        ''')
    for sq in range(3, D):
        for p in range(4): issue(sq, p)
    stamp(e, cfg, 1)
    def reads(sq):
        e.wait(vm=[('W', sq)])
        a = (sq % R) * 8192; f = WF + 8 * (sq % 3)
        for n in range(2):
            for j in range(2):
                e.D(f'ds_read_b64_tr_b16 {vr(f+4*n+2*j,2)}, v{vA[a >> 16][n]} offset:{(a & 0xffff) + j * 1024}', ('w', sq))
    reads(0)
    for sq in range(36):
        if sq == 1: stamp(e, cfg, 2)
        if sq + 1 < 36: reads(sq + 1)
        if sq == 28:
            stamp(e, cfg, 3)
            e.wait(vm=['g'])
            for x in range(4):
                for r in range(16): e.I(f'v_mul_f32 v{ACC+16*x+r}, v{ACC+16*x+r}, v{vG0 + (x >> 1)}')
        e.wait(vm=[('H', sq)], lg=[('w', sq)])
        f = WF + 8 * (sq % 3)
        for x in (1, 2, 3, 0):
            acc = vr(ACC + 16 * x, 16)
            e.I(f'v_mfma_f32_32x32x16_bf16 {acc}, {vr(f+4*(x&1))}, {ar(8*(sq % DH)+4*(x>>1))}, ' + ('0' if sq == 0 else acc))
            issue(sq + D, (x - 1) & 3)
    stamp(e, cfg, 4)
    for x in (1, 2, 3):
        for q in range(4): e.D(f'ds_write_b128 v{vWr[x-1]}, {vr(ACC+16*x+4*q)} offset:{q*1024}', 'rw')
    e.wait(lg=['rw']); e.I('s_barrier')
    for x in (1, 2, 3):
        for q in range(4): e.D(f'ds_read_b128 {vr(ACC+16*x+4*q)}, v{vRd} offset:{(x-1)*4096+q*1024}', ('rr', x))
    for x in (1, 2, 3):
        e.wait(lg=[('rr', x)])
        for r in range(16): e.I(f'v_add_f32 v{ACC+r}, v{ACC+r}, v{ACC+16*x+r}')
    O = WF
    for i in range(8): e.I(f'v_cvt_pk_bf16_f32 v{O+i}, v{ACC+2*i}, v{ACC+2*i+1}')
    for b in (0, 4):
        e.I(f'v_permlane32_swap_b32 v{O+b}, v{O+b+2}'); e.I(f'v_permlane32_swap_b32 v{O+b+1}, v{O+b+3}')
    e.V(f'buffer_store_dwordx4 {vr(O)}, v{vOut}, {srd(sOUT)}, 0 offen', 'out')
    e.V(f'buffer_store_dwordx4 {vr(O+4)}, v{vOut}, {srd(sOUT)}, 0 offen offset:32', 'out')
    stamp(e, cfg, 5)
    if cfg.stamps: e.wait(vm_all=True); stamp(e, cfg, 6)
    stamp_out(e, cfg, 1 << 18)
    e.label('L_end2')
    e.I('s_endpgm')
    print(f'phase2: nops {e.nops}', file=sys.stderr)
    return e.text()

KD = '''.amdhsa_kernel {k}
  .amdhsa_next_free_vgpr 512
  .amdhsa_next_free_sgpr 102
  .amdhsa_accum_offset 256
  .amdhsa_group_segment_fixed_size 0
  .amdhsa_kernarg_size 88
  .amdhsa_user_sgpr_count 2
  .amdhsa_user_sgpr_kernarg_segment_ptr 1
  .amdhsa_system_sgpr_workgroup_id_x 1
  .amdhsa_float_denorm_mode_32 3
.end_amdhsa_kernel
'''
def build(cfg):
    ks = [('p1_kernel', 256, gen_phase1(cfg, 'L_code_end1-p1_kernel-64')), ('p2_kernel', 224, gen_phase2(cfg, 'L_code_end2-p2_kernel-64'))]
    o = f'; {NAME}: generated by gen/gen.py\n'
    for k, g, _ in ks: o += f'; @launch kernel={k} grid=({g},1,1) block=(256,1,1) lds={LDS_BYTES}\n'
    o += '.amdgcn_target "amdgcn-amd-amdhsa--gfx950"\n.text\n'
    for i, (k, g, body) in enumerate(ks):
        o += f'.globl {k}\n.p2align 8\n.type {k},@function\n{k}:\n{body}L_code_end{i+1}:\n s_endpgm\n'
    o += '.section .rodata,"a"\n'
    for k, g, _ in ks: o += '.p2align 6\n' + KD.format(k=k)
    return o

if __name__ == '__main__':
    cfg = Cfg()
    out = None
    for a in sys.argv[1:]:
        if '=' in a:
            k, v = a.split('=', 1)
            cur = getattr(cfg, k)
            setattr(cfg, k, (v == '1') if isinstance(cur, bool) else type(cur)(v))
        else: out = a
    s = build(cfg)
    open(out or f'cdna_kernels/{NAME}.s', 'w').write(s)
```

```python
import sys
import gen2 as G
def addz(src, dst, A, B, M=10):
    s = open(src).read()
    lines = s.split('\n')
    last = max(i for i, l in enumerate(lines) if '@launch' in l)
    if 'kernel=' not in lines[last]:
        lines[last] = lines[last].replace('@launch ', f'@launch kernel={G.NAME}_kernel ')
    lines.insert(last + 1, '; @launch kernel=z_kernel grid=(1,1,1) block=(64,1,1) lds=0')
    s = '\n'.join(lines)
    b = '''.globl z_kernel
.p2align 8
.type z_kernel,@function
z_kernel:
 s_cmp_lg_u32 s2, 0
 s_cbranch_scc1 Lz_end
 s_load_dwordx2 s[4:5], s[0:1], 80
 v_lshlrev_b32 v1, 8, v0
 s_waitcnt lgkmcnt(0)
 s_mov_b32 s8, s4
 s_mov_b32 s9, s5
 s_mov_b32 s10, %d
 s_mov_b32 s11, 0x20000
''' % (G.WS_USED + (1 << 20))
    for k, (base, n, idx, op) in enumerate((A, B)):
        for i in range(n):
            b += f' s_mov_b32 s12, {G.WS_USED + base + i * 16384 + idx * 4}\n buffer_load_dword v{2+i}, v1, s[8:11], s12 offen\n'
        b += ' s_waitcnt vmcnt(0)\n'
        if op == 'pmean':
            pass
        for i in range(1, n): b += f' v_{op}_u32 v2, v2, v{2+i}\n'
        b += f' s_nop 1\n v_readlane_b32 s{20+k}, v2, 0\n'
        for l in range(1, 64): b += f' v_readlane_b32 s13, v2, {l}\n s_nop 1\n s_{op}_u32 s{20+k}, s{20+k}, s13\n'
    b += f''' s_sub_u32 s20, s21, s20
 s_min_u32 s20, s20, 10000
 s_mul_i32 s20, s20, {M}
 s_memrealtime s[14:15]
 s_waitcnt lgkmcnt(0)
Lz_spin:
 s_memrealtime s[16:17]
 s_waitcnt lgkmcnt(0)
 s_sub_u32 s16, s16, s14
 s_cmp_lt_u32 s16, s20
 s_cbranch_scc1 Lz_spin
Lz_end:
 s_endpgm
'''
    KD = '''.p2align 6
.amdhsa_kernel z_kernel
  .amdhsa_next_free_vgpr 64
  .amdhsa_next_free_sgpr 102
  .amdhsa_accum_offset 64
  .amdhsa_group_segment_fixed_size 0
  .amdhsa_kernarg_size 88
  .amdhsa_user_sgpr_count 2
  .amdhsa_user_sgpr_kernarg_segment_ptr 1
  .amdhsa_system_sgpr_workgroup_id_x 1
.end_amdhsa_kernel
'''
    s = s.replace('.section .rodata,"a"\n', b + '.section .rodata,"a"\n') + KD
    open(dst, 'w').write(s)
if __name__ == '__main__':
    src = sys.argv[1]
    for i, spec in enumerate(sys.argv[2:]):
        P = []
        for t in spec.split('-'):
            k, idx, op = t.split(':')
            P.append((0 if k == '1' else 1 << 18, 16 if k == '1' else 14, int(idx), op))
        addz(src, f'z{i}.s', P[0], P[1])
```

```python
import sys, copy
from emit import Em

NAME = 'gated_mix__linear_attn_block__glu_gated_reglu__prompt'
H_BYTES = 32 * 4 * 36 * 2048
KV_OFF = H_BYTES
C_OFF = KV_OFF + 16 * 4096
G_OFF = C_OFF + 64 * 2048
WS_USED = G_OFF + 2048 * 4
LOG2E = 0x3fb8aa3b
EPS = 0x358637bd
NEG_EPS_LOG2E = 0xb5c1a2c3
LDS_BYTES = 160 * 1024

class Cfg:
    LA = 3
    EB = 4
    dma_gap = 2
    fill = 3
    st_flag = 'sc1'
    D2 = 12
    stamps = False
    rt = False
    spin = 4000
    rot = True
    ld_flag = ''
    ld2_flag = ''
    n0 = 18
    LH = 4
    sB_gap = 1
    w2q = 3
    touch = 0
    out_flag = ''
    fine = False
    noatom = False
    psleep = 1
    pollB = 2
    pollO = 3
    sigA = 11

sX, sQKV, sI0, sI1, sWS, sDBG, sWD, sWO, sOUT, sGW, sCODE = [28 + 4 * i for i in range(11)]
sW, sRB, sHEAD, sT3, sC, sRT, sCT, sQH = 72, 73, 74, 75, 76, 77, 78, 79
sM1K, sM4K, sSoF, sStepF, sSoKV, sT0, sT1, sT2, sT3b = 80, 81, 82, 83, 84, 85, 86, 87, 88
sPB, sEPS, sInit = 89, 90, 91
sPadM = 92
sLoM = 94
sHiM = 96
sM2K = 98
sSo = 99
sKx, sKkv, sEndF, sRot0F = 26, 27, 3, 88
sPoll = 10
def srd(b): return f's[{b}:{b+3}]'

vL, vL16, vL4, vD0, vD1, vD2, vDX, vHst, vAK, vAV, vNEGC, vONES, vDbg, vScW, vScR, vAG = range(1, 17)
vAX = [17, 18, 19, 20]
vAF = [[21 + 4 * w + t for t in range(4)] for w in range(3)]
vDG = 34
vT = 36
vDW, vDO, vH0, vH1, vG0, vG1, vOut, vWr, vPoll = range(60, 69)
vA2 = [[69, 70], [71, 72], [73, 74]]
vRd = [75, 76, 77]
vTch = 78
vPA, vPO = 79, 59
aH = 112
vFR = 80
aK, aV, aA, aB = 96, 112, 128, 192
XB, KVB, FB = 0, 48 * 1024, 80 * 1024
SCR = XB + 16384

def vr(b, n=4): return f'v[{b}:{b+n-1}]'
def ar(b, n=4): return f'a[{b}:{b+n-1}]'

def mk_srd(e, b, lo, size):
    e.I(f's_mov_b32 s{b}, s{lo}'); e.I(f's_mov_b32 s{b+1}, s{lo+1}')
    e.I(f's_mov_b32 s{b+2}, {size}'); e.I(f's_mov_b32 s{b+3}, 0x20000')

def code_prefetch(e, nbytes, tmp=vT):
    e.many(f'''
    s_getpc_b64 s[{sCODE}:{sCODE+1}]
    s_mov_b32 s{sCODE+2}, {nbytes}
    s_mov_b32 s{sCODE+3}, 0x20000
    v_lshlrev_b32 v{tmp}, 7, v0
    ''')
    e.V(f'buffer_load_dword v{tmp+1}, v{tmp}, {srd(sCODE)}, 0 offen', 'code')

def stamp(e, cfg, i):
    if cfg.stamps:
        e.wait(lg_all=True)
        e.I(('s_memrealtime' if cfg.rt else 's_memtime') + ' s[100:101]'); e.I('s_waitcnt lgkmcnt(0)')
        e.I(f'v_writelane_b32 v35, s100, {i}')

def stamp_out(e, cfg, base):
    if cfg.stamps:
        e.many(f'''
        s_lshl_b32 s{sT0}, s2, 2
        s_add_u32 s{sT0}, s{sT0}, s{sW}
        s_lshl_b32 s{sT0}, s{sT0}, 8
        s_add_u32 s{sT0}, s{sT0}, {WS_USED + base}
        v_lshlrev_b32 v34, 2, v{vL}
        ''')
        e.V(f'buffer_store_dword v35, v34, {srd(sWS)}, s{sT0} offen', 'st')

class Pool:
    def __init__(self): self.free = []
    def add(self, addr, ep): self.free.append((ep, addr)); self.free.sort()
    def take(self, ep):
        for i, (a, addr) in enumerate(self.free):
            if a <= ep: del self.free[i]; return addr
        return None
    def take_pair(self, ep):
        ok = sorted(addr for a, addr in self.free if a <= ep)
        for x in ok:
            if x + 8192 in ok:
                self.free = [(a, b) for a, b in self.free if b not in (x, x + 8192)]
                return x
        return None

class P1:
    def __init__(self, cfg):
        self.cfg = cfg
        self.pool = Pool()
        for i in range(10): self.pool.add(FB + 8192 * i, -1)
        self.fblk = {}
        self.q = []
        for s in range(7):
            self.q += [('x', s, j) for j in range(4)]
            for p in (2 * s, 2 * s + 1):
                self.q += [('f', 0, p, 0), ('f', 0, p, 1), ('kv', p)]
        for p in range(14): self.q += [('f', 1, p, 0), ('f', 1, p, 1)]
        self.epoch = -1
        self.w2blk = {}
        self.scr_read_epoch = None
        self.x_read_done = -1
        self.since = 99
    def ep_of(self, ps, ks): return ks // 4 if ps == 0 else 7 + ks // self.cfg.EB
    def last_pair_of_epoch(self, ps, pair):
        ks = 2 * pair + 1
        return ks == 27 or self.ep_of(ps, ks + 1) != self.ep_of(ps, ks)
    def free_epoch(self, ps, pair):
        ep = self.ep_of(ps, 2 * pair)
        return ep + (2 if self.last_pair_of_epoch(ps, pair) else 1)
    def try_dma(self, e):
        if not self.q: return False
        d = self.q[0]
        if d[0] == 'x':
            _, s, j = d
            if s >= 3 and self.x_read_done < s - 3: return False
            e.I(f's_add_u32 m0, s{sM4K}, {XB + (s % 3) * 16384 + j * 1024}')
            if j == 0 and s > 0:
                e.I(f's_add_u32 s{sKx}, s{sKx}, 128'); e.I(f's_cmp_eq_u32 s{sKx}, 896'); e.I(f's_cselect_b32 s{sKx}, 0, s{sKx}')
            e.I(f's_add_u32 s{sSo}, s{sKx}, {j * 7168}')
            e.V(f'buffer_load_dwordx4 v{vDX}, {srd(sX)}, s{sSo} offen {self.cfg.ld_flag} lds', ('ep', s))
        elif d[0] == 'w2':
            _, sq, part = d
            if part == 0:
                a = self.pool.take(self.epoch)
                if a is None: return False
                self.w2blk[sq] = a
            a = self.w2blk[sq]
            if sq < 28:
                p, c = divmod(sq, 14); row = 128 * c + 64 * p; v, sr = vDW, sWD
            else:
                hh, j = divmod(sq - 28, 2); row = 28 * hh - 4 * (hh & 1) + 16 * j; v, sr = vDO, sWO
            e.I(f's_add_u32 m0, s{sM2K}, {a + part * 1024}')
            e.I(f's_mov_b32 s{sSo}, {(row + 8 * part) * 896}')
            e.V(f'buffer_load_dwordx4 v{v}, {srd(sr)}, s{sSo} offen {self.cfg.ld2_flag} lds', ('W', sq))
        elif d[0] == 'kv':
            p = d[1]
            if p >= 8 and self.free_epoch(0, p - 8) > self.epoch: return False
            e.I(f's_add_u32 m0, s{sM1K}, {KVB + (p % 8) * 4096}')
            if p > 0: e.I(f's_add_u32 s{sKkv}, s{sKkv}, {32 * 2688}')
            if p > 0 and p % 2 == 0:
                e.I(f's_cmp_eq_u32 s{sKkv}, {448 * 2688}'); e.I(f's_cselect_b32 s{sKkv}, 0, s{sKkv}')
            e.V(f'buffer_load_dwordx4 v{vD2}, {srd(sQKV)}, s{sKkv} offen {self.cfg.ld_flag} lds', ('ep', p // 2))
        else:
            _, ps, p, img = d
            if img == 0:
                a = self.pool.take(self.epoch)
                if a is None: return False
                self.fblk[(ps, p)] = a
            a = self.fblk[(ps, p)]
            e.I(f's_add_u32 m0, s{sM1K}, {a + img * 4096}')
            if img == 0:
                if p == 0:
                    e.I(f's_mov_b32 s{sSoF}, s{sRot0F}')
                    if ps == 1:
                        e.I(f'v_add_u32 v{vD0}, s{sPB}, v{vD0}'); e.I(f'v_add_u32 v{vD1}, s{sPB}, v{vD1}')
                else:
                    e.I(f's_add_u32 s{sSoF}, s{sSoF}, s{sStepF}')
                    if p % 2 == 0:
                        e.I(f's_cmp_eq_u32 s{sSoF}, s{sEndF}'); e.I(f's_cselect_b32 s{sSoF}, 0, s{sSoF}')
            e.V(f'buffer_load_dwordx4 v{vD0 + img}, {srd(sI0 + 4 * img)}, s{sSoF} offen {self.cfg.ld_flag} lds', ('ep', self.ep_of(ps, 2 * p)))
        self.q.pop(0)
        return True
    def on_epoch(self, ep):
        self.epoch = ep
        for (ps, p), a in list(self.fblk.items()):
            if self.free_epoch(ps, p) == ep: self.pool.add(a, ep)
        s = ep - 1
        if self.scr_read_epoch is not None and ep == self.scr_read_epoch + 1:
            self.pool.add(SCR, ep); self.pool.add(SCR + 8192, ep)
        if 5 <= s <= 6:
            self.pool.add(XB + (s % 3) * 16384, ep); self.pool.add(XB + (s % 3) * 16384 + 8192, ep)
        for p in (9, 11, 13):
            if self.free_epoch(0, p) == ep: self.pool.add(KVB + ((p - 1) % 8) * 4096, ep)

def steps_A(): return [(0, ks, t) for ks in range(28) for t in ('k', 'v', 0, 1, 2, 3)]
def steps_B(t3): return [(1, ks, t) for ks in range(28) for t in ((0, 1, 2, 'g') if t3 else (0, 1, 2, 3))]
GW_LDS = KVB + 6 * 4096

def issue_read(e, st, n, step, gw_addr=None):
    cfg = st.cfg
    ps, ks, t = step
    first = t == ('k' if ps == 0 else 0)
    ep = st.ep_of(ps, ks)
    if first and ep != st.epoch:
        if st.pre_barrier: st.pre_barrier(e, ep)
        for d in st.q:
            if d[0] == 'w2': continue
            dep = d[1] if d[0] == 'x' else (d[1] // 2 if d[0] == 'kv' else st.ep_of(d[1], 2 * d[2]))
            assert dep > ep, ('DMA not issued in time', d, ep)
        e.wait(vm=[('ep', ep)])
        e.I('s_barrier')
        st.on_epoch(ep)
        if cfg.fine and ep > 0: stamp(e, cfg, 50 + ep)
        if st.post_barrier: st.post_barrier(e, ep)
        if ps == 0:
            e.D(f'ds_read_b128 {ar(4*ks)}, v{vAX[0]} offset:{XB + (ep % 3) * 16384}', ('x', ks))
    if ps == 0 and ks % 4 == 0 and t in ('v', 0, 1):
        q = {'v': 1, 0: 2, 1: 3}[t]
        e.D(f'ds_read_b128 {ar(4*(ks+q))}, v{vAX[q]} offset:{XB + (ep % 3) * 16384}', ('x', ks + q))
    fr = vFR + 4 * (n % (cfg.LA + 1))
    if t == 'g':
        e.D(f'ds_read_b128 {vr(fr)}, v{vAG} offset:{ks * 32}', ('w', n))
        return
    if t in ('k', 'v'):
        reg = vAK if t == 'k' else vAV
        off = ((ks // 2) % 8) * 4096 + (ks & 1) * 2048
    else:
        a = st.fblk[(ps, ks // 2)]
        reg = vAF[a >> 16][t]; off = (a & 0xffff) + (ks & 1) * 2048
    e.D(f'ds_read_b64_tr_b16 {vr(fr,2)}, v{reg} offset:{off}', ('w', n))
    e.D(f'ds_read_b64_tr_b16 {vr(fr+2,2)}, v{reg} offset:{off+512}', ('w', n))

def issue_mfma(e, st, n, step):
    ps, ks, t = step
    fr = vFR + 4 * (n % (st.cfg.LA + 1))
    e.wait(lg=[('w', n), ('x', ks)])
    if ps == 0 and ks % 4 == 1: st.x_read_done = ks // 4
    x = ar(4 * ks)
    if t == 'k':
        e.I(f'v_mfma_f32_32x32x16_bf16 {vr(aK,16)}, {x}, {vr(fr)}, {vr(aK,16)}')
    elif t == 'v':
        c = '0' if ks == 0 else vr(aV, 16)
        e.I(f'v_mfma_f32_32x32x16_bf16 {vr(aV,16)}, {x}, {vr(fr)}, {c}')
    else:
        acc = (aA if ps == 0 else aB) + 16 * (3 if t == 'g' else t)
        c = vr(acc, 16)
        if ks == 0 and t == 'g': c = '0'
        e.I(f'v_mfma_f32_32x32x16_bf16 {vr(acc,16)}, {vr(fr)}, {x}, {c}')

def run_steps(e, st, steps, lo, hi, fillers=None):
    cfg = st.cfg
    for n in range(lo, hi):
        if n + cfg.LA < len(steps): issue_read(e, st, n + cfg.LA, steps[n + cfg.LA])
        issue_mfma(e, st, n, steps[n])
        st.since += 1
        did = False
        if st.since >= cfg.dma_gap and st.try_dma(e): st.since = 0; did = True
        if fillers is not None:
            budget = cfg.fill - (1 if did else 0)
            while budget > 0 and fillers:
                f = fillers[0]
                if f[0] == 'gate':
                    if f[1](): fillers.pop(0); continue
                    break
                fillers.pop(0); f[1](e); budget -= f[2]

def flush(e, fillers):
    for f in fillers:
        if f[0] == 'gate': assert f[1](), 'gate still closed at flush'
        else: f[1](e)
    fillers.clear()

def fI(text, cost=1): return ('i', lambda e: e.I(text), cost)
def fF(fn, cost=1): return ('i', fn, cost)

def phi_fill(acc, n, tmp):
    L = []
    for r0 in range(0, n, 4):
        for i in range(4): L.append(fI(f'v_fmamk_f32 v{tmp+i}, v{acc+r0+i}, {LOG2E:#x}, v{vNEGC}'))
        for i in range(4):
            L.append(fI(f'v_exp_f32_e64 v{tmp+i}, v{tmp+i} clamp', 2))
            L.append(fI(f'v_max_f32 v{acc+r0+i}, s{sEPS}, v{acc+r0+i}'))
        for i in range(4): L.append(fI(f'v_add_f32 v{acc+r0+i}, v{acc+r0+i}, v{tmp+i}'))
    return L

def kv_fill(st, tag):
    cfg = st.cfg
    pk, pv, tmp = vT, vT + 8, vT + 16
    L = []
    for i in range(8): L.append(fI(f'v_cvt_pk_bf16_f32 v{pv+i}, v{aV+2*i}, v{aV+2*i+1}'))
    for i in range(8): L.append(fI(f'v_cndmask_b32_e64 v{pv+i}, v{pv+i}, v{vONES}, s[{sPadM}:{sPadM+1}]'))
    L += phi_fill(aK, 16, tmp)
    for i in range(8): L.append(fI(f'v_cvt_pk_bf16_f32 v{pk+i}, v{aK+2*i}, v{aK+2*i+1}'))
    L.append(fI(f'v_mfma_f32_32x32x16_bf16 {vr(aV,16)}, {vr(pk)}, {vr(pv)}, 0', 2))
    L.append(fI(f'v_mfma_f32_32x32x16_bf16 {vr(aV,16)}, {vr(pk+4)}, {vr(pv+4)}, {vr(aV,16)}', 2))
    L.append(('delay',))
    for q in range(4):
        L.append(fF(lambda e, q=q: e.D(f'ds_write_b128 v{vScW}, {vr(aV+4*q)} offset:{SCR+q*1024}', 'scw'), 2))
    def mark(e): st.scw_epoch = st.epoch
    L.append(fF(mark, 0))
    L2 = [('gate', lambda: st.scw_epoch is not None and st.epoch > st.scw_epoch)]
    for p in range(4):
        for i in (0, 2):
            L2.append(fF(lambda e, p=p, i=i: e.D(f'ds_read2st64_b32 {vr(aK+4*p+i,2)}, v{vScR} offset0:{SCR//256+p*16+i} offset1:{SCR//256+p*16+i+1}', 'scr')))
    L2.append(('delay',))
    def scr_done(e): e.wait(lg=['scr']); st.scr_read_epoch = st.epoch
    L2.append(fF(scr_done, 1))
    for i in range(4): L2.append(fI(f'v_add_f32 v{aK+i}, v{aK+i}, v{aK+4+i}'))
    for i in range(4): L2.append(fI(f'v_add_f32 v{aK+8+i}, v{aK+8+i}, v{aK+12+i}'))
    for i in range(4): L2.append(fI(f'v_add_f32 v{aK+i}, v{aK+i}, v{aK+8+i}'))
    for i in range(4):
        L2.append(fF(lambda e, i=i: e.V(f'buffer_atomic_add_f32 v{aK+i}, v{vL4}, {srd(sWS)}, s{sSoKV} offen offset:{i*256}' if not cfg.noatom else f'buffer_load_dword v{vTch}, v{vL4}, {srd(sGW)}, 0 offen', 'pubKV'), 2))
    return L, L2

def zspin(cfg, tag):
    return f'''L_zspin_{tag}:
 s_mov_b32 s{sT0}, 0
L_zspin2_{tag}:
 s_sleep 2
 v_and_b32 v{vDbg}, 60, v{vL4}
 buffer_load_dword v{vDbg}, v{vDbg}, {srd(sDBG)}, 0 offen sc1
 s_add_u32 s{sT0}, s{sT0}, 1
 s_waitcnt vmcnt(0)
 v_cmp_ne_u32 vcc, 0, v{vDbg}
 s_nop 1
 s_cmp_eq_u64 vcc, -1
 s_cbranch_scc1 L_zok_{tag}
 s_cmp_lt_u32 s{sT0}, {cfg.spin}
 s_cbranch_scc1 L_zspin2_{tag}
 s_branch L_zok_{tag}
'''

def merge(*lists):
    out = []
    lists = [list(l) for l in lists]
    for i, l in enumerate(lists):
        for f in l:
            if f[0] == 'delay':
                k = 0
                for nx in lists[i + 1:]:
                    while nx and k < 10 and nx[0][0] == 'i':
                        out.append(nx.pop(0)); k += 1
                    if k: break
            else: out.append(f)
    return out

def f_fill(st, acc, i, ps, tmp):
    cfg = st.cfg
    L = []
    for r in range(8): L.append(fI(f'v_max_f32 v{acc+r}, 0, v{acc+r}'))
    for r in range(8): L.append(fI(f'v_mul_f32 v{acc+r}, v{acc+r}, v{acc+8+r}'))
    for r in range(4): L.append(fI(f'v_cvt_pk_bf16_f32 v{acc+8+r}, v{acc+2*r}, v{acc+2*r+1}'))
    def st_(e):
        e.I(f's_mov_b32 s{sSo}, {i * 73728 + ps * 28672}')
        e.V(f'buffer_store_dwordx4 {vr(acc+8)}, v{vHst}, {srd(sWS)}, s{sSo} offen {cfg.st_flag}', 'pubA' if ps == 0 else 'pubB')
    return L, [fF(st_, 2)]

def signal(e, kind, idx_sreg, tag):
    prod = {0: sRB, 1: sC, 2: sC, 3: sQH}[kind]
    e.many(f'''
    s_cmp_eq_u32 s{sW}, 0
    s_cbranch_scc0 L_sig_{tag}
    s_lshl_b32 s{sT0}, s{idx_sreg}, 6
    s_add_u32 s{sT0}, s{sT0}, s{prod}
    s_lshl_b32 s{sT0}, s{sT0}, 7
    s_add_u32 s{sT0}, s{sT0}, {C_OFF + kind * 2048}
    s_mov_b64 exec, 1
    v_mov_b32 v33, 1
    ''')
    e.V(f'buffer_store_dword v33, off, {srd(sWS)}, s{sT0} sc1', cond=True)
    e.I('s_mov_b64 exec, -1')
    e.label(f'L_sig_{tag}')

def poll(e, cfg, vaddr, soff, target, tag, vtmp):
    e.many(f'''
    s_mov_b32 s{sT1}, 0
    L_poll_{tag}:
    s_sleep {cfg.psleep}
    buffer_load_dword v{vtmp}, v{vaddr}, {srd(sWS)}, {soff} offen sc1
    s_add_u32 s{sT1}, s{sT1}, 1
    s_waitcnt vmcnt(0)
    v_cmp_ne_u32 vcc, 0, v{vtmp}
    s_cmp_ge_u32 s{sT1}, {cfg.spin}
    s_cbranch_scc1 L_pollx_{tag}
    s_cmp_eq_u64 vcc, -1
    s_cbranch_scc0 L_poll_{tag}
    L_pollx_{tag}:
    ''')
    e.vm = []

def prologue1(e, cfg, code_bytes):
    e.many(f'''
    s_cmp_ge_u32 s2, 256
    s_cbranch_scc1 L_end1
    s_load_dwordx16 s[4:19], s[0:1], 0
    s_load_dwordx4 s[20:23], s[0:1], 64
    s_load_dwordx2 s[24:25], s[0:1], 80
    ''')
    code_prefetch(e, code_bytes)
    t = [vT + 2 + i for i in range(10)]
    e.many(f'''
    v_and_b32 v{vL}, 63, v0
    v_lshrrev_b32 v{t[0]}, 6, v0
    v_lshlrev_b32 v{vL16}, 4, v{vL}
    v_readfirstlane_b32 s{sW}, v{t[0]}
    v_lshlrev_b32 v{vL4}, 2, v{vL}
    s_lshr_b32 s{sT0}, s2, 3
    s_and_b32 s{sT1}, s{sT0}, 7
    s_lshr_b32 s{sT2}, s{sT0}, 3
    s_and_b32 s{sRB}, s2, 4
    s_lshl_b32 s{sRB}, s{sRB}, 1
    s_add_u32 s{sRB}, s{sRB}, s{sT1}
    s_and_b32 s{sHEAD}, s2, 3
    s_lshr_b32 s{sQH}, s{sHEAD}, 1
    s_lshl_b32 s{sHEAD}, s{sHEAD}, 2
    s_add_u32 s{sHEAD}, s{sHEAD}, s{sT2}
    s_xor_b32 s{sT3}, s{sT1}, s2
    s_and_b32 s{sT3}, s{sT3}, 1
    s_and_b32 s{sC}, s2, 1
    s_lshl_b32 s{sC}, s{sC}, 2
    s_add_u32 s{sC}, s{sC}, s{sT2}
    s_lshr_b32 s{sT1}, s{sT1}, 1
    s_add_u32 s{sT1}, s{sT1}, 24
    s_cmp_eq_u32 s{sT2}, 3
    s_cselect_b32 s{sT3}, s{sT3}, 0
    s_cselect_b32 s{sC}, 3, s{sC}
    s_cselect_b32 s{sT0}, s{sT1}, s{sT0}
    s_mul_i32 s{sT1}, s{sQH}, 7
    s_add_u32 s{sC}, s{sC}, s{sT1}
    s_and_b32 s{sRT}, s2, 7
    s_lshl_b32 s{sRT}, s{sRT}, 2
    s_and_b32 s{sT1}, s{sT0}, 3
    s_add_u32 s{sRT}, s{sRT}, s{sT1}
    s_lshr_b32 s{sCT}, s{sT0}, 2
    s_lshl_b32 s{sM1K}, s{sW}, 10
    s_lshl_b32 s{sM2K}, s{sW}, 11
    s_lshl_b32 s{sM4K}, s{sW}, 12
    v_lshrrev_b32 v{t[0]}, 3, v{vL}
    v_and_b32 v{t[1]}, 7, v{vL}
    v_bfe_u32 v{t[2]}, v{vL}, 4, 1
    v_lshlrev_b32 v{t[2]}, 2, v{t[2]}
    v_xor_b32 v{t[2]}, v{t[2]}, v{t[1]}
    s_lshl_b32 s{sT0}, s{sW}, 3
    v_add_u32 v{t[3]}, s{sT0}, v{t[0]}
    ; x
    s_lshl_b32 s{sT0}, s{sRB}, 2
    s_add_u32 s{sT0}, s{sT0}, s{sW}
    s_mul_i32 s{sT0}, s{sT0}, {32*896}
    v_xor_b32 v{t[4]}, v{t[1]}, v{t[0]}
    v_lshlrev_b32 v{t[4]}, 4, v{t[4]}
    v_mul_u32_u24 v{vDX}, 896, v{t[0]}
    v_add3_u32 v{vDX}, v{vDX}, v{t[4]}, s{sT0}
    ; kv window
    s_mul_i32 s{sT0}, s{sHEAD}, 56
    s_and_b32 s{sT0}, s{sT0}, -16
    s_add_u32 s{sT0}, s{sT0}, 896
    v_lshrrev_b32 v{t[4]}, 2, v{t[2]}
    v_mul_u32_u24 v{t[4]}, 832, v{t[4]}
    v_lshl_add_u32 v{t[4]}, v{t[2]}, 4, v{t[4]}
    v_mul_u32_u24 v{vD2}, 2688, v{t[3]}
    v_add3_u32 v{vD2}, v{vD2}, v{t[4]}, s{sT0}
    ; I0 / I1
    s_lshl_b32 s{sT0}, s{sC}, 8
    s_mul_i32 s{sT1}, s{sQH}, 448
    s_add_u32 s{sT2}, s{sT1}, 128
    s_cmp_eq_u32 s{sT3}, 1
    s_cselect_b32 s{sT2}, s{sT2}, s{sT0}
    s_cselect_b32 s{sT1}, s{sT1}, s{sT0}
    s_movk_i32 s{sT0}, 3584
    s_cselect_b32 s{sT0}, 2688, s{sT0}
    s_movk_i32 s{sPB}, 128
    s_cselect_b32 s{sPB}, 256, s{sPB}
    s_cselect_b32 s{sInit}, {EPS:#x}, 0
    s_lshl_b32 s{sStepF}, s{sT0}, 5
    v_mul_u32_u24 v{t[3]}, s{sT0}, v{t[3]}
    v_lshl_add_u32 v{vD0}, v{t[2]}, 4, v{t[3]}
    v_xor_b32 v{t[4]}, 2, v{t[2]}
    v_lshl_add_u32 v{vD1}, v{t[4]}, 4, v{t[3]}
    v_add_u32 v{vD0}, s{sT1}, v{vD0}
    v_add_u32 v{vD1}, s{sT2}, v{vD1}
    s_bfe_u32 s{sT0}, s2, 0x30003
    s_lshr_b32 s{sT1}, s2, 6
    s_lshl_b32 s{sT1}, s{sT1}, 1
    s_add_u32 s{sT0}, s{sT0}, s{sT1}
    s_and_b32 s{sT1}, s2, 3
    s_add_u32 s{sT0}, s{sT0}, s{sT1}
    s_mul_i32 s{sT1}, s{sT0}, 37
    s_lshr_b32 s{sT1}, s{sT1}, 8
    s_mul_i32 s{sT1}, s{sT1}, 7
    s_sub_u32 s{sT0}, s{sT0}, s{sT1}
    s_mul_i32 s{sT0}, s{sT0}, {1 if cfg.rot else 0}
    s_lshl_b32 s{sKx}, s{sT0}, 7
    s_mul_i32 s{sKkv}, s{sT0}, {64 * 2688}
    s_mul_i32 s{sRot0F}, s{sT0}, s{sStepF}
    s_lshl_b32 s{sRot0F}, s{sRot0F}, 1
    s_mul_i32 s{sEndF}, s{sStepF}, 14
    v_add_u32 v{vDG}, s{sKx}, v{vL16}
    v_subrev_u32 v{t[4]}, 896, v{vDG}
    v_min_u32 v{vDG}, v{vDG}, v{t[4]}
    s_waitcnt lgkmcnt(0)
    ''')
    mk_srd(e, sX, 4, 2048 * 896)
    mk_srd(e, sQKV, 6, 448 * 2688)
    mk_srd(e, sWS, 24, WS_USED + (1 << 20))
    e.many(f'''
    s_cmp_eq_u32 s{sT3}, 1
    s_cselect_b32 s{sI0}, s6, s12
    s_cselect_b32 s{sI0+1}, s7, s13
    s_cselect_b32 s{sI1}, s6, s14
    s_cselect_b32 s{sI1+1}, s7, s15
    s_mov_b32 s{sI0+2}, {448*3584}
    s_cselect_b32 s{sI0+2}, {448*2688}, s{sI0+2}
    s_mov_b32 s{sI1+2}, s{sI0+2}
    s_mov_b32 s{sI0+3}, 0x20000
    s_mov_b32 s{sI1+3}, 0x20000
    s_lshl_b32 s{sSoKV}, s{sHEAD}, 12
    s_add_u32 s{sSoKV}, s{sSoKV}, s{sM1K}
    s_add_u32 s{sSoKV}, s{sSoKV}, {KV_OFF}
    s_cmp_eq_u32 s{sRB}, 0
    s_cbranch_scc0 L_nozero
    v_mov_b32 v{vT+12}, 0
    v_mov_b32 v{vT+13}, 0
    v_mov_b32 v{vT+14}, 0
    v_mov_b32 v{vT+15}, 0
    s_lshl_b32 s{sT0}, s{sHEAD}, 2
    s_add_u32 s{sT0}, s{sT0}, s{sW}
    s_lshl_b32 s{sT0}, s{sT0}, 11
    s_add_u32 s{sT0}, s{sT0}, {C_OFF}
    v_lshlrev_b32 v{vT+16}, 5, v{vL}
    ''')
    e.V(f'buffer_store_dwordx4 {vr(vT+12)}, v{vL16}, {srd(sWS)}, s{sSoKV} offen sc1', cond=True)
    e.V(f'buffer_store_dword v{vT+12}, v{vT+16}, {srd(sWS)}, s{sT0} offen sc1', cond=True)
    e.label('L_nozero')

def prologue1b(e, cfg):
    t = [vT + 2 + i for i in range(10)]
    mk_srd(e, sDBG, 22, 256)
    mk_srd(e, sGW, 18, 896)
    e.many(f'''
    v_lshrrev_b32 v{t[1]}, 5, v{vL}
    v_bfe_u32 v{t[2]}, v{vL}, 2, 2
    v_lshl_add_u32 v{t[0]}, v{t[1]}, 3, v{t[2]}
    v_lshlrev_b32 v{t[0]}, 7, v{t[0]}
    v_and_b32 v{t[2]}, 3, v{vL}
    v_lshl_add_u32 v{t[0]}, v{t[2]}, 3, v{t[0]}
    v_bfe_u32 v{t[2]}, v{vL}, 3, 1
    v_lshl_add_u32 v{t[0]}, v{t[2]}, 6, v{t[0]}
    v_bfe_u32 v{t[2]}, v{vL}, 4, 1
    v_lshl_add_u32 v{t[0]}, v{t[2]}, 5, v{t[0]}
    v_add_u32 v{vAK}, {KVB}, v{t[0]}
    v_xor_b32 v{vAV}, 64, v{vAK}
    s_cmp_eq_u32 s{sT3}, 1
    s_cselect_b32 s{sT0}, 0, 4096
    v_mad_u32_u24 v{vAF[0][0]}, v{t[2]}, s{sT0}, v{t[0]}
    s_cselect_b32 s{sT0}, 64, 32
    s_cselect_b32 s{sT1}, {4096+32}, 64
    s_movk_i32 s{sT2}, 96
    s_cselect_b32 s{sT2}, {4096+96}, s{sT2}
    v_xor_b32 v{vAF[0][1]}, s{sT0}, v{vAF[0][0]}
    v_xor_b32 v{vAF[0][2]}, s{sT1}, v{vAF[0][0]}
    v_xor_b32 v{vAF[0][3]}, s{sT2}, v{vAF[0][0]}
    ''')
    for w in (1, 2):
        for q in range(4): e.I(f'v_add_u32 v{vAF[w][q]}, {65536*w}, v{vAF[0][q]}')
    e.many(f'''
    v_and_b32 v{t[2]}, 7, v{vL}
    v_xor_b32 v{t[2]}, v{t[2]}, v{t[1]}
    v_and_b32 v{t[3]}, 31, v{vL}
    v_lshlrev_b32 v{t[4]}, 7, v{t[3]}
    v_lshl_add_u32 v{t[4]}, v{t[2]}, 4, v{t[4]}
    v_add_u32 v{vAX[0]}, s{sM4K}, v{t[4]}
    v_xor_b32 v{vAX[1]}, 32, v{vAX[0]}
    v_xor_b32 v{vAX[2]}, 64, v{vAX[0]}
    v_xor_b32 v{vAX[3]}, 96, v{vAX[0]}
    v_lshlrev_b32 v{vAG}, 4, v{t[1]}
    v_add_u32 v{vAG}, {GW_LDS}, v{vAG}
    s_mov_b32 s{sT0}, 0xf0000000
    s_bitcmp1_b32 s{sHEAD}, 0
    s_cselect_b32 s{sPadM}, 15, s{sT0}
    s_mov_b32 s{sPadM+1}, s{sPadM}
    s_mov_b32 s{sLoM}, -1
    s_mov_b32 s{sLoM+1}, 0
    s_mov_b32 s{sHiM}, 0
    s_mov_b32 s{sHiM+1}, -1
    s_mov_b32 s{sEPS}, {EPS:#x}
    v_mov_b32 v{vNEGC}, {NEG_EPS_LOG2E:#x}
    v_mov_b32 v{vONES}, 0x3f803f80
    v_add_u32 v{vScW}, s{sM4K}, v{vL16}
    v_add_u32 v{vScR}, s{sM1K}, v{vL4}
    s_lshr_b32 s{sT0}, s{sW}, 1
    s_lshl_b32 s{sT1}, s{sRB}, 1
    s_add_u32 s{sT0}, s{sT0}, s{sT1}
    s_mul_i32 s{sT0}, s{sT0}, 144
    s_mul_i32 s{sT1}, s{sQH}, 72
    s_add_u32 s{sT1}, s{sT1}, 28
    s_cmp_eq_u32 s{sT3}, 1
    s_cselect_b32 s{sT1}, s{sT1}, s{sC}
    s_add_u32 s{sT0}, s{sT0}, s{sT1}
    s_lshl_b32 s{sT0}, s{sT0}, 1
    s_and_b32 s{sT1}, s{sW}, 1
    s_add_u32 s{sT0}, s{sT0}, s{sT1}
    s_lshl_b32 s{sT0}, s{sT0}, 10
    v_add_u32 v{vHst}, s{sT0}, v{vL16}
    ''')
    for r in range(16): e.I(f'v_mov_b32 v{aK+r}, s{sEPS}')
    for r in range(128): e.I(f'v_mov_b32 v{aA+r}, s{sInit}')


def prologue2(e, cfg):
    t = [vT + 2 + i for i in range(10)]
    mk_srd(e, sWD, 16, 1792 * 896)
    mk_srd(e, sWO, 8, 448 * 896)
    mk_srd(e, sOUT, 20, 2048 * 896)
    e.many(f"""
    v_lshrrev_b32 v{t[0]}, 3, v{vL}
    v_and_b32 v{t[1]}, 7, v{vL}
    v_bfe_u32 v{t[2]}, v{vL}, 4, 1
    v_lshlrev_b32 v{t[2]}, 2, v{t[2]}
    v_xor_b32 v{t[2]}, v{t[2]}, v{t[1]}
    v_mul_u32_u24 v{t[0]}, 896, v{t[0]}
    v_lshl_add_u32 v{t[0]}, v{t[2]}, 4, v{t[0]}
    s_lshl_b32 s{sT0}, s{sCT}, 7
    s_mul_i32 s{sT1}, s{sW}, {16*896}
    s_mul_i32 s{sT2}, s{sW}, {112*896}
    s_add_u32 s{sT1}, s{sT1}, s{sT0}
    s_add_u32 s{sT2}, s{sT2}, s{sT0}
    v_add_u32 v{vDW}, s{sT1}, v{t[0]}
    v_add_u32 v{vDO}, s{sT2}, v{t[0]}
    s_lshl_b32 s{sT0}, s{sRT}, 2
    s_add_u32 s{sT0}, s{sT0}, s{sW}
    s_mul_i32 s{sT0}, s{sT0}, 72
    s_lshr_b32 s{sT1}, s{sW}, 1
    s_add_u32 s{sT0}, s{sT0}, s{sT1}
    s_lshl_b32 s{sT0}, s{sT0}, 10
    v_add_u32 v{vH0}, s{sT0}, v{vL16}
    v_xor_b32 v{vH1}, 1024, v{vH0}
    v_lshrrev_b32 v{t[1]}, 5, v{vL}
    v_bfe_u32 v{t[2]}, v{vL}, 2, 2
    v_lshl_add_u32 v{t[0]}, v{t[1]}, 2, v{t[2]}
    v_lshlrev_b32 v{t[0]}, 7, v{t[0]}
    v_and_b32 v{t[2]}, 3, v{vL}
    v_lshl_add_u32 v{t[0]}, v{t[2]}, 3, v{t[0]}
    v_bfe_u32 v{t[2]}, v{vL}, 3, 1
    v_lshl_add_u32 v{t[0]}, v{t[2]}, 6, v{t[0]}
    v_bfe_u32 v{t[2]}, v{vL}, 4, 1
    v_lshl_add_u32 v{t[0]}, v{t[2]}, 5, v{t[0]}
    s_and_b32 s{sT0}, s{sW}, 1
    s_lshl_b32 s{sT0}, s{sT0}, 6
    v_xor_b32 v{t[0]}, s{sT0}, v{t[0]}
    v_add_u32 v{vA2[0][0]}, s{sM2K}, v{t[0]}
    v_xor_b32 v{vA2[0][1]}, 64, v{vA2[0][0]}
    v_add_u32 v{vA2[1][0]}, 0x10000, v{vA2[0][0]}
    v_add_u32 v{vA2[1][1]}, 0x10000, v{vA2[0][1]}
    v_add_u32 v{vA2[2][0]}, 0x20000, v{vA2[0][0]}
    v_add_u32 v{vA2[2][1]}, 0x20000, v{vA2[0][1]}
    s_lshl_b32 s{sT1}, s{sRT}, 1
    s_lshr_b32 s{sT2}, s{sW}, 1
    s_add_u32 s{sT1}, s{sT1}, s{sT2}
    s_lshl_b32 s{sT1}, s{sT1}, 5
    v_and_b32 v{t[3]}, 31, v{vL}
    v_add_u32 v{t[3]}, s{sT1}, v{t[3]}
    v_lshlrev_b32 v{vG0}, 2, v{t[3]}
    v_add_u32 v{vG0}, {G_OFF}, v{vG0}
    v_xor_b32 v{vG1}, 128, v{vG0}
    v_mul_u32_u24 v{vOut}, 896, v{t[3]}
    v_lshl_add_u32 v{vOut}, v{t[1]}, 4, v{vOut}
    s_lshl_b32 s{sT1}, s{sCT}, 7
    s_add_u32 s{sT1}, s{sT1}, s{sT0}
    v_add_u32 v{vOut}, s{sT1}, v{vOut}
    v_add_u32 v{vWr}, s{sM2K}, v{vL16}
    v_xor_b32 v{vRd[0]}, 2048, v{vWr}
    v_xor_b32 v{vRd[1]}, 4096, v{vWr}
    v_xor_b32 v{vRd[2]}, 6144, v{vWr}
    s_lshr_b32 s{sPoll}, s{sRT}, 1
    s_lshl_b32 s{sPoll}, s{sPoll}, 13
    s_add_u32 s{sPoll}, s{sPoll}, {C_OFF + 2048}
    v_min_u32 v{vPA}, 13, v{vL}
    v_lshlrev_b32 v{vPA}, 7, v{vPA}
    v_and_b32 v{vPO}, 1, v{vL}
    v_lshlrev_b32 v{vPO}, 7, v{vPO}
    v_add_u32 v{vPO}, 4096, v{vPO}
    """)

OOL = []
def poll_txt(kind):
    return f'buffer_load_dword v{vPoll}, v{vPO if kind == 3 else vPA}, {srd(sWS)}, s{sPoll} offen offset:{2048 if kind == 2 else 0} sc1'
def poll_issue(e, kind):
    e.V(poll_txt(kind), ('poll', kind))
def poll_check(e, cfg, kind, target):
    e.wait(vm=[('poll', kind)])
    e.I(f'v_cmp_ne_u32 vcc, 0, v{vPoll}')
    e.I('s_cmp_eq_u64 vcc, -1')
    e.I(f's_cbranch_scc0 L_pspin_{kind}')
    e.label(f'L_pok_{kind}')
    OOL.append(f"""L_pspin_{kind}:
 s_mov_b32 s{sT0}, 0
L_pspin2_{kind}:
 s_sleep {cfg.psleep}
 {poll_txt(kind)}
 s_add_u32 s{sT0}, s{sT0}, 1
 s_waitcnt vmcnt(0)
 v_cmp_ne_u32 vcc, 0, v{vPoll}
 s_nop 1
 s_cmp_eq_u64 vcc, -1
 s_cbranch_scc1 L_pok_{kind}
 s_cmp_lt_u32 s{sT0}, {cfg.spin}
 s_cbranch_scc1 L_pspin2_{kind}
 s_branch L_pok_{kind}
""")

def phase2(e, st, cfg, pending, cnt):
    WF, ACC, DH, LH = aK, aA, 16, cfg.LH
    epi = []; stores = []
    for i in range(4):
        a, b = f_fill(st, aB + 16 * i, i, 1, vT + 20)
        epi.append(a); stores.append(b[0][1])
    def h_op(sq, b):
        def f(e):
            if b == 0 and sq % 2 == 0: e.I(f's_mov_b32 s{sSoF}, {sq * 2048}')
            e.V(f'buffer_load_dwordx4 {ar(aH+8*(sq % DH)+4*b)}, v{vH0+b}, {srd(sWS)}, s{sSoF} offen offset:{(sq & 1) * 2048} sc1', ('H', sq))
        return f
    def w_op(e): st.try_dma(e)
    def reads(sq):
        assert sq in st.w2blk and ('w2', sq, 1) not in st.q, sq
        e.wait(vm=[('W', sq)])
        a = st.w2blk[sq]; f = WF + 8 * (sq % 4)
        for n in range(2):
            for j in range(2):
                e.D(f'ds_read_b64_tr_b16 {vr(f+4*n+2*j,2)}, v{vA2[a >> 16][n]} offset:{(a & 0xffff) + j * 1024}', ('w', sq))
    nst = 0
    for t in range(-LH, 36):
        u = t + LH
        ops = []
        if u == 0: ops.append(lambda e: (poll_check(e, cfg, 1, 14), stamp(e, cfg, 5)))
        if u == 14: ops.append(lambda e: (stamp(e, cfg, 6), poll_check(e, cfg, 2, 14), stamp(e, cfg, 7)))
        if u == 28:
            ops.append(lambda e: (stamp(e, cfg, 8), poll_check(e, cfg, 3, 2), stamp(e, cfg, 9)))
            ops.append(lambda e: (e.V(f'buffer_load_dword v{vG0}, v{vG0}, {srd(sWS)}, 0 offen sc1', 'g'),
                                  e.V(f'buffer_load_dword v{vG1}, v{vG1}, {srd(sWS)}, 0 offen sc1', 'g')))
        if u < 36: ops += [h_op(u, 0), h_op(u, 1)]
        if u == 14 - cfg.pollB: ops.append(lambda e: poll_issue(e, 2))
        if u == 28 - cfg.pollO: ops.append(lambda e: poll_issue(e, 3))
        ops += [w_op] * cfg.w2q
        valu = []
        if nst < 4 and u % cfg.sB_gap == 0:
            valu = epi[nst]; st_op = stores[nst]; nst += 1
        else: st_op = None
        if t < 0:
            k = -(-len(valu) // len(ops))
            for o in ops:
                o(e)
                for f in valu[:k]: f[1](e)
                valu = valu[k:]
            if st_op: st_op(e)
            if t == -1: reads(0)
            continue
        if cfg.fine and t < 34: stamp(e, cfg, 16 + t)
        rdy = [p for p in pending if cnt[p[0]] == 4 and p[0] not in e.vm]
        if rdy:
            e.I('s_barrier')
            for p in rdy:
                signal(e, p[1], p[2], f'p2_{p[1]}'); pending.remove(p)
                print(f'signal {p[0]} at seq {t}', file=sys.stderr)
        if t + 1 < 36: reads(t + 1)
        if t == 28:
            e.wait(vm=['g'])
            for x in range(4):
                for r in range(16): e.I(f'v_mul_f32 v{ACC+16*x+r}, v{ACC+16*x+r}, v{vG0 + (x >> 1)}')
        e.wait(vm=[('H', t)], lg=[('w', t)])
        st.pool.add(st.w2blk[t], st.epoch)
        f = WF + 8 * (t % 4)
        k = -(-len(ops) // 4); kv = -(-len(valu) // 4)
        for x in (1, 2, 3, 0):
            acc = vr(ACC + 16 * x, 16)
            e.I(f'v_mfma_f32_32x32x16_bf16 {acc}, {vr(f+4*(x&1))}, {ar(aH+8*(t % DH)+4*(x>>1))}, ' + ('0' if t == 0 else acc))
            for o in ops[:k]: o(e)
            ops = ops[k:]
            for g in valu[:kv]: g[1](e)
            valu = valu[kv:]
        if st_op: st_op(e)
    assert not pending and not st.q
    stamp(e, cfg, 10)
    for x in (1, 2, 3):
        for q in range(4): e.D(f'ds_write_b128 v{vWr}, {vr(ACC+16*x+4*q)} offset:{((x-1)*2+(q>>1))*8192+(q&1)*1024}', 'rw')
    e.wait(lg=['rw']); e.I('s_barrier')
    for x in (1, 2, 3):
        for q in range(4): e.D(f'ds_read_b128 {vr(ACC+16*x+4*q)}, v{vRd[x-1]} offset:{((x-1)*2+(q>>1))*8192+(q&1)*1024}', ('rr', x))
    for x in (1, 2, 3):
        e.wait(lg=[('rr', x)])
        for r in range(16): e.I(f'v_add_f32 v{ACC+r}, v{ACC+r}, v{ACC+16*x+r}')
    O = WF
    for i in range(8): e.I(f'v_cvt_pk_bf16_f32 v{O+i}, v{ACC+2*i}, v{ACC+2*i+1}')
    for b in (0, 4):
        e.I(f'v_permlane32_swap_b32 v{O+b}, v{O+b+2}'); e.I(f'v_permlane32_swap_b32 v{O+b+1}, v{O+b+3}')
    e.V(f'buffer_store_dwordx4 {vr(O)}, v{vOut}, {srd(sOUT)}, 0 offen {cfg.out_flag}', 'out')
    e.V(f'buffer_store_dwordx4 {vr(O+4)}, v{vOut}, {srd(sOUT)}, 0 offen offset:32 {cfg.out_flag}', 'out')
    stamp(e, cfg, 11)
    if cfg.stamps: e.wait(vm_all=True); stamp(e, cfg, 12)

def touch_w2(e, cfg, nwg_shift, idx_expr):
    pass

def gen_all(cfg, code_bytes):
    OOL.clear()
    e = Em()
    if cfg.stamps:
        e.I('v_mov_b32 v35, 0'); stamp(e, cfg, 0)
    prologue1(e, cfg, code_bytes)
    st = P1(cfg); st.pre_barrier = st.post_barrier = None; st.scw_epoch = None
    n0 = 0
    while n0 < 10 and st.try_dma(e): n0 += 1
    prologue1b(e, cfg)
    prologue2(e, cfg)
    while n0 < cfg.n0 and st.try_dma(e): n0 += 1
    stamp(e, cfg, 1)
    A = steps_A()
    def post(e, ep):
        if ep == 0:
            stamp(e, cfg, 2)
            e.many(f"""
            s_or_b32 s{sT0}, s{sRB}, s{sW}
            s_cbranch_scc1 L_noflag
            s_lshl_b32 s{sT0}, s{sHEAD}, 2
            s_mov_b64 exec, 1
            v_mov_b32 v33, 1
            """)
            e.V(f'buffer_store_dword v33, v{vL4}, {srd(sDBG)}, s{sT0} offen sc1', cond=True)
            e.I('s_mov_b64 exec, -1')
            e.label('L_noflag')
        if ep == 5:
            e.I(f'v_and_b32 v{vDbg}, 60, v{vL4}')
            e.V(f'buffer_load_dword v{vDbg}, v{vDbg}, {srd(sDBG)}, 0 offen sc1', 'dbg')
        if ep == 5:
            e.I(f's_mov_b32 m0, {GW_LDS}')
            e.V(f'buffer_load_dwordx4 v{vDG}, {srd(sGW)}, 0 offen lds', ('ep', 7))
        if cfg.touch and ep == cfg.touch:
            e.many(f"""
            s_lshl_b32 s{sT0}, s2, 2
            s_add_u32 s{sT0}, s{sT0}, s{sW}
            s_lshl_b32 s{sT0}, s{sT0}, 11
            v_and_b32 v{vTch}, 15, v{vL}
            v_lshlrev_b32 v{vTch}, 7, v{vTch}
            s_cmp_lt_u32 s{sT0}, {1792*896}
            s_cbranch_scc0 L_tch_o
            """)
            e.V(f'buffer_load_dword v{vTch}, v{vTch}, {srd(sWD)}, s{sT0} offen', cond=True)
            e.many(f"""
            s_branch L_tch_x
            L_tch_o:
            s_sub_u32 s{sT0}, s{sT0}, {1792*896}
            """)
            e.V(f'buffer_load_dword v{vTch}, v{vTch}, {srd(sWO)}, s{sT0} offen', 'tch')
            e.label('L_tch_x')
    st.post_barrier = post
    steps2 = A + steps_B(False); steps3 = A + steps_B(True)
    for n in range(cfg.LA): issue_read(e, st, n, A[n])
    run_steps(e, st, steps2, 0, len(A))
    stamp(e, cfg, 3)
    e.wait(vm=['dbg'])
    e.I(f'v_cmp_ne_u32 vcc, 0, v{vDbg}')
    e.I('s_cmp_eq_u64 vcc, -1')
    e.I(f's_cbranch_scc0 L_zspin_a')
    e.label(f'L_zok_a')
    e.I(f's_cmp_eq_u32 s{sT3}, 1')
    e.I('s_cbranch_scc1 L_t3')
    e3 = e.fork(); st3 = copy.copy(st)
    st3.pool = copy.deepcopy(st.pool); st3.fblk = dict(st.fblk); st3.q = list(st.q)
    def pre(stx):
        def f(e, ep): e.wait(lg=['scw'])
        return f
    st.q += [('w2', sq, p) for sq in range(36) for p in range(2)]
    st.pool.add(GW_LDS, 7)
    pending = [('pubA', 1, sRB), ('pubKV', 0, sHEAD), ('pubB', 2, sRB)]
    cnt = {'pubA': 0, 'pubKV': 0, 'pubB': 0}
    oV = e.V
    def V2(text, tag=None, cond=False):
        if tag in cnt: cnt[tag] += 1
        oV(text, tag, cond)
    e.V = V2
    def post2(e, ep):
        for p in list(pending):
            if cnt[p[0]] == 4 and p[0] not in e.vm:
                signal(e, p[1], p[2], f't2_{p[1]}'); pending.remove(p)
                print(f'signal {p[0]} at epoch {ep}', file=sys.stderr)
        if ep == st.ep_of(1, 27): poll_issue(e, 1)
    def pre2(e, ep):
        e.wait(lg=['scw'])
        if ep >= cfg.sigA and cnt['pubA'] == 4: e.wait(vm=['pubA'])
    st.post_barrier = post2; st.pre_barrier = pre2
    k1, k2 = kv_fill(st, 't2')
    fs = [f_fill(st, aA + 16 * i, i, 0, vT + 20) for i in range(4)]
    fill = merge(fs[0][0], fs[0][1], fs[1][0], fs[1][1], fs[2][0], fs[2][1], fs[3][0], fs[3][1], k1, k2)
    run_steps(e, st, steps2, len(A), len(steps2), fill)
    stamp(e, cfg, 4)
    while fill and fill[0][0] != 'gate' and any(f[0] == 'gate' for f in fill): fill.pop(0)[1](e)
    ep = st.epoch + 1
    pre2(e, ep); e.I('s_barrier'); st.on_epoch(ep)
    post2(e, ep)
    if st.scr_read_epoch is not None and st.scr_read_epoch < ep:
        st.on_epoch(ep + 1)
    else:
        keep = st.scr_read_epoch; st.scr_read_epoch = None; st.on_epoch(ep + 1)
    print(f'left-over fillers after pass B: {len(fill)}; W2 ops issued {72 - len(st.q)}; pool {len(st.pool.free)}', file=sys.stderr)
    flush(e, fill)
    phase2(e, st, cfg, pending, cnt)
    stamp_out(e, cfg, 0)
    e.I('s_endpgm')
    e3.label('L_t3')
    cnt3 = [0]; sig3 = []
    oV3 = e3.V
    def V3(text, tag=None, cond=False):
        if tag == 'pubKV': cnt3[0] += 1
        oV3(text, tag, cond)
    e3.V = V3
    def post3(e, ep):
        if cnt3[0] == 4 and not sig3 and 'pubKV' not in e.vm:
            signal(e, 0, sHEAD, 't3kv'); sig3.append(ep)
    st3.post_barrier = post3; st3.pre_barrier = pre(st3)
    k1, k2 = kv_fill(st3, 't3')
    P = aA
    def q_fill(acc, t):
        L = phi_fill(acc, 16, vT + 20)
        for i in range(8): L.append(fI(f'v_cvt_pk_bf16_f32 v{P+8*t+i}, v{acc+2*i}, v{acc+2*i+1}'))
        return L
    fill = merge(k1, q_fill(aA, 0), k2, q_fill(aA + 16, 1), q_fill(aA + 32, 2), q_fill(aA + 48, 3))
    c3 = copy.copy(cfg); c3.fill = cfg.fill + 1; st3.cfg = c3
    run_steps(e3, st3, steps3, len(A), len(steps3), fill)
    stamp(e3, cfg, 4)
    assert cnt3[0] == 4
    e3.wait(vm=['pubKV']); e3.I('s_barrier')
    if not sig3: signal(e3, 0, sHEAD, 't3kv')
    flush(e3, fill)
    for t in range(3): flush(e3, q_fill(aB + 16 * t, 4 + t))
    G, G1 = vT, vT + 1
    lg = aB + 48
    e3.many(f'''
    v_mul_f32 v{G}, 0xbfb8aa3b, v{lg}
    v_exp_f32 v{G}, v{G}
    v_and_b32 v{vT+2}, 15, v{vL}
    v_add_f32 v{G}, 1.0, v{G}
    v_rcp_f32 v{G}, v{G}
    v_bfe_u32 v{vT+3}, v{vL}, 4, 1
    v_lshl_add_u32 v{vT+2}, v{vT+3}, 6, v{vT+2}
    v_lshlrev_b32 v{vT+2}, 7, v{vT+2}
    v_sub_f32 v{G1}, 1.0, v{G}
    s_lshl_b32 s{sT2}, s{sQH}, 2
    s_add_u32 s{sT2}, s{sT2}, s{sW}
    s_lshl_b32 s{sT2}, s{sT2}, 14
    s_add_u32 s{sT2}, s{sT2}, {C_OFF}
    ''')
    stamp(e3, cfg, 5)
    poll(e3, cfg, vT + 2, f's{sT2}', 16, 'kv', vT + 3)
    stamp(e3, cfg, 6)
    R = aB
    e3.many(f'''
    s_lshl_b32 s{sT0}, s{sQH}, 15
    s_lshl_b32 s{sT2}, s{sW}, 13
    s_add_u32 s{sT0}, s{sT0}, s{sT2}
    s_add_u32 s{sT0}, s{sT0}, {KV_OFF}
    s_add_u32 s{sT2}, s{sT0}, 4096
    ''')
    for h in range(2):
        for q in range(4):
            e3.V(f'buffer_load_dwordx4 {vr(R+16*h+4*q)}, v{vL16}, {srd(sWS)}, s{sT0 if h == 0 else sT2} offen offset:{q*1024} sc1', ('kvl', h))
    e3.many(f'''
    s_lshl_b32 s{sT0}, s{sRB}, 2
    s_add_u32 s{sT0}, s{sT0}, s{sW}
    s_lshl_b32 s{sT0}, s{sT0}, 7
    s_add_u32 s{sT0}, s{sT0}, {G_OFF}
    v_and_b32 v{vT+2}, 124, v{vL4}
    v_mov_b32 v{vT+4}, 0
    v_add_u32 v{vT+5}, s{sM4K}, v{vL16}
    ''')
    e3.V(f'buffer_store_dword v{G1}, v{vT+2}, {srd(sWS)}, s{sT0} offen sc1', 'pubO')
    Z = vT + 4
    Q = aB + 32
    for h in range(2):
        e3.wait(vm=[('kvl', h)])
        for i in range(8): e3.I(f'v_cvt_pk_bf16_f32 v{Q+8*h+i}, v{R+16*h+2*i}, v{R+16*h+2*i+1}')
        pads = (6, 7) if h == 0 else (0, 1); m = sHiM if h == 0 else sLoM
        for i in pads: e3.I(f'v_cndmask_b32_e64 v{Q+8*h+i}, v{Q+8*h+i}, v{Z}, s[{m}:{m+1}]')
        for j in range(2):
            e3.D(f'ds_write_b128 v{vT+5}, {vr(Q+8*h+4*j)} offset:{(2*h+j)*1024}', 'kvw')
    e3.wait(lg=['kvw']); e3.I('s_barrier')
    KF = 112
    for jj in range(8):
        for j in range(2):
            e3.D(f'ds_read_b128 {ar(KF+8*jj+4*j)}, v{vL16} offset:{(2*jj+j)*1024}', ('kf', jj))
    N = [aB, aB + 16, aB + 32]
    def num(jj):
        u0 = (7 * jj) // 2; n = N[jj % 3]
        e3.wait(lg=[('kf', jj)])
        e3.I(f'v_mfma_f32_32x32x16_bf16 {vr(n,16)}, {ar(KF+8*jj)}, {vr(P+2*u0)}, 0')
        e3.I(f'v_mfma_f32_32x32x16_bf16 {vr(n,16)}, {ar(KF+8*jj+4)}, {vr(P+2*u0+4)}, {vr(n,16)}')
    num(0); num(1)
    for jj in range(8):
        n = N[jj % 3]; odd = jj & 1
        if jj + 2 < 8: num(jj + 2)
        t1, t2, fz = vT + 6, vT + 7, vT + 8
        dr = n + (0 if odd else 12)
        e3.I(f'v_add_f32 v{t1}, s{sEPS}, v{dr}'); e3.I(f'v_add_f32 v{t2}, s{sEPS}, v{dr}')
        e3.I(f'v_permlane32_swap_b32 v{t1}, v{t2}')
        d = t1 if odd else t2
        e3.I(f'v_rcp_f32 v{d}, v{d}')
        e3.I(f's_mov_b32 s{sSo}, {(jj >> 2) * 73728 + (jj & 3) * 4096}')
        e3.I(f'v_mul_f32 v{d}, v{d}, v{G}')
        m = sLoM if odd else sHiM
        e3.I(f'v_cndmask_b32_e64 v{fz}, v{d}, v{Z}, s[{m}:{m+1}]')
        padr = range(0, 4) if odd else range(12, 16)
        for r in range(16): e3.I(f'v_mul_f32 v{n+r}, v{n+r}, v{fz if r in padr else d}')
        O = vT + 12 + 8 * (jj & 1)
        for i in range(8): e3.I(f'v_cvt_pk_bf16_f32 v{O+i}, v{n+2*i}, v{n+2*i+1}')
        for j in range(2):
            e3.V(f'buffer_store_dwordx4 {vr(O+4*j)}, v{vHst}, {srd(sWS)}, s{sSo} offen offset:{j*2048} {cfg.st_flag}', 'pubO')
    stamp(e3, cfg, 7)
    e3.wait(vm_all=True); e3.I('s_barrier')
    signal(e3, 3, sRB, 't3o')
    stamp(e3, cfg, 8)
    stamp_out(e3, cfg, 0)
    e3.label('L_end1')
    e3.I('s_endpgm')
    txt = e.text() + e3.text() + zspin(cfg, 'a') + ''.join(OOL)
    print(f'phase1: nops T2 {e.nops} T3 {e3.nops}', file=sys.stderr)
    return txt

KD = '''.amdhsa_kernel {k}
  .amdhsa_next_free_vgpr 512
  .amdhsa_next_free_sgpr 102
  .amdhsa_accum_offset 256
  .amdhsa_group_segment_fixed_size 0
  .amdhsa_kernarg_size 88
  .amdhsa_user_sgpr_count 2
  .amdhsa_user_sgpr_kernarg_segment_ptr 1
  .amdhsa_system_sgpr_workgroup_id_x 1
  .amdhsa_float_denorm_mode_32 3
.end_amdhsa_kernel
'''
def build(cfg):
    k = NAME + '_kernel'
    body = gen_all(cfg, f'L_code_end-{k}-64')
    o = f'; {NAME}: generated by gen/gen.py\n'
    o += f'; @launch grid=(256,1,1) block=(256,1,1) lds={LDS_BYTES}\n'
    o += '.amdgcn_target "amdgcn-amd-amdhsa--gfx950"\n.text\n'
    o += f'.globl {k}\n.p2align 8\n.type {k},@function\n{k}:\n{body}L_code_end:\n s_endpgm\n'
    o += '.section .rodata,"a"\n.p2align 6\n' + KD.format(k=k)
    return o

if __name__ == '__main__':
    cfg = Cfg()
    out = None
    for a in sys.argv[1:]:
        if '=' in a:
            k, v = a.split('=', 1)
            cur = getattr(cfg, k)
            setattr(cfg, k, (v == '1') if isinstance(cur, bool) else type(cur)(v))
        else: out = a
    s = build(cfg)
    open(out or f'cdna_kernels/{NAME}.s', 'w').write(s)
```

```python
import re, copy

_REG = re.compile(r'^(-|abs\()?([vas])(?:\[(\d+):(\d+)\]|(\d+))\)?$')
TRANS = ('v_exp_f32', 'v_log_f32', 'v_rcp_f32', 'v_rsq_f32', 'v_sqrt_f32', 'v_sin_f32', 'v_cos_f32')

def regs_of(op):
    op = op.strip()
    if op in ('vcc', 'exec', 'm0', 'scc'):
        return {op}
    if op in ('vcc_lo', 'vcc_hi'): return {'vcc'}
    if op in ('exec_lo', 'exec_hi'): return {'exec'}
    m = _REG.match(op)
    if not m: return set()
    k = m.group(2)
    if m.group(5) is not None: return {k + m.group(5)}
    return {k + str(i) for i in range(int(m.group(3)), int(m.group(4)) + 1)}

class Ins:
    __slots__ = ('text', 'op', 'cls', 'w', 'r', 'a', 'b', 'c', 'passes', 'states', 'wide')
    def __init__(self, text):
        self.text = text
        t = text.split(';')[0].strip()
        parts = t.split(None, 1)
        op = self.op = parts[0]
        rest = parts[1] if len(parts) > 1 else ''
        ops = [o.strip() for o in rest.split(',')] if rest else []
        mods = ''
        if ops:
            l = ops[-1].split(None, 1)
            ops[-1] = l[0]; mods = l[1] if len(l) > 1 else ''
        ops = [o.split(None, 1)[0] if o else o for o in ops]
        R = [regs_of(o) for o in ops]
        allr = set().union(*R) if R else set()
        self.w = set(); self.r = set(); self.a = self.b = self.c = set(); self.passes = 0; self.states = 1; self.wide = False
        if op.startswith('v_mfma'):
            self.cls = 'mfma'; self.w = R[0]; self.a, self.b, self.c = R[1], R[2], R[3]
            self.r = R[1] | R[2] | R[3]
            self.passes = 8 if '32x32' in op else 4
        elif op.startswith('v_'):
            self.cls = 'valu'
            self.w = set(R[0]); self.r = set().union(*R[1:]) if len(R) > 1 else set()
            if op.startswith('v_permlane'): self.w = set(allr); self.r = set(allr)
            if op.startswith('v_fmac') or op.startswith('v_pk_fmac'): self.r |= R[0]
            if op.startswith('v_cndmask') and len(R) == 3: self.r |= {'vcc'}
            if op.startswith('v_cmpx'): self.w |= {'exec'}
        elif op.startswith('ds_'):
            self.cls = 'ds'
            if op.startswith('ds_read') or 'permute' in op or 'swizzle' in op:
                self.w = R[0]; self.r = set().union(*R[1:])
            else:
                self.r = allr
        elif op.startswith('buffer_') or op.startswith('global_'):
            self.cls = 'vmem'
            lds = ' lds' in (' ' + text.split(';')[0])
            if 'load' in op and not lds:
                self.w = R[0]; self.r = set().union(*R[1:])
            else:
                self.r = set(allr)
                if lds: self.r |= {'m0'}
                if 'atomic' in op and 'sc0' in mods: self.w = R[0]
                if 'store' in op and ('x4' in op or 'x3' in op):
                    self.wide = True; self.a = R[0] if op.startswith('buffer_') else R[1]
        elif op == 's_nop':
            self.cls = 'nop'; self.states = int(ops[0], 0) + 1
        elif op.startswith('s_'):
            self.cls = 'salu'
            if op.startswith(('s_cmp', 's_waitcnt', 's_barrier', 's_branch', 's_cbranch', 's_sleep', 's_setprio', 's_endpgm', 's_bitcmp')):
                self.r = allr
            else:
                self.w = set(R[0]) if R else set(); self.r = set().union(*R[1:]) if len(R) > 1 else set()
                if 'saveexec' in op: self.w |= {'exec'}
        else:
            raise ValueError('unknown instruction ' + text)

def need(p, c):
    n = 0
    isv = lambda s: {x for x in s if x[0] in 'va' and x != 'vcc'}
    iss = lambda s: {x for x in s if x[0] == 's' or x == 'vcc'}
    if p.cls == 'valu':
        pw = isv(p.w); ps = iss(p.w)
        if c.cls == 'mfma' and pw & c.r: n = max(n, 2)
        if c.cls == 'valu':
            if c.op.startswith('v_permlane') and pw & c.r: n = max(n, 2)
            if c.op.startswith(('v_readfirstlane', 'v_readlane')) and pw & c.r: n = max(n, 1)
            if 'dpp' in c.text or 'row_' in c.text or 'quad_perm' in c.text:
                if pw & c.r: n = max(n, 2)
            if p.op.startswith(TRANS) and pw & c.r: n = max(n, 1)
            if ps & c.r: n = max(n, 4 if c.op.startswith(('v_readlane', 'v_writelane')) else 2)
        if p.op.startswith(TRANS) and c.cls in ('vmem', 'ds') and pw & c.r: n = max(n, 1)
        if c.cls == 'vmem' and ps & c.r: n = max(n, 5)
        if c.cls == 'salu' and ps & c.r: n = max(n, 1)
        if 'exec' in p.w and c.cls == 'mfma': n = max(n, 4)
    elif p.cls == 'mfma':
        big = p.passes == 8
        if c.cls == 'mfma':
            if p.w & (c.a | c.b): n = max(n, 12 if big else 8)
            if p.w & c.c:
                if not (p.w == c.c and p.passes == c.passes): n = max(n, 10 if big else 6)
            elif p.w & c.w: n = max(n, 10 if big else 6) if p.w != c.w else n
        elif c.cls in ('valu', 'vmem', 'ds'):
            if p.w & (c.r | c.w): n = max(n, 12 if big else 8)
            if c.cls == 'valu' and p.c & c.w: n = max(n, 7 if big else 3)
    elif p.cls == 'salu':
        if 'm0' in p.w and 'm0' in c.r: n = max(n, 1)
    elif p.cls == 'vmem':
        if p.wide and p.a & c.w: n = max(n, 2)
    return n

class Em:
    def __init__(self):
        self.out = []; self.hist = []; self.vm = []; self.lg = []; self.nops = 0; self.n_mfma = 0
    def fork(self):
        e = Em(); e.hist = list(self.hist); e.vm = list(self.vm); e.lg = list(self.lg); return e
    def raw(self, s): self.out.append(s)
    def label(self, name): self.out.append(name + ':')
    def pad_needed(self, ins):
        d = 0; worst = 0
        for p in reversed(self.hist):
            worst = max(worst, need(p, ins) - d)
            d += p.states
            if d > 20: break
        return worst
    def I(self, text):
        ins = Ins(text)
        k = self.pad_needed(ins)
        if (k == 1 and len(self.hist) >= 2 and self.hist[-1].w == {'m0'} and 'm0' in ins.r
                and self.hist[-2].cls in ('mfma', 'valu', 'ds') and not (self.hist[-2].w & self.hist[-1].r)
                and self.out[-1] == ' ' + self.hist[-1].text and self.out[-2] == ' ' + self.hist[-2].text):
            self.out[-1], self.out[-2] = self.out[-2], self.out[-1]
            self.hist[-1], self.hist[-2] = self.hist[-2], self.hist[-1]
            k = self.pad_needed(ins)
        if k > 0:
            self.nops += k
            nop = Ins(f's_nop {k-1}'); self.out.append(' ' + nop.text); self.hist.append(nop)
        self.out.append(' ' + text); self.hist.append(ins)
        if len(self.hist) > 40: del self.hist[:-24]
        if ins.cls == 'mfma': self.n_mfma += 1
        return ins
    def many(self, block):
        for l in block.strip().split('\n'):
            l = l.strip()
            if not l or l.startswith(';'): continue
            if l.endswith(':'): self.label(l[:-1])
            else: self.I(l)
    def V(self, text, tag=None, cond=False):
        self.I(text)
        if not cond: self.vm.append(tag)
    def D(self, text, tag=None):
        self.I(text); self.lg.append(tag)
    def _cnt(self, q, tags, cap):
        idx = -1
        for i, t in enumerate(q):
            if t in tags: idx = i
        if idx < 0: return None
        n = len(q) - 1 - idx
        n = min(n, cap)
        del q[:len(q) - n]
        return n
    def wait(self, vm=(), lg=(), vm_all=False, lg_all=False):
        a = b = None
        if vm_all: a = 0; self.vm = []
        elif vm: a = self._cnt(self.vm, set(vm), 62)
        if lg_all: b = 0; self.lg = []
        elif lg: b = self._cnt(self.lg, set(lg), 14)
        s = []
        if a is not None: s.append(f'vmcnt({a})')
        if b is not None: s.append(f'lgkmcnt({b})')
        if s: self.I('s_waitcnt ' + ' '.join(s))
    def text(self): return '\n'.join(self.out) + '\n'
```

```python
import sys, copy
from emit import Em

NAME = 'gated_mix__linear_attn_block__glu_gated_reglu__prompt'
H_BYTES = 32 * 4 * 36 * 2048
KV_OFF = H_BYTES
C_OFF = KV_OFF + 16 * 4096
G_OFF = C_OFF + 16 * 32768
WS_USED = G_OFF + 2048 * 4
LOG2E = 0x3fb8aa3b
EPS = 0x358637bd
NEG_EPS_LOG2E = 0xb5c1a2c3
LDS_BYTES = 160 * 1024

class Cfg:
    LA = 4
    LK = 2
    gap = 2
    fill = 3
    fill3 = 4
    st_flag = 'sc1'
    ld_flag = ''
    ld2_flag = ''
    out_flag = ''
    rot = False
    n0 = 14
    touch = 1
    pA = 10
    sigA = 9
    vgap = 14
    opseq = 3
    LH = 6
    pollB = 2
    pollO = 3
    sigB = 2
    sigK = 5
    QM = 4
    psleep = 1
    spin = 4000
    stamps = False
    rt = False
    fine = False

sX, sQKV, sI0, sI1, sWS, sDBG, sWD, sWO, sOUT, sGW, sCODE = [28 + 4 * i for i in range(11)]
sW, sRB, sHEAD, sT3, sC, sRT, sCT, sQH = 72, 73, 74, 75, 76, 77, 78, 79
sM1K, sM4K, sSoF, sStepF, sSoKV, sT0, sT1, sT2, sRot0F = 80, 81, 82, 83, 84, 85, 86, 87, 88
sPB, sEPS, sInit = 89, 90, 91
sPadM, sLoM, sHiM = 92, 94, 96
sM2K, sSo = 98, 99
sKx, sKkv, sEndF = 26, 27, 3
sPoll, sSoH = 10, 11
sSigR, sSigK, sSoW, sDW2 = 68, 69, 70, 71
def srd(b): return f's[{b}:{b+3}]'

vL, vL16, vL4, vD0, vD1, vD2, vHst, vAK, vAV, vNEGC, vONES, vDbg, vScW, vScR, vAG, vDG = range(1, 17)
vAX = [17, 18, 19, 20]
vAF = [[21 + 4 * w + t for t in range(4)] for w in range(3)]
vFl = 33
vT = 36
vDW0, vDW1, vH0, vH1, vG0, vG1, vOut, vWr, vPoll = range(60, 69)
vA2 = [[69, 70], [71, 72], [73, 74]]
vRd = [75, 76, 77]
vTch, vPA, vPO = 78, 79, 80
vDX = [81, 82, 83, 84]
aK, aV, aA, aB = 96, 112, 128, 192
aFR = 224
XB, KVB, FB = 0, 48 * 1024, 80 * 1024
GW_LDS = XB + 16384
def hreg(sq): return 112 + 8 * sq if sq < 14 else (8 * (sq - 14) if sq < 28 else 112 + 8 * (sq - 28))

def vr(b, n=4): return f'v[{b}:{b+n-1}]'
def ar(b, n=4): return f'a[{b}:{b+n-1}]'

def mk_srd(e, b, lo, size):
    e.I(f's_mov_b32 s{b}, s{lo}'); e.I(f's_mov_b32 s{b+1}, s{lo+1}')
    e.I(f's_mov_b32 s{b+2}, {size}'); e.I(f's_mov_b32 s{b+3}, 0x20000')

def stamp(e, cfg, i):
    if cfg.stamps:
        e.wait(lg_all=True)
        e.I(('s_memrealtime' if cfg.rt else 's_memtime') + ' s[100:101]'); e.I('s_waitcnt lgkmcnt(0)')
        e.I(f'v_writelane_b32 v35, s100, {i}')

def stamp_out(e, cfg):
    if not cfg.stamps: return
    if cfg.rt:
        e.many(f'''
        s_memtime s[100:101]
        v_readlane_b32 s{sT0}, v35, 14
        s_waitcnt lgkmcnt(0)
        s_sub_u32 s{sT0}, s100, s{sT0}
        s_lshr_b32 s{sT0}, s{sT0}, 4
        v_writelane_b32 v35, s{sT0}, 14
        s_memrealtime s[100:101]
        v_readlane_b32 s{sT0}, v35, 0
        s_waitcnt lgkmcnt(0)
        s_sub_u32 s{sT0}, s100, s{sT0}
        v_writelane_b32 v35, s{sT0}, 15
        ''')
    e.many(f'''
    s_lshl_b32 s{sT0}, s2, 2
    s_add_u32 s{sT0}, s{sT0}, s{sW}
    s_lshl_b32 s{sT0}, s{sT0}, 8
    s_add_u32 s{sT0}, s{sT0}, {WS_USED}
    ''')
    e.V(f'buffer_store_dword v35, v{vL4}, {srd(sWS)}, s{sT0} offen', 'st')

class Pool:
    def __init__(self): self.free = []
    def add(self, addr): assert addr not in self.free; self.free.append(addr)
    def take(self, keep=0):
        if len(self.free) <= keep: return None
        return self.free.pop(0)

class St:
    def __init__(self, cfg):
        self.cfg = cfg
        self.pool = Pool()
        for i in range(10): self.pool.add(FB + 8192 * i)
        self.fblk = {}; self.w2blk = {}
        q = []
        for s in range(7):
            q += [('x', s, 0), ('x', s, 1), ('x', s, 2), ('x', s, 3)]
            q += [('f', 0, p, i) for p in (2 * s, 2 * s + 1) for i in (0, 1)]
        for p in range(14): q += [('kv', p), ('f', 1, p, 0), ('f', 1, p, 1)]
        self.q = q; self.qw = []; self.qh = []
        self.epoch = -1; self.x_done = -1; self.since = 99
        self.h_ok = -1
        self.cnt = {}; self.signalled = set()
        self.t3 = False; self.flip = 0
        self.pre_barrier = self.post_barrier = None
    def clone(self):
        s = copy.copy(self); s.pool = copy.deepcopy(self.pool); s.fblk = dict(self.fblk); s.w2blk = {}
        s.q = list(self.q); s.qw = []; s.qh = []; s.cnt = dict(self.cnt); s.signalled = set(self.signalled)
        return s
    def ep_of(self, ps, ks): return 7 * ps + ks // 4
    def dep(self, d): return d[1] if d[0] == 'x' else (7 + d[1] // 2 if d[0] == 'kv' else self.ep_of(d[1], 2 * d[2]))
    def free_epoch(self, ps, pair): return self.ep_of(ps, 2 * pair) + (2 if pair & 1 else 1)
    def demand(self, e):
        if not self.q: return False
        cfg = self.cfg; d = self.q[0]
        if self.dep(d) > max(self.epoch, 0) + cfg.LK: return False
        if d[0] == 'x':
            _, s, j = d
            if s >= 3 and self.x_done < s - 3: return False
            base = XB + (s % 3) * 16384 + j * 1024
            if cfg.rot:
                e.I(f's_add_u32 m0, s{sM4K}, {base}')
                if j == 0 and s > 0:
                    e.I(f's_add_u32 s{sKx}, s{sKx}, 128'); e.I(f's_cmp_eq_u32 s{sKx}, 896'); e.I(f's_cselect_b32 s{sKx}, 0, s{sKx}')
                e.V(f'buffer_load_dwordx4 v{vDX[j]}, {srd(sX)}, s{sKx} offen {cfg.ld_flag} lds', ('ep', s))
            elif base >= s * 128:
                e.I(f's_add_u32 m0, s{sM4K}, {base - s * 128}')
                e.V(f'buffer_load_dwordx4 v{vDX[j]}, {srd(sX)}, 0 offen offset:{s * 128} {cfg.ld_flag} lds', ('ep', s))
            else:
                e.I(f's_add_u32 m0, s{sM4K}, {base}'); e.I(f's_movk_i32 s{sSo}, {s * 128}')
                e.V(f'buffer_load_dwordx4 v{vDX[j]}, {srd(sX)}, s{sSo} offen {cfg.ld_flag} lds', ('ep', s))
        elif d[0] == 'kv':
            p = d[1]
            if p >= 8 and self.free_epoch(1, p - 8) > self.epoch: return False
            e.I(f's_add_u32 m0, s{sM1K}, {KVB + (p % 8) * 4096}')
            if p > 0: e.I(f's_add_u32 s{sKkv}, s{sKkv}, {32 * 2688}')
            if cfg.rot and p > 0 and p % 2 == 0:
                e.I(f's_cmp_eq_u32 s{sKkv}, {448 * 2688}'); e.I(f's_cselect_b32 s{sKkv}, 0, s{sKkv}')
            e.V(f'buffer_load_dwordx4 v{vD2}, {srd(sQKV)}, s{sKkv} offen {cfg.ld_flag} lds', ('ep', self.dep(d)))
        else:
            _, ps, p, img = d
            if img == 0:
                a = self.pool.take()
                if a is None: return False
                self.fblk[(ps, p)] = a
            a = self.fblk[(ps, p)]
            e.I(f's_add_u32 m0, s{sM1K}, {a + img * 4096}')
            if img == 0:
                if p == 0:
                    e.I(f's_mov_b32 s{sSoF}, s{sRot0F}')
                    if ps == 1:
                        e.I(f'v_add_u32 v{vD0}, s{sPB}, v{vD0}'); e.I(f'v_add_u32 v{vD1}, s{sPB}, v{vD1}')
                else:
                    e.I(f's_add_u32 s{sSoF}, s{sSoF}, s{sStepF}')
                    if cfg.rot and p % 2 == 0:
                        e.I(f's_cmp_eq_u32 s{sSoF}, s{sEndF}'); e.I(f's_cselect_b32 s{sSoF}, 0, s{sSoF}')
            e.V(f'buffer_load_dwordx4 v{vD0 + img}, {srd(sI0 + 4 * img)}, s{sSoF} offen {cfg.ld_flag} lds', ('ep', self.dep(d)))
        self.q.pop(0)
        return True
    def w2(self, e):
        if not self.qw: return False
        sq, part = self.qw[0]
        if part == 0:
            left = sum(1 for d in self.q if d[0] == 'f' and d[3] == 0)
            a = self.pool.take(keep=min(left, 2))
            if a is None: return False
            self.w2blk[sq] = a
        a = self.w2blk[sq]
        e.I(f's_add_u32 m0, s{sM2K}, {a + part * 1024}')
        if sq < 28:
            p, s2 = divmod(sq, 14); row = 256 * (s2 >> 1) + 16 * (s2 & 1) + 64 * p; sr = sWD
        else:
            hh, j = divmod(sq - 28, 2); row = 28 * hh - 4 * (hh & 1) + 16 * j; sr = sWO
        if part == 0:
            if sq == 28:
                e.I(f'v_add_u32 v{vDW0}, s{sDW2}, v{vDW0}'); e.I(f'v_add_u32 v{vDW1}, s{sDW2}, v{vDW1}')
            e.I(f's_mov_b32 s{sSoW}, {row * 896}')
        e.V(f'buffer_load_dwordx4 v{vDW0 + part}, {srd(sr)}, s{sSoW} offen {self.cfg.ld2_flag} lds', ('W', sq))
        self.qw.pop(0)
        return True
    def h(self, e):
        if not self.qh or self.qh[0][0] > self.h_ok: return False
        sq, b = self.qh.pop(0)
        if b == 0 and sq % 2 == 0: e.I(f's_mov_b32 s{sSoH}, {sq * 2048}')
        e.V(f'buffer_load_dwordx4 {ar(hreg(sq)+4*b)}, v{vH0+b}, {srd(sWS)}, s{sSoH} offen offset:{(sq & 1) * 2048} sc1', ('H', sq))
        return True
    def mem(self, e):
        if self.demand(e): return True
        wn = self.qw[0][0] if self.qw else 99; hn = self.qh[0][0] if self.qh else 99
        order = (self.w2, self.h) if wn <= hn + 1 else (self.h, self.w2)
        return order[0](e) or order[1](e)
    def on_epoch(self, ep):
        self.epoch = ep
        for (ps, p), a in self.fblk.items():
            if self.free_epoch(ps, p) == ep: self.pool.add(a)
        if ep == 5: self.pool.add(XB + 16384 + 8192)
        if ep == 6: self.pool.add(XB + 32768); self.pool.add(XB + 32768 + 8192)
        if ep == 7: self.pool.add(XB); self.pool.add(XB + 8192)
        if ep == 8 and not self.t3: self.pool.add(GW_LDS)
    def pub(self, e, text, tag):
        e.V(text, tag); self.cnt[tag] = self.cnt.get(tag, 0) + 1; self.since = 0
    def try_signal(self, e, tag, n, force=False):
        if tag in self.signalled or self.cnt.get(tag, 0) < n: return
        if force: e.wait(vm=[tag])
        if tag in e.vm: return
        kind = {'K': 0, 'A': 1, 'B': 2, 'O': 3}[tag]
        e.V(f'buffer_store_dword v{vONES}, v{vFl}, {srd(sWS)}, s{sSigK if kind == 0 else sSigR} offen offset:{kind*128} sc1', 'sig')
        self.signalled.add(tag)
        print(f'  signal {tag} at epoch {self.epoch} mfma {e.n_mfma}', file=sys.stderr)

def steps_A(): return [(0, ks, t) for ks in range(28) for t in (0, 1, 2, 3)]
def steps_B(t3): return [(1, ks, t) for ks in range(28) for t in ('k', 'v', 0, 1, 2, 'g' if t3 else 3)]

def issue_read(e, st, n, step):
    cfg = st.cfg
    ps, ks, t = step
    ep = st.ep_of(ps, ks)
    if ep != st.epoch:
        if st.pre_barrier: st.pre_barrier(e, ep)
        for d in st.q: assert st.dep(d) > ep, ('DMA not issued in time', d, ep)
        e.wait(vm=[('ep', ep)])
        e.I('s_barrier')
        st.on_epoch(ep)
        if cfg.fine and ep > 0: stamp(e, cfg, 50 + ep)
        if st.post_barrier: st.post_barrier(e, ep)
    if ps == 0 and ks % 4 == 0:
        e.D(f'ds_read_b128 {ar(4*(ks+t))}, v{vAX[t]} offset:{XB + (ep % 3) * 16384}', ('x', ks + t))
    fr = aFR + 4 * (n % 8)
    if t == 'g':
        e.D(f'ds_read_b128 {ar(fr)}, v{vAG} offset:{ks * 32}', ('w', n)); return
    if t in ('k', 'v'):
        reg = vAK if t == 'k' else vAV
        off = ((ks // 2) % 8) * 4096 + (ks & 1) * 2048
    else:
        a = st.fblk[(ps, ks // 2)]
        reg = vAF[a >> 16][t]; off = (a & 0xffff) + (ks & 1) * 2048
    e.D(f'ds_read_b64_tr_b16 {ar(fr,2)}, v{reg} offset:{off}', ('w', n))
    e.D(f'ds_read_b64_tr_b16 {ar(fr+2,2)}, v{reg} offset:{off+512}', ('w', n))

def issue_mfma(e, st, n, step):
    ps, ks, t = step
    fr = ar(aFR + 4 * (n % 8))
    e.wait(lg=[('w', n), ('w', n | 1), ('x', ks)])
    if ps == 0 and ks % 4 == 1: st.x_done = ks // 4
    x = ar(4 * ks)
    if t == 'k': e.I(f'v_mfma_f32_32x32x16_bf16 {vr(aK,16)}, {x}, {fr}, {vr(aK,16)}')
    elif t == 'v': e.I(f'v_mfma_f32_32x32x16_bf16 {vr(aV,16)}, {x}, {fr}, ' + ('0' if ks == 0 else vr(aV, 16)))
    else:
        acc = vr((aA if ps == 0 else aB) + 16 * (3 if t == 'g' else t), 16)
        e.I(f'v_mfma_f32_32x32x16_bf16 {acc}, {fr}, {x}, ' + ('0' if ks == 0 and t == 'g' else acc))

def run_steps(e, st, steps, lo, hi, fillers=None, fill=0):
    cfg = st.cfg
    for n in range(lo, hi):
        if n + cfg.LA < len(steps): issue_read(e, st, n + cfg.LA, steps[n + cfg.LA])
        issue_mfma(e, st, n, steps[n])
        st.since += 1
        if fillers and fillers[0][0] == 'm' and st.since >= cfg.gap:
            fillers.pop(0)[1](e); continue
        if st.since >= cfg.gap and st.mem(e):
            st.since = 0; budget = fill - 3
        else: budget = fill
        while fillers and budget > 0 and fillers[0][0] == 'i':
            f = fillers.pop(0); f[1](e); budget -= f[2]

def run_valu(e, st, fillers):
    k = 0
    for f in fillers:
        f[1](e)
        if f[0] == 'm': k = 0; continue
        k += f[2]
        if k >= st.cfg.vgap and st.mem(e): k = 0
    fillers.clear()

def fI(text, cost=1): return ('i', lambda e: e.I(text), cost)
def fF(fn, cost=1): return ('i', fn, cost)
def fM(fn): return ('m', fn, 3)

def phi_fill(acc, n, tmp):
    L = []
    for r0 in range(0, n, 4):
        for i in range(4): L.append(fI(f'v_fmamk_f32 v{tmp+i}, v{acc+r0+i}, {LOG2E:#x}, v{vNEGC}'))
        for i in range(4):
            L.append(fI(f'v_exp_f32_e64 v{tmp+i}, v{tmp+i} clamp', 2))
            L.append(fI(f'v_max_f32 v{acc+r0+i}, s{sEPS}, v{acc+r0+i}'))
        for i in range(4): L.append(fI(f'v_add_f32 v{acc+r0+i}, v{acc+r0+i}, v{tmp+i}'))
    return L

def kv_fill(st, cover1=(), cover2=()):
    pk, pv, tmp = vT, vT + 8, vT + 16
    L = phi_fill(aK, 16, tmp)
    for i in range(8): L.append(fI(f'v_cvt_pk_bf16_f32 v{pv+i}, v{aV+2*i}, v{aV+2*i+1}'))
    for i in range(8): L.append(fI(f'v_cndmask_b32_e64 v{pv+i}, v{pv+i}, v{vONES}, s[{sPadM}:{sPadM+1}]'))
    for i in range(8): L.append(fI(f'v_cvt_pk_bf16_f32 v{pk+i}, v{aK+2*i}, v{aK+2*i+1}'))
    L.append(fI(f'v_mfma_f32_32x32x16_bf16 {vr(aV,16)}, {vr(pk)}, {vr(pv)}, 0', 2))
    L.append(fI(f'v_mfma_f32_32x32x16_bf16 {vr(aV,16)}, {vr(pk+4)}, {vr(pv+4)}, {vr(aV,16)}', 2))
    L += list(cover1)
    for q in range(4):
        L.append(fF(lambda e, q=q: e.D(f'ds_write_b128 v{vScW}, {vr(aV+4*q)} offset:{q*1024}', 'scw'), 2))
    L2 = []
    for p in range(4):
        for i in (0, 2):
            o = ((6 + p) & 7) * 16 + i
            L2.append(fF(lambda e, p=p, i=i, o=o: e.D(f'ds_read2st64_b32 {vr(aK+4*p+i,2)}, v{vScR} offset0:{o} offset1:{o+1}', 'scr')))
    L2 += list(cover2)
    L2.append(fF(lambda e: e.wait(lg=['scr']), 1))
    for i in range(4): L2.append(fI(f'v_add_f32 v{aK+i}, v{aK+i}, v{aK+4+i}'))
    for i in range(4): L2.append(fI(f'v_add_f32 v{aK+8+i}, v{aK+8+i}, v{aK+12+i}'))
    for i in range(4): L2.append(fI(f'v_add_f32 v{aK+i}, v{aK+i}, v{aK+8+i}'))
    for i in range(4):
        L2.append(fM(lambda e, i=i: st.pub(e, f'buffer_atomic_add_f32 v{aK+i}, v{vL4}, {srd(sWS)}, s{sSoKV} offen offset:{i*256}', 'K')))
    return L, L2

def f_fill(st, acc, i, ps):
    L = []
    for r in range(8): L.append(fI(f'v_max_f32 v{acc+r}, 0, v{acc+r}'))
    for r in range(8): L.append(fI(f'v_mul_f32 v{acc+r}, v{acc+r}, v{acc+8+r}'))
    for r in range(4): L.append(fI(f'v_cvt_pk_bf16_f32 v{acc+8+r}, v{acc+2*r}, v{acc+2*r+1}'))
    def st_(e):
        e.I(f's_mov_b32 s{sSo}, {(i >> 1) * 147456 + ps * 28672}')
        st.pub(e, f'buffer_store_dwordx4 {vr(acc+8)}, v{vHst}, {srd(sWS)}, s{sSo} offen offset:{(i & 1) * 2048} {st.cfg.st_flag}', 'AB'[ps])
    L.append(fM(st_))
    return L

OOL = []
def spin_check(e, cfg, name, loads, regs, pre=''):
    def test():
        t = [f'v_min_u32 v{regs[0]}, v{regs[0]}, v{r}' for r in regs[1:]]
        return t + [f'v_cmp_ne_u32 vcc, 0, v{regs[0]}']
    for t in test(): e.I(t)
    e.I('s_cmp_eq_u64 vcc, -1')
    e.I(f's_cbranch_scc0 L_spin_{name}')
    e.label(f'L_ok_{name}')
    OOL.append(f'L_spin_{name}:\n s_mov_b32 s{sT0}, 0\nL_spin2_{name}:\n s_sleep {cfg.psleep}\n{pre}'
               + ''.join(f' {l}\n' for l in loads)
               + f' s_add_u32 s{sT0}, s{sT0}, 1\n s_waitcnt vmcnt(0)\n' + ''.join(f' {t}\n' for t in test())
               + f' s_nop 1\n s_cmp_eq_u64 vcc, -1\n s_cbranch_scc1 L_ok_{name}\n s_cmp_lt_u32 s{sT0}, {cfg.spin}\n'
               + f' s_cbranch_scc1 L_spin2_{name}\n s_branch L_ok_{name}\n')
def poll_txt(kind):
    return f'buffer_load_dword v{vPoll}, v{vPO if kind == 3 else vPA}, {srd(sWS)}, s{sPoll} offen offset:{kind*128} sc1'
def poll_issue(e, kind): e.V(poll_txt(kind), ('poll', kind))
def poll_check(e, cfg, kind):
    e.wait(vm=[('poll', kind)])
    spin_check(e, cfg, f'p{kind}', [poll_txt(kind)], [vPoll])

def prologue1(e, cfg, code_bytes):
    t = [vT + 2 + i for i in range(10)]
    e.many(f'''
    s_cmp_ge_u32 s2, 256
    s_cbranch_scc1 L_end
    s_load_dwordx16 s[4:19], s[0:1], 0
    s_load_dwordx4 s[20:23], s[0:1], 64
    s_load_dwordx2 s[24:25], s[0:1], 80
    s_getpc_b64 s[{sCODE}:{sCODE+1}]
    s_mov_b32 s{sCODE+2}, {code_bytes}
    s_mov_b32 s{sCODE+3}, 0x20000
    v_lshlrev_b32 v{vT}, 7, v0
    ''')
    e.V(f'buffer_load_dword v{vT+1}, v{vT}, {srd(sCODE)}, 0 offen', 'code')
    e.many(f'''
    v_and_b32 v{vL}, 63, v0
    v_lshrrev_b32 v{t[0]}, 6, v0
    v_lshlrev_b32 v{vL16}, 4, v{vL}
    v_readfirstlane_b32 s{sW}, v{t[0]}
    v_lshlrev_b32 v{vL4}, 2, v{vL}
    s_lshr_b32 s{sT0}, s2, 3
    s_and_b32 s{sT1}, s{sT0}, 7
    s_lshr_b32 s{sT2}, s{sT0}, 3
    s_and_b32 s{sRB}, s2, 4
    s_lshl_b32 s{sRB}, s{sRB}, 1
    s_add_u32 s{sRB}, s{sRB}, s{sT1}
    s_and_b32 s{sHEAD}, s2, 3
    s_lshr_b32 s{sQH}, s{sHEAD}, 1
    s_lshl_b32 s{sHEAD}, s{sHEAD}, 2
    s_add_u32 s{sHEAD}, s{sHEAD}, s{sT2}
    s_xor_b32 s{sT3}, s{sT1}, s2
    s_and_b32 s{sT3}, s{sT3}, 1
    s_and_b32 s{sC}, s2, 1
    s_lshl_b32 s{sC}, s{sC}, 2
    s_add_u32 s{sC}, s{sC}, s{sT2}
    s_lshr_b32 s{sT1}, s{sT1}, 1
    s_add_u32 s{sT1}, s{sT1}, 24
    s_cmp_eq_u32 s{sT2}, 3
    s_cselect_b32 s{sT3}, s{sT3}, 0
    s_cselect_b32 s{sC}, 3, s{sC}
    s_cselect_b32 s{sT0}, s{sT1}, s{sT0}
    s_mul_i32 s{sT1}, s{sQH}, 7
    s_add_u32 s{sC}, s{sC}, s{sT1}
    s_and_b32 s{sRT}, s2, 7
    s_lshl_b32 s{sRT}, s{sRT}, 2
    s_and_b32 s{sT1}, s{sT0}, 3
    s_add_u32 s{sRT}, s{sRT}, s{sT1}
    s_lshr_b32 s{sCT}, s{sT0}, 2
    s_lshl_b32 s{sM1K}, s{sW}, 10
    s_lshl_b32 s{sM2K}, s{sW}, 11
    s_lshl_b32 s{sM4K}, s{sW}, 12
    v_lshrrev_b32 v{t[0]}, 3, v{vL}
    v_and_b32 v{t[1]}, 7, v{vL}
    v_bfe_u32 v{t[2]}, v{vL}, 4, 1
    v_lshlrev_b32 v{t[2]}, 2, v{t[2]}
    v_xor_b32 v{t[2]}, v{t[2]}, v{t[1]}
    s_lshl_b32 s{sT0}, s{sW}, 3
    v_add_u32 v{t[3]}, s{sT0}, v{t[0]}
    ; x
    s_lshl_b32 s{sT0}, s{sRB}, 2
    s_add_u32 s{sT0}, s{sT0}, s{sW}
    s_mul_i32 s{sT0}, s{sT0}, {32*896}
    v_xor_b32 v{t[4]}, v{t[1]}, v{t[0]}
    v_lshlrev_b32 v{t[4]}, 4, v{t[4]}
    v_mul_u32_u24 v{vDX[0]}, 896, v{t[0]}
    v_add3_u32 v{vDX[0]}, v{vDX[0]}, v{t[4]}, s{sT0}
    v_add_u32 v{vDX[1]}, 7168, v{vDX[0]}
    v_add_u32 v{vDX[2]}, {2*7168}, v{vDX[0]}
    v_add_u32 v{vDX[3]}, {3*7168}, v{vDX[0]}
    ; kv window
    s_mul_i32 s{sT0}, s{sHEAD}, 56
    s_and_b32 s{sT0}, s{sT0}, -16
    s_add_u32 s{sT0}, s{sT0}, 896
    v_lshrrev_b32 v{t[4]}, 2, v{t[2]}
    v_mul_u32_u24 v{t[4]}, 832, v{t[4]}
    v_lshl_add_u32 v{t[4]}, v{t[2]}, 4, v{t[4]}
    v_mul_u32_u24 v{vD2}, 2688, v{t[3]}
    v_add3_u32 v{vD2}, v{vD2}, v{t[4]}, s{sT0}
    ; I0 / I1
    s_lshl_b32 s{sT0}, s{sC}, 8
    s_mul_i32 s{sT1}, s{sQH}, 448
    s_add_u32 s{sT2}, s{sT1}, 128
    s_cmp_eq_u32 s{sT3}, 1
    s_cselect_b32 s{sT2}, s{sT2}, s{sT0}
    s_cselect_b32 s{sT1}, s{sT1}, s{sT0}
    s_movk_i32 s{sT0}, 3584
    s_cselect_b32 s{sT0}, 2688, s{sT0}
    s_movk_i32 s{sPB}, 128
    s_cselect_b32 s{sPB}, 256, s{sPB}
    s_cselect_b32 s{sInit}, {EPS:#x}, 0
    s_lshl_b32 s{sStepF}, s{sT0}, 5
    v_mul_u32_u24 v{t[3]}, s{sT0}, v{t[3]}
    v_lshl_add_u32 v{vD0}, v{t[2]}, 4, v{t[3]}
    v_xor_b32 v{t[4]}, 2, v{t[2]}
    v_lshl_add_u32 v{vD1}, v{t[4]}, 4, v{t[3]}
    v_add_u32 v{vD0}, s{sT1}, v{vD0}
    v_add_u32 v{vD1}, s{sT2}, v{vD1}
    ''')
    if cfg.rot:
        e.many(f'''
        s_bfe_u32 s{sT0}, s2, 0x30003
        s_lshr_b32 s{sT1}, s2, 6
        s_lshl_b32 s{sT1}, s{sT1}, 1
        s_add_u32 s{sT0}, s{sT0}, s{sT1}
        s_and_b32 s{sT1}, s2, 3
        s_add_u32 s{sT0}, s{sT0}, s{sT1}
        s_mul_i32 s{sT1}, s{sT0}, 37
        s_lshr_b32 s{sT1}, s{sT1}, 8
        s_mul_i32 s{sT1}, s{sT1}, 7
        s_sub_u32 s{sT0}, s{sT0}, s{sT1}
        s_lshl_b32 s{sKx}, s{sT0}, 7
        s_mul_i32 s{sKkv}, s{sT0}, {64 * 2688}
        s_mul_i32 s{sRot0F}, s{sT0}, s{sStepF}
        s_lshl_b32 s{sRot0F}, s{sRot0F}, 1
        s_mul_i32 s{sEndF}, s{sStepF}, 14
        v_add_u32 v{vDG}, s{sKx}, v{vL16}
        v_subrev_u32 v{t[4]}, 896, v{vDG}
        v_min_u32 v{vDG}, v{vDG}, v{t[4]}
        ''')
    else:
        e.many(f's_mov_b32 s{sKkv}, 0\ns_mov_b32 s{sRot0F}, 0\nv_mov_b32 v{vDG}, v{vL16}')
    e.many(f'''
    s_mov_b32 s{sX+2}, {2048*896}
    s_mov_b32 s{sX+3}, 0x20000
    s_mov_b32 s{sI0+3}, 0x20000
    s_mov_b32 s{sI1+3}, 0x20000
    s_cmp_eq_u32 s{sT3}, 1
    s_mov_b32 s{sI0+2}, {448*3584}
    s_cselect_b32 s{sI0+2}, {448*2688}, s{sI0+2}
    s_mov_b32 s{sI1+2}, s{sI0+2}
    s_waitcnt lgkmcnt(0)
    s_mov_b32 s{sX}, s4
    s_mov_b32 s{sX+1}, s5
    s_cselect_b32 s{sI0}, s6, s12
    s_cselect_b32 s{sI0+1}, s7, s13
    s_cselect_b32 s{sI1}, s6, s14
    s_cselect_b32 s{sI1+1}, s7, s15
    ''')

def prologue1b(e, cfg):
    t = [vT + 2 + i for i in range(10)]
    mk_srd(e, sQKV, 6, 448 * 2688)
    mk_srd(e, sWS, 24, WS_USED + (1 << 20 if cfg.stamps else 0))
    mk_srd(e, sDBG, 22, 256)
    mk_srd(e, sGW, 18, 896)
    e.many(f'''
    s_lshl_b32 s{sSoKV}, s{sHEAD}, 12
    s_add_u32 s{sSoKV}, s{sSoKV}, s{sM1K}
    s_add_u32 s{sSoKV}, s{sSoKV}, {KV_OFF}
    s_cmp_eq_u32 s{sRB}, 0
    s_cbranch_scc0 L_nozero
    v_mov_b32 v{vT+12}, 0
    v_mov_b32 v{vT+13}, 0
    v_mov_b32 v{vT+14}, 0
    v_mov_b32 v{vT+15}, 0
    s_lshl_b32 s{sT0}, s{sHEAD}, 15
    s_add_u32 s{sT0}, s{sT0}, {C_OFF}
    ''')
    e.V(f'buffer_store_dwordx4 {vr(vT+12)}, v{vL16}, {srd(sWS)}, s{sSoKV} offen sc1', cond=True)
    e.V(f'buffer_store_dword v{vT+12}, v{vT}, {srd(sWS)}, s{sT0} offen sc1', cond=True)
    e.label('L_nozero')
    e.many(f'''
    v_lshrrev_b32 v{t[1]}, 5, v{vL}
    v_bfe_u32 v{t[2]}, v{vL}, 2, 2
    v_lshl_add_u32 v{t[0]}, v{t[1]}, 3, v{t[2]}
    v_lshlrev_b32 v{t[0]}, 7, v{t[0]}
    v_and_b32 v{t[2]}, 3, v{vL}
    v_lshl_add_u32 v{t[0]}, v{t[2]}, 3, v{t[0]}
    v_bfe_u32 v{t[2]}, v{vL}, 3, 1
    v_lshl_add_u32 v{t[0]}, v{t[2]}, 6, v{t[0]}
    v_bfe_u32 v{t[2]}, v{vL}, 4, 1
    v_lshl_add_u32 v{t[0]}, v{t[2]}, 5, v{t[0]}
    v_add_u32 v{vAK}, {KVB}, v{t[0]}
    v_xor_b32 v{vAV}, 64, v{vAK}
    s_cmp_eq_u32 s{sT3}, 1
    s_cselect_b32 s{sT0}, 0, 4096
    v_mad_u32_u24 v{vAF[0][0]}, v{t[2]}, s{sT0}, v{t[0]}
    s_cselect_b32 s{sT0}, 64, 32
    s_cselect_b32 s{sT1}, {4096+32}, 64
    s_movk_i32 s{sT2}, 96
    s_cselect_b32 s{sT2}, {4096+96}, s{sT2}
    v_xor_b32 v{vAF[0][1]}, s{sT0}, v{vAF[0][0]}
    v_xor_b32 v{vAF[0][2]}, s{sT1}, v{vAF[0][0]}
    v_xor_b32 v{vAF[0][3]}, s{sT2}, v{vAF[0][0]}
    ''')
    for w in (1, 2):
        for q in range(4): e.I(f'v_add_u32 v{vAF[w][q]}, {65536*w}, v{vAF[0][q]}')
    e.many(f'''
    v_and_b32 v{t[2]}, 7, v{vL}
    v_xor_b32 v{t[2]}, v{t[2]}, v{t[1]}
    v_and_b32 v{t[3]}, 31, v{vL}
    v_lshlrev_b32 v{t[4]}, 7, v{t[3]}
    v_lshl_add_u32 v{t[4]}, v{t[2]}, 4, v{t[4]}
    v_add_u32 v{vAX[0]}, s{sM4K}, v{t[4]}
    v_xor_b32 v{vAX[1]}, 32, v{vAX[0]}
    v_xor_b32 v{vAX[2]}, 64, v{vAX[0]}
    v_xor_b32 v{vAX[3]}, 96, v{vAX[0]}
    ''')
    for r in range(64): e.I(f'v_mov_b32 v{aA+r}, s{sInit}')

def prologue1c(cfg):
    t = [vT + 2 + i for i in range(10)]
    txt = f'''
    v_lshrrev_b32 v{t[1]}, 5, v{vL}
    v_lshlrev_b32 v{vAG}, 4, v{t[1]}
    v_add_u32 v{vAG}, {GW_LDS}, v{vAG}
    v_and_b32 v{vFl}, 124, v{vL4}
    s_and_b32 s{sT0}, s{sHEAD}, 1
    s_xor_b32 s{sT0}, s{sT0}, 1
    s_mul_i32 s{sT0}, s{sT0}, 28
    s_lshl_b32 s{sPadM}, 15, s{sT0}
    s_mov_b32 s{sPadM+1}, s{sPadM}
    s_mov_b32 s{sLoM}, -1
    s_mov_b32 s{sLoM+1}, 0
    s_mov_b32 s{sHiM}, 0
    s_mov_b32 s{sHiM+1}, -1
    s_mov_b32 s{sEPS}, {EPS:#x}
    v_mov_b32 v{vNEGC}, {NEG_EPS_LOG2E:#x}
    v_mov_b32 v{vONES}, 0x3f803f80
    s_add_u32 s{sT0}, s{sW}, 6
    s_and_b32 s{sT0}, s{sT0}, 7
    s_lshl_b32 s{sT0}, s{sT0}, 12
    s_add_u32 s{sT0}, s{sT0}, {KVB}
    v_add_u32 v{vScW}, s{sT0}, v{vL16}
    s_add_u32 s{sT0}, s{sM1K}, {KVB}
    v_add_u32 v{vScR}, s{sT0}, v{vL4}
    s_lshr_b32 s{sT0}, s{sW}, 1
    s_lshl_b32 s{sT1}, s{sRB}, 1
    s_add_u32 s{sT0}, s{sT0}, s{sT1}
    s_mul_i32 s{sT0}, s{sT0}, 144
    s_mul_i32 s{sT1}, s{sQH}, 72
    s_add_u32 s{sT1}, s{sT1}, 28
    s_and_b32 s{sT2}, s{sC}, 1
    s_mul_i32 s{sT2}, s{sT2}, 35
    s_add_u32 s{sT2}, s{sT2}, s{sC}
    s_sub_u32 s{sT1}, s{sT1}, s{sT2}
    s_mul_i32 s{sT1}, s{sT1}, s{sT3}
    s_add_u32 s{sT1}, s{sT1}, s{sT2}
    s_add_u32 s{sT0}, s{sT0}, s{sT1}
    s_lshl_b32 s{sT0}, s{sT0}, 1
    s_and_b32 s{sT1}, s{sW}, 1
    s_add_u32 s{sT0}, s{sT0}, s{sT1}
    s_lshl_b32 s{sT0}, s{sT0}, 10
    v_add_u32 v{vHst}, s{sT0}, v{vL16}
    s_sub_u32 s{sT0}, s{sQH}, s{sC}
    s_mul_i32 s{sT0}, s{sT0}, s{sT3}
    s_add_u32 s{sT0}, s{sT0}, s{sC}
    s_lshl_b32 s{sT1}, s{sRB}, 4
    s_add_u32 s{sT0}, s{sT0}, s{sT1}
    s_lshl_b32 s{sT0}, s{sT0}, 2
    s_add_u32 s{sT0}, s{sT0}, s{sW}
    s_lshl_b32 s{sT0}, s{sT0}, 9
    s_add_u32 s{sSigR}, s{sT0}, {C_OFF}
    s_lshl_b32 s{sT0}, s{sHEAD}, 4
    s_add_u32 s{sT0}, s{sT0}, s{sRB}
    s_lshl_b32 s{sT0}, s{sT0}, 2
    s_add_u32 s{sT0}, s{sT0}, s{sW}
    s_lshl_b32 s{sT0}, s{sT0}, 9
    s_add_u32 s{sSigK}, s{sT0}, {C_OFF}
    s_mov_b32 s{sWD}, s16
    s_mov_b32 s{sWD+1}, s17
    s_mov_b32 s{sWD+2}, {1792*896}
    s_mov_b32 s{sWD+3}, 0x20000
    s_mov_b32 s{sWO}, s8
    s_mov_b32 s{sWO+1}, s9
    s_mov_b32 s{sWO+2}, {448*896}
    s_mov_b32 s{sWO+3}, 0x20000
    s_mov_b32 s{sOUT}, s20
    s_mov_b32 s{sOUT+1}, s21
    s_mov_b32 s{sOUT+2}, {2048*896}
    s_mov_b32 s{sOUT+3}, 0x20000
    v_lshrrev_b32 v{t[0]}, 3, v{vL}
    v_and_b32 v{t[3]}, 7, v{vL}
    v_bfe_u32 v{t[2]}, v{vL}, 4, 1
    v_lshlrev_b32 v{t[2]}, 2, v{t[2]}
    v_xor_b32 v{t[2]}, v{t[2]}, v{t[3]}
    v_mul_u32_u24 v{t[0]}, 896, v{t[0]}
    v_lshl_add_u32 v{t[0]}, v{t[2]}, 4, v{t[0]}
    s_and_b32 s{sT1}, s{sW}, 1
    s_lshl_b32 s{sT1}, s{sT1}, 2
    s_lshr_b32 s{sT2}, s{sW}, 1
    s_add_u32 s{sT1}, s{sT1}, s{sT2}
    s_mul_i32 s{sT1}, s{sT1}, {32*896}
    s_mul_i32 s{sT2}, s{sW}, {112*896}
    s_sub_u32 s{sDW2}, s{sT2}, s{sT1}
    s_lshl_b32 s{sT0}, s{sCT}, 7
    s_add_u32 s{sT1}, s{sT1}, s{sT0}
    v_add_u32 v{vDW0}, s{sT1}, v{t[0]}
    v_add_u32 v{vDW1}, 7168, v{vDW0}
    s_lshl_b32 s{sT0}, s{sRT}, 2
    s_add_u32 s{sT0}, s{sT0}, s{sW}
    s_mul_i32 s{sT0}, s{sT0}, 72
    s_lshr_b32 s{sT1}, s{sW}, 1
    s_add_u32 s{sT0}, s{sT0}, s{sT1}
    s_lshl_b32 s{sT0}, s{sT0}, 10
    v_add_u32 v{vH0}, s{sT0}, v{vL16}
    v_xor_b32 v{vH1}, 1024, v{vH0}
    v_lshlrev_b32 v{t[2]}, 9, v{t[1]}
    v_sub_u32 v{t[0]}, v{vAK}, v{t[2]}
    v_subrev_u32 v{t[0]}, {KVB}, v{t[0]}
    s_and_b32 s{sT0}, s{sW}, 1
    s_lshl_b32 s{sT0}, s{sT0}, 6
    v_xor_b32 v{t[0]}, s{sT0}, v{t[0]}
    v_add_u32 v{vA2[0][0]}, s{sM2K}, v{t[0]}
    v_xor_b32 v{vA2[0][1]}, 64, v{vA2[0][0]}
    v_add_u32 v{vA2[1][0]}, 0x10000, v{vA2[0][0]}
    v_add_u32 v{vA2[1][1]}, 0x10000, v{vA2[0][1]}
    v_add_u32 v{vA2[2][0]}, 0x20000, v{vA2[0][0]}
    v_add_u32 v{vA2[2][1]}, 0x20000, v{vA2[0][1]}
    s_lshl_b32 s{sT1}, s{sRT}, 1
    s_lshr_b32 s{sT2}, s{sW}, 1
    s_add_u32 s{sT1}, s{sT1}, s{sT2}
    s_lshl_b32 s{sT1}, s{sT1}, 5
    v_and_b32 v{t[3]}, 31, v{vL}
    v_add_u32 v{t[3]}, s{sT1}, v{t[3]}
    v_lshlrev_b32 v{vG0}, 2, v{t[3]}
    v_add_u32 v{vG0}, {G_OFF}, v{vG0}
    v_xor_b32 v{vG1}, 128, v{vG0}
    v_mul_u32_u24 v{vOut}, 896, v{t[3]}
    v_lshl_add_u32 v{vOut}, v{t[1]}, 4, v{vOut}
    s_lshl_b32 s{sT1}, s{sCT}, 7
    s_add_u32 s{sT1}, s{sT1}, s{sT0}
    v_add_u32 v{vOut}, s{sT1}, v{vOut}
    v_add_u32 v{vWr}, s{sM2K}, v{vL16}
    v_xor_b32 v{vRd[0]}, 2048, v{vWr}
    v_xor_b32 v{vRd[1]}, 4096, v{vWr}
    v_xor_b32 v{vRd[2]}, 6144, v{vWr}
    s_lshr_b32 s{sT0}, s{sRT}, 1
    s_lshl_b32 s{sT0}, s{sT0}, 15
    s_and_b32 s{sT1}, s{sRT}, 1
    s_lshl_b32 s{sT1}, s{sT1}, 10
    s_add_u32 s{sT0}, s{sT0}, s{sT1}
    s_add_u32 s{sPoll}, s{sT0}, {C_OFF}
    v_and_b32 v{t[2]}, 1, v{vL}
    v_lshlrev_b32 v{t[2]}, 9, v{t[2]}
    v_lshrrev_b32 v{t[3]}, 1, v{vL}
    v_min_u32 v{t[3]}, 6, v{t[3]}
    v_lshl_add_u32 v{vPA}, v{t[3]}, 12, v{t[2]}
    s_and_b32 s{sT0}, s{sW}, 1
    s_lshl_b32 s{sT0}, s{sT0}, 11
    v_add_u32 v{vPA}, s{sT0}, v{vPA}
    s_lshr_b32 s{sT0}, s{sW}, 1
    s_lshl_b32 s{sT0}, s{sT0}, 11
    v_add_u32 v{vPO}, s{sT0}, v{t[2]}
    '''
    L = [fI(l.strip()) for l in txt.strip().split('\n')]
    L += [fI(f'v_mov_b32 v{aK+r}, s{sEPS}') for r in range(16)]
    L += [fI(f'v_mov_b32 v{aB+r}, s{sInit}') for r in range(64)]
    return L

def phase2(e, st, cfg):
    ACC, QM = aA, cfg.QM
    T0 = 36 - QM
    def wreg(sq): return ar(aFR + 8 * (sq % 4), 8) if sq < T0 else vr(aB + 8 * (sq - T0), 8)
    def sub(r, o, n):
        k = r[0]; lo = int(r[2:r.index(':')]); return f'{k}[{lo+o}:{lo+o+n-1}]'
    def reads(sq):
        while (sq, 1) in st.qw: assert st.w2(e), ('no LDS block for W2', sq)
        e.wait(vm=[('W', sq)])
        a = st.w2blk[sq]; f = wreg(sq)
        for n in range(2):
            for j in range(2):
                e.D(f'ds_read_b64_tr_b16 {sub(f,4*n+2*j,2)}, v{vA2[a >> 16][n]} offset:{(a & 0xffff) + j * 1024}', ('w', sq))
    def need_h(sq):
        while (sq, 1) in st.qh: assert st.h(e), ('H not allowed yet', sq)
    def mf(x, sq):
        acc = vr(ACC + 16 * x, 16)
        e.I(f'v_mfma_f32_32x32x16_bf16 {acc}, {sub(wreg(sq),4*(x&1),4)}, {ar(hreg(sq)+4*(x>>1))}, ' + ('0' if sq == 0 else acc))
    def scale(x): return [f'v_mul_f32 v{ACC+16*x+r}, v{ACC+16*x+r}, v{vG0 + (x >> 1)}' for r in range(16)]
    red = lambda x, q: ((x - 1) * 2 + (q >> 1)) * 8192 + (q & 1) * 1024
    reads(0)
    extra = list(range(T0 + 1, 36))
    for t in range(T0):
        if cfg.fine and t < 34: stamp(e, cfg, 16 + t)
        st.try_signal(e, 'B', 4, force=t >= cfg.sigB); st.try_signal(e, 'K', 4, force=t >= cfg.sigK)
        if t == 14 - cfg.LH - cfg.pollB: poll_issue(e, 2)
        if t == 28 - cfg.LH - cfg.pollO: poll_issue(e, 3)
        if t == 14 - cfg.LH:
            need_h(13); stamp(e, cfg, 6); poll_check(e, cfg, 2); stamp(e, cfg, 7); st.h_ok = 27
        if t == 28 - cfg.LH:
            need_h(27); stamp(e, cfg, 8); poll_check(e, cfg, 3); stamp(e, cfg, 9); st.h_ok = 35
            e.V(f'buffer_load_dword v{vG0}, v{vG0}, {srd(sWS)}, 0 offen sc1', 'g')
            e.V(f'buffer_load_dword v{vG1}, v{vG1}, {srd(sWS)}, 0 offen sc1', 'g')
        if t + 1 < 36: reads(t + 1)
        if extra and t >= T0 - QM + 1: reads(extra.pop(0))
        need_h(t)
        pre = []
        if t == 28:
            e.wait(vm=['g'])
            for s in scale(1): e.I(s)
            pre = [scale(2), scale(3), scale(0), []]
        e.wait(vm=[('H', t)], lg=[('w', t)])
        st.pool.add(st.w2blk[t])
        k = cfg.opseq
        for i, x in enumerate((1, 2, 3, 0)):
            mf(x, t)
            if pre:
                for s in pre[i]: e.I(s)
            if k > 0 and st.mem(e): k -= 1
            if k > 3 - i and st.mem(e): k -= 1
    assert not extra and {'A', 'B', 'K'} <= st.signalled
    need_h(35)
    assert not st.qw and not st.qh
    stamp(e, cfg, 10)
    e.wait(lg_all=True)
    side = []
    if T0 == 28:
        e.wait(vm=['g'])
        for s in scale(1): e.I(s)
    order = (1, 2, 3, 0)
    for i, x in enumerate(order):
        side = []
        if T0 == 28 and i < 3: side += [fI(s) for s in scale(order[i + 1])]
        wr = []
        if i > 0:
            px = order[i - 1]
            wr = [fF(lambda e, q=q, px=px: e.D(f'ds_write_b128 v{vWr}, {vr(ACC+16*px+4*q)} offset:{red(px,q)}', 'rw')) for q in range(4)]
        seqs = list(range(T0, 36))
        for j, sq in enumerate(seqs):
            e.wait(vm=[('H', sq)])
            mf(x, sq)
            k = -(-len(side) // (len(seqs) - j))
            for f in side[:k]: f[1](e)
            side = side[k:]
            if j >= 1 or len(seqs) == 1:
                k = 2 if j < len(seqs) - 1 else len(wr)
                for f in wr[:k]: f[1](e)
                wr = wr[k:]
        for f in wr: f[1](e)
    if QM == 0:
        for x in (1, 2, 3):
            for q in range(4): e.D(f'ds_write_b128 v{vWr}, {vr(ACC+16*x+4*q)} offset:{red(x,q)}', 'rw')
    e.wait(lg=['rw']); e.I('s_barrier')
    for x in (1, 2, 3):
        for q in range(4): e.D(f'ds_read_b128 {vr(ACC+16*x+4*q)}, v{vRd[x-1]} offset:{red(x,q)}', ('rr', x))
    for x in (1, 2, 3):
        e.wait(lg=[('rr', x)])
        for r in range(0, 16, 2): e.I(f'v_pk_add_f32 {vr(ACC+r,2)}, {vr(ACC+r,2)}, {vr(ACC+16*x+r,2)}')
    O = aK
    for i in range(8): e.I(f'v_cvt_pk_bf16_f32 v{O+i}, v{ACC+2*i}, v{ACC+2*i+1}')
    for b in (0, 4):
        e.I(f'v_permlane32_swap_b32 v{O+b}, v{O+b+2}'); e.I(f'v_permlane32_swap_b32 v{O+b+1}, v{O+b+3}')
    e.V(f'buffer_store_dwordx4 {vr(O)}, v{vOut}, {srd(sOUT)}, 0 offen {cfg.out_flag}', 'out')
    e.V(f'buffer_store_dwordx4 {vr(O+4)}, v{vOut}, {srd(sOUT)}, 0 offen offset:32 {cfg.out_flag}', 'out')
    stamp(e, cfg, 11)
    if cfg.stamps: e.wait(vm_all=True); stamp(e, cfg, 12)

def t3_tail(e, st, cfg, steps, nA):
    st.t3 = True; st.pre_barrier = st.post_barrier = None
    P = aA
    def q_fill(acc, t):
        L = phi_fill(acc, 16, vT + 20)
        for i in range(8): L.append(fI(f'v_cvt_pk_bf16_f32 v{P+8*t+i}, v{acc+2*i}, v{acc+2*i+1}'))
        return L
    fill = sum((q_fill(aA + 16 * t, t) for t in range(4)), [])
    run_steps(e, st, steps, nA, len(steps), fill, cfg.fill3)
    print(f'  T3 left-over fillers {len(fill)}', file=sys.stderr)
    stamp(e, cfg, 4)
    rest = fill + sum((q_fill(aB + 16 * t, 4 + t) for t in range(3)), [])
    k1, k2 = kv_fill(st, rest[:12], rest[12:28]); rest = rest[28:]
    run_valu(e, st, k1)
    e.wait(lg=['scw']); e.I('s_barrier')
    run_valu(e, st, k2)
    h = len(rest) * 2 // 3
    run_valu(e, st, rest[:h])
    st.try_signal(e, 'K', 4, force=True)
    run_valu(e, st, rest[h:])
    G, G1, Z = vT, vT + 1, vT + 4
    lg = aB + 48
    e.many(f'''
    v_lshlrev_b32 v{vT+2}, 9, v{vL}
    s_lshl_b32 s{sT1}, s{sQH}, 2
    s_add_u32 s{sT1}, s{sT1}, s{sW}
    s_lshl_b32 s{sT2}, s{sT1}, 16
    s_add_u32 s{sPoll}, s{sT2}, {C_OFF}
    s_add_u32 s{sSoH}, s{sPoll}, 32768
    ''')
    loads = [f'buffer_load_dword v{vT+8}, v{vT+2}, {srd(sWS)}, s{sPoll} offen sc1', f'buffer_load_dword v{vT+9}, v{vT+2}, {srd(sWS)}, s{sSoH} offen sc1']
    for l in loads: e.V(l, 'pk')
    e.many(f'''
    v_mul_f32 v{G}, 0xbfb8aa3b, v{lg}
    v_exp_f32 v{G}, v{G}
    s_lshl_b32 s{sT1}, s{sT1}, 13
    v_add_f32 v{G}, 1.0, v{G}
    v_rcp_f32 v{G}, v{G}
    s_add_u32 s{sT1}, s{sT1}, {KV_OFF}
    v_sub_f32 v{G1}, 1.0, v{G}
    s_add_u32 s{sT2}, s{sT1}, 4096
    v_mov_b32 v{Z}, 0
    v_add_u32 v{vT+5}, s{sM4K}, v{vL16}
    s_lshl_b32 s{sSo}, s{sRB}, 2
    s_add_u32 s{sSo}, s{sSo}, s{sW}
    s_lshl_b32 s{sSo}, s{sSo}, 7
    s_add_u32 s{sSo}, s{sSo}, {G_OFF}
    ''')
    stamp(e, cfg, 5)
    e.wait(vm=['pk'])
    spin_check(e, cfg, 'kv', loads, [vT + 8, vT + 9])
    stamp(e, cfg, 6)
    R, Q = aB, aB + 32
    for h in range(2):
        for q in range(4):
            e.V(f'buffer_load_dwordx4 {vr(R+16*h+4*q)}, v{vL16}, {srd(sWS)}, s{sT1 if h == 0 else sT2} offen offset:{q*1024} sc1', ('kvl', h))
    st.pub(e, f'buffer_store_dword v{G1}, v{vFl}, {srd(sWS)}, s{sSo} offen sc1', 'O')
    for h in range(2):
        e.wait(vm=[('kvl', h)])
        for i in range(8): e.I(f'v_cvt_pk_bf16_f32 v{Q+8*h+i}, v{R+16*h+2*i}, v{R+16*h+2*i+1}')
        pads = (6, 7) if h == 0 else (0, 1); m = sHiM if h == 0 else sLoM
        for i in pads: e.I(f'v_cndmask_b32_e64 v{Q+8*h+i}, v{Q+8*h+i}, v{Z}, s[{m}:{m+1}]')
        for j in range(2): e.D(f'ds_write_b128 v{vT+5}, {vr(Q+8*h+4*j)} offset:{(2*h+j)*1024}', 'kvw')
    e.wait(lg=['kvw']); e.I('s_barrier')
    KF = 112
    for jj in range(8):
        for j in range(2): e.D(f'ds_read_b128 {ar(KF+8*jj+4*j)}, v{vL16} offset:{(2*jj+j)*1024}', ('kf', jj))
    N = [aB, aB + 16, aB + 32, aB + 48]
    def num(jj):
        u0 = (7 * jj) // 2; n = N[jj % 4]
        e.wait(lg=[('kf', jj)])
        e.I(f'v_mfma_f32_32x32x16_bf16 {vr(n,16)}, {ar(KF+8*jj)}, {vr(P+2*u0)}, 0')
        e.I(f'v_mfma_f32_32x32x16_bf16 {vr(n,16)}, {ar(KF+8*jj+4)}, {vr(P+2*u0+4)}, {vr(n,16)}')
    def factor(jj):
        n = N[jj % 4]; odd = jj & 1; D = vT + 8 + 4 * (jj & 1)
        dr = n + (0 if odd else 12); m = sLoM if odd else sHiM
        d = D if odd else D + 1
        return [f'v_add_f32 v{D}, s{sEPS}, v{dr}', f'v_add_f32 v{D+1}, s{sEPS}, v{dr}', None, None,
                f'v_permlane32_swap_b32 v{D}, v{D+1}', None, f'v_rcp_f32 v{D+2}, v{d}', None,
                f'v_mul_f32 v{D}, v{D+2}, v{G}', None, f'v_cndmask_b32_e64 v{D+2}, v{D}, v{Z}, s[{m}:{m+1}]']
    num(0); num(1); num(2)
    for s in factor(0):
        if s: e.I(s)
    for jj in range(8):
        n = N[jj % 4]; odd = jj & 1; D = vT + 8 + 4 * (jj & 1)
        if jj + 3 < 8: num(jj + 3)
        nxt = factor(jj + 1) if jj + 1 < 8 else []
        padr = range(0, 4) if odd else range(12, 16)
        O = vT + 16 + 8 * (jj & 1)
        body = [f'v_pk_mul_f32 {vr(n+r,2)}, {vr(n+r,2)}, {vr(D+2 if r in padr else D,2)} op_sel_hi:[1,0]' for r in range(0, 16, 2)]
        body += [f'v_cvt_pk_bf16_f32 v{O+i}, v{n+2*i}, v{n+2*i+1}' for i in range(8)]
        for s in body:
            e.I(s)
            if nxt:
                s2 = nxt.pop(0)
                if s2: e.I(s2)
        e.I(f's_mov_b32 s{sSo}, {(jj >> 2) * 73728 + (jj & 3) * 4096}')
        for j in range(2):
            st.pub(e, f'buffer_store_dwordx4 {vr(O+4*j)}, v{vHst}, {srd(sWS)}, s{sSo} offen offset:{j*2048} {cfg.st_flag}', 'O')
    stamp(e, cfg, 7)
    st.try_signal(e, 'O', 17, force=True)
    stamp(e, cfg, 8)
    stamp_out(e, cfg)

def gen_all(cfg, code_bytes):
    OOL.clear()
    e = Em()
    if cfg.stamps:
        e.I('v_mov_b32 v35, 0'); stamp(e, cfg, 0)
        if cfg.rt: e.many('s_memtime s[100:101]\ns_waitcnt lgkmcnt(0)\nv_writelane_b32 v35, s100, 14')
    prologue1(e, cfg, code_bytes)
    st = St(cfg)
    n0 = 0
    while n0 < 8 and st.mem(e): n0 += 1
    prologue1b(e, cfg)
    late = prologue1c(cfg)
    for f in late: f[1](e)
    while n0 < cfg.n0 and st.mem(e): n0 += 1
    stamp(e, cfg, 1)
    dbg_ld = f'buffer_load_dword v{vDbg}, v{vDbg}, {srd(sDBG)}, 0 offen sc1'
    def post(e, ep):
        if ep == 0: stamp(e, cfg, 2)
        if ep == 1:
            e.many(f'''
            s_or_b32 s{sT0}, s{sRB}, s{sW}
            s_cbranch_scc1 L_noflag
            s_lshl_b32 s{sT0}, s{sHEAD}, 2
            s_mov_b64 exec, 1
            ''')
            e.V(f'buffer_store_dword v{vONES}, off, {srd(sDBG)}, s{sT0} sc1', cond=True)
            e.I('s_mov_b64 exec, -1')
            e.label('L_noflag')
        if ep == 5:
            e.I(f's_mov_b32 m0, {GW_LDS}')
            e.I(f'v_and_b32 v{vDbg}, 60, v{vL4}')
            e.V(f'buffer_load_dwordx4 v{vDG}, {srd(sGW)}, 0 offen lds', ('ep', 7))
            e.V(dbg_ld, 'dbg')
        if cfg.touch and ep == cfg.touch:
            e.many(f'''
            s_lshl_b32 s{sT0}, s2, 2
            s_add_u32 s{sT0}, s{sT0}, s{sW}
            s_lshl_b32 s{sT0}, s{sT0}, 11
            v_and_b32 v{vTch}, 15, v{vL}
            v_lshlrev_b32 v{vTch}, 7, v{vTch}
            s_cmp_lt_u32 s{sT0}, {1792*896}
            s_cbranch_scc0 L_tch_o
            ''')
            e.V(f'buffer_load_dword v{vTch}, v{vTch}, {srd(sWD)}, s{sT0} offen', cond=True)
            e.many(f's_branch L_tch_x\nL_tch_o:\ns_sub_u32 s{sT0}, s{sT0}, {1792*896}')
            e.V(f'buffer_load_dword v{vTch}, v{vTch}, {srd(sWO)}, s{sT0} offen', 'tch')
            e.label('L_tch_x')
    st.post_barrier = post
    A = steps_A(); steps2 = A + steps_B(False); steps3 = A + steps_B(True)
    for n in range(cfg.LA): issue_read(e, st, n, A[n])
    run_steps(e, st, steps2, 0, len(A))
    stamp(e, cfg, 3)
    e.wait(vm=['dbg'])
    spin_check(e, cfg, 'z', [dbg_ld], [vDbg], pre=f' v_and_b32 v{vDbg}, 60, v{vL4}\n')
    e.I(f's_cmp_eq_u32 s{sT3}, 1')
    e.I('s_cbranch_scc1 L_t3')
    e3 = e.fork(); st3 = st.clone()
    st.qw = [(sq, p) for sq in range(36) for p in range(2)]
    st.qh = [(sq, p) for sq in range(36) for p in range(2)]
    def post2(e, ep):
        st.try_signal(e, 'A', 4, force=ep >= cfg.sigA)
        if ep == cfg.pA: poll_issue(e, 1)
        if ep == cfg.pA + 1:
            poll_check(e, cfg, 1); st.h_ok = 13
    st.post_barrier = post2
    fill = sum((f_fill(st, aA + 16 * i, i, 0) for i in range(4)), [])
    run_steps(e, st, steps2, len(A), len(steps2), fill, cfg.fill)
    assert not fill and st.h_ok == 13
    print(f'  end of pass B: W2 ops {72-len(st.qw)} H ops {72-len(st.qh)} pool {len(st.pool.free)}', file=sys.stderr)
    stamp(e, cfg, 4)
    fb = [f_fill(st, aB + 16 * i, i, 1) for i in range(4)]
    k1, k2 = kv_fill(st)
    run_valu(e, st, k1[:28] + fb[0] + fb[1] + fb[2] + fb[3] + k1[28:])
    e.wait(lg=['scw']); e.I('s_barrier')
    st.on_epoch(14); st.on_epoch(15)
    st.pool.add(KVB + 8192); st.pool.add(KVB + 16384)
    run_valu(e, st, k2)
    stamp(e, cfg, 5)
    print(f'  start of phase 2: W2 ops {72-len(st.qw)} H ops {72-len(st.qh)} pool {len(st.pool.free)}', file=sys.stderr)
    phase2(e, st, cfg)
    stamp_out(e, cfg)
    e.I('s_endpgm')
    e3.label('L_t3')
    t3_tail(e3, st3, cfg, steps3, len(A))
    e3.label('L_end')
    e3.I('s_endpgm')
    print(f'  nops T2 {e.nops} T3 {e3.nops}', file=sys.stderr)
    return e.text() + e3.text() + ''.join(OOL)

KD = '''.amdhsa_kernel {k}
  .amdhsa_next_free_vgpr 512
  .amdhsa_next_free_sgpr 102
  .amdhsa_accum_offset 256
  .amdhsa_group_segment_fixed_size 0
  .amdhsa_kernarg_size 88
  .amdhsa_user_sgpr_count 2
  .amdhsa_user_sgpr_kernarg_segment_ptr 1
  .amdhsa_system_sgpr_workgroup_id_x 1
  .amdhsa_float_denorm_mode_32 3
.end_amdhsa_kernel
'''
def build(cfg):
    k = NAME + '_kernel'
    body = gen_all(cfg, f'L_code_end-{k}-64')
    o = f'; {NAME}: generated by gen/gen2.py\n'
    o += f'; @launch grid=(256,1,1) block=(256,1,1) lds={LDS_BYTES}\n'
    o += '.amdgcn_target "amdgcn-amd-amdhsa--gfx950"\n.text\n'
    o += f'.globl {k}\n.p2align 8\n.type {k},@function\n{k}:\n{body}L_code_end:\n s_endpgm\n'
    o += '.section .rodata,"a"\n.p2align 6\n' + KD.format(k=k)
    return o

if __name__ == '__main__':
    cfg = Cfg(); out = None
    for a in sys.argv[1:]:
        if '=' in a:
            k, v = a.split('=', 1); cur = getattr(cfg, k)
            setattr(cfg, k, (v == '1') if isinstance(cur, bool) else type(cur)(v))
        else: out = a
    open(out or f'cdna_kernels/{NAME}.s', 'w').write(build(cfg))
```

```python
import sys, copy, re
from emit import Em

NAME = 'gated_mix__linear_attn_block__glu_gated_reglu__prompt'
H_BYTES = 32 * 4 * 36 * 2048
Z_OFF = H_BYTES
FR_OFF = Z_OFF + 65536
FK_OFF = FR_OFF + 131072
G_OFF = Z_OFF + 16 * 16384
WS_USED = G_OFF + 2048 * 4
STAMP_OFF = 12 << 20
LOG2E = 0x3fb8aa3b
EPS = 0x358637bd
NEG_EPS_LOG2E = 0xb5c1a2c3
LDS_BYTES = 160 * 1024

class Cfg:
    LA = 4
    LK = 2
    gap = 2
    fill = 3
    fill3 = 4
    st_flag = 'sc1'
    ld_flag = ''
    ld2_flag = ''
    out_flag = ''
    rot = False
    n0 = 14
    touch = 1
    t2ep = 1
    t2step = 1
    pA = 14
    sigA = 12
    fillK = 3
    fillA = 4
    pollK = 12
    t3c = 24
    skip = ''
    vgap = 14
    opseq = 3
    LH = 6
    LHB = 2
    dgap = 1
    burst = 8
    pollB = 2
    pollO = 3
    sigB = 2
    sigK = 2
    QM = 4
    psleep = 1
    spin = 4000
    stamps = False
    rt = False
    fine = False
    fine2 = False

sX, sQKV, sI0, sI1, sWS, sDBG, sWD, sWO, sOUT, sGW, sCODE = [28 + 4 * i for i in range(11)]
sW, sRB, sHEAD, sT3, sC, sRT, sCT, sQH = 72, 73, 74, 75, 76, 77, 78, 79
sM1K, sM4K, sSoF, sStepF, sSoKV, sT0, sT1, sT2, sRot0F = 80, 81, 82, 83, 84, 85, 86, 87, 88
sPB, sEPS, sInit = 89, 90, 91
sPadM, sLoM, sHiM = 92, 94, 96
sM2K, sSo = 98, 99
sKx, sKkv, sEndF = 26, 27, 3
sPoll, sSoH = 10, 11
sU0, sU1, sU2 = 18, 19, 25
sZi = 0
sTC, sGrp = 20, 24
sSigR, sSigK, sSoW, sDW2 = 68, 69, 70, 71
def srd(b): return f's[{b}:{b+3}]'

vL, vL16, vL4, vD0, vD1, vD2, vHst, vAK, vAV, vOne, vONES, vDbg, vScW, vScR, vAG, vDG = range(1, 17)
vAX = [17, 18, 19, 20]
vAF = [[21 + 4 * w + t for t in range(4)] for w in range(3)]
vFl = 33
vT = 36
vDW0, vDW1, vH0, vH1, vG0, vG1, vOut, vWr, vPoll = range(60, 69)
vA2 = [[69, 70], [71, 72], [73, 74]]
vRd = [75, 76, 77]
vTch, vPA, vPO = 78, 79, 80
vDX = [81, 82, 83, 84]
aK, aV, aA, aB = 96, 112, 128, 192
aFR = 224
XB, KVB, FB = 0, 48 * 1024, 104 * 1024
GW_LDS = XB + 16384
def hreg(sq): return 112 + 8 * sq if sq < 14 else (8 * (sq - 14) if sq < 28 else 112 + 8 * (sq - 28))

def vr(b, n=4): return f'v[{b}:{b+n-1}]'
def ar(b, n=4): return f'a[{b}:{b+n-1}]'

def mk_srd(e, b, lo, size):
    e.I(f's_mov_b32 s{b}, s{lo}'); e.I(f's_mov_b32 s{b+1}, s{lo+1}')
    e.I(f's_mov_b32 s{b+2}, {size}'); e.I(f's_mov_b32 s{b+3}, 0x20000')

def stamp(e, cfg, i):
    if cfg.stamps:
        e.wait(lg_all=True)
        e.I(('s_memrealtime' if cfg.rt else 's_memtime') + ' s[100:101]'); e.I('s_waitcnt lgkmcnt(0)')
        e.I(f'v_writelane_b32 v35, s100, {i}')

def stamp_out(e, cfg):
    if not cfg.stamps: return
    if cfg.rt:
        e.many(f'''
        s_memtime s[100:101]
        v_readlane_b32 s{sT0}, v35, 14
        s_waitcnt lgkmcnt(0)
        s_sub_u32 s{sT0}, s100, s{sT0}
        s_lshr_b32 s{sT0}, s{sT0}, 4
        v_writelane_b32 v35, s{sT0}, 14
        s_memrealtime s[100:101]
        v_readlane_b32 s{sT0}, v35, 0
        s_waitcnt lgkmcnt(0)
        s_sub_u32 s{sT0}, s100, s{sT0}
        v_writelane_b32 v35, s{sT0}, 15
        ''')
    e.many(f'''
    s_lshl_b32 s{sT0}, s2, 2
    s_add_u32 s{sT0}, s{sT0}, s{sW}
    s_lshl_b32 s{sT0}, s{sT0}, 8
    s_add_u32 s{sT0}, s{sT0}, {STAMP_OFF}
    ''')
    e.V(f'buffer_store_dword v35, v{vL4}, {srd(sWS)}, s{sT0} offen', 'st')

class Pool:
    def __init__(self): self.free = []
    def add(self, addr): assert addr not in self.free; self.free.append(addr)
    def take(self, keep=0):
        if len(self.free) <= keep: return None
        return self.free.pop(0)

class St:
    def __init__(self, cfg):
        self.cfg = cfg
        self.pool = Pool()
        for i in range(7): self.pool.add(FB + 8192 * i)
        self.fblk = {}; self.w2blk = {}
        q = []
        for s in range(7):
            q += [('x', s, 0), ('x', s, 1), ('x', s, 2), ('x', s, 3)]
            q += [('f', 0, p, i) for p in (2 * s, 2 * s + 1) for i in (0, 1)]
        q += [('kv', p) for p in range(14)]
        for p in range(14): q += [('f', 1, p, 0), ('f', 1, p, 1)]
        self.q = q; self.qw = []; self.qh = []
        self.epoch = -1; self.x_done = -1; self.since = 99
        self.h_ok = -1
        self.cnt = {}; self.signalled = set()
        self.lead = 1
        self.t3 = False; self.scw_ep = self.scr_ep = self.k_ep = None
        self.pre_barrier = self.post_barrier = None
    def clone(self):
        s = copy.copy(self); s.pool = copy.deepcopy(self.pool); s.fblk = dict(self.fblk); s.w2blk = {}
        s.q = list(self.q); s.qw = []; s.qh = []; s.cnt = dict(self.cnt); s.signalled = set(self.signalled)
        return s
    def ep_of(self, ps, ks): return 7 + ks // 8 if ps == 2 else 11 * ps + ks // 4
    def dep(self, d): return d[1] if d[0] == 'x' else (7 + d[1] // 4 if d[0] == 'kv' else self.ep_of(d[1], 2 * d[2]))
    def free_epoch(self, ps, pair): return self.ep_of(ps, 2 * pair) + (2 if pair & 1 else 1)
    def demand(self, e):
        if not self.q: return False
        cfg = self.cfg; d = self.q[0]
        if self.dep(d) > max(self.epoch, 0) + cfg.LK: return False
        if d[0] == 'x':
            _, s, j = d
            if s >= 3 and self.x_done < s - 3: return False
            base = XB + (s % 3) * 16384 + j * 1024
            if cfg.rot:
                e.I(f's_add_u32 m0, s{sM4K}, {base}')
                if j == 0 and s > 0:
                    e.I(f's_add_u32 s{sKx}, s{sKx}, 128'); e.I(f's_cmp_eq_u32 s{sKx}, 896'); e.I(f's_cselect_b32 s{sKx}, 0, s{sKx}')
                e.V(f'buffer_load_dwordx4 v{vDX[j]}, {srd(sX)}, s{sKx} offen {cfg.ld_flag} lds', ('ep', s))
            elif base >= s * 128:
                e.I(f's_add_u32 m0, s{sM4K}, {base - s * 128}')
                e.V(f'buffer_load_dwordx4 v{vDX[j]}, {srd(sX)}, 0 offen offset:{s * 128} {cfg.ld_flag} lds', ('ep', s))
            else:
                e.I(f's_add_u32 m0, s{sM4K}, {base}'); e.I(f's_movk_i32 s{sSo}, {s * 128}')
                e.V(f'buffer_load_dwordx4 v{vDX[j]}, {srd(sX)}, s{sSo} offen {cfg.ld_flag} lds', ('ep', s))
        elif d[0] == 'kv':
            p = d[1]
            e.I(f's_add_u32 m0, s{sM1K}, {KVB + p * 4096}')
            if p > 0: e.I(f's_add_u32 s{sKkv}, s{sKkv}, {32 * 2688}')
            if cfg.rot and p > 0 and p % 2 == 0:
                e.I(f's_cmp_eq_u32 s{sKkv}, {448 * 2688}'); e.I(f's_cselect_b32 s{sKkv}, 0, s{sKkv}')
            e.V(f'buffer_load_dwordx4 v{vD2}, {srd(sQKV)}, s{sKkv} offen {cfg.ld_flag} lds', ('ep', self.dep(d)))
        else:
            _, ps, p, img = d
            if img == 0:
                a = self.pool.take()
                if a is None: return False
                self.fblk[(ps, p)] = a
            a = self.fblk[(ps, p)]
            e.I(f's_add_u32 m0, s{sM1K}, {a + img * 4096}')
            if img == 0:
                if p == 0:
                    e.I(f's_mov_b32 s{sSoF}, s{sRot0F}')
                    if ps == 1:
                        e.I(f'v_add_u32 v{vD0}, s{sPB}, v{vD0}'); e.I(f'v_add_u32 v{vD1}, s{sPB}, v{vD1}')
                else:
                    e.I(f's_add_u32 s{sSoF}, s{sSoF}, s{sStepF}')
                    if cfg.rot and p % 2 == 0:
                        e.I(f's_cmp_eq_u32 s{sSoF}, s{sEndF}'); e.I(f's_cselect_b32 s{sSoF}, 0, s{sSoF}')
            e.V(f'buffer_load_dwordx4 v{vD0 + img}, {srd(sI0 + 4 * img)}, s{sSoF} offen {cfg.ld_flag} lds', ('ep', self.dep(d)))
        self.q.pop(0)
        return True
    def w2(self, e):
        if not self.qw: return False
        sq, part = self.qw[0]
        if part == 0:
            left = sum(1 for d in self.q if d[0] == 'f' and d[3] == 0)
            a = self.pool.take(keep=min(left, 2))
            if a is None: return False
            self.w2blk[sq] = a
        a = self.w2blk[sq]
        e.I(f's_add_u32 m0, s{sM2K}, {a + part * 1024}')
        if sq < 28:
            p, s2 = divmod(sq, 14); row = 256 * (s2 >> 1) + 16 * (s2 & 1) + 64 * p; sr = sWD
        else:
            hh, j = divmod(sq - 28, 2); row = 28 * hh - 4 * (hh & 1) + 16 * j; sr = sWO
        if part == 0:
            if sq == 28:
                e.I(f'v_add_u32 v{vDW0}, s{sDW2}, v{vDW0}'); e.I(f'v_add_u32 v{vDW1}, s{sDW2}, v{vDW1}')
            e.I(f's_mov_b32 s{sSoW}, {row * 896}')
        e.V(f'buffer_load_dwordx4 v{vDW0 + part}, {srd(sr)}, s{sSoW} offen {self.cfg.ld2_flag} lds', ('W', sq))
        self.qw.pop(0)
        return True
    def h(self, e):
        if not self.qh or self.qh[0][0] > self.h_ok: return False
        sq, b = self.qh.pop(0)
        if b == 0 and sq % 2 == 0: e.I(f's_mov_b32 s{sSoH}, {sq * 2048}')
        e.V(f'buffer_load_dwordx4 {ar(hreg(sq)+4*b)}, v{vH0+b}, {srd(sWS)}, s{sSoH} offen offset:{(sq & 1) * 2048} sc1', ('H', sq))
        return True
    def mem(self, e):
        if self.demand(e): return True
        wn = self.qw[0][0] if self.qw else 99; hn = self.qh[0][0] if self.qh else 99
        order = (self.w2, self.h) if wn <= hn + self.lead else (self.h, self.w2)
        return order[0](e) or order[1](e)
    def on_epoch(self, ep):
        self.epoch = ep
        for (ps, p), a in self.fblk.items():
            if self.free_epoch(ps, p) == ep: self.pool.add(a)
        if ep == 5: self.pool.add(XB + 16384 + 8192)
        if ep == 6: self.pool.add(XB + 32768); self.pool.add(XB + 32768 + 8192)
        if ep == 7: self.pool.add(XB); self.pool.add(XB + 8192)
        if ep == 8 and not self.t3: self.pool.add(GW_LDS)
        for b, fe in ((2, 9), (3, 10), (4, 10), (5, 11), (6, 12)):
            if ep == fe: self.pool.add(KVB + 8192 * b)
        if self.scr_ep is not None and ep == self.scr_ep + 1: self.pool.add(KVB); self.pool.add(KVB + 8192)
    def pub(self, e, text, tag):
        e.V(text, tag); self.cnt[tag] = self.cnt.get(tag, 0) + 1; self.since = 0
    def try_signal(self, e, tag, n, force=False):
        if tag in self.signalled or self.cnt.get(tag, 0) < n: return
        if force: e.wait(vm=[tag])
        if tag in e.vm: return
        kind = {'K': 0, 'A': 1, 'B': 2, 'O': 3}[tag]
        if kind == 0:
            lab = 'L_sigk' + ('3' if self.t3 else '2')
            e.I(f's_cmp_eq_u32 s{sW}, 0'); e.I(f's_cbranch_scc0 {lab}')
            e.V(f'buffer_store_dword v{vONES}, v{vFl}, {srd(sWS)}, s{sSigK} offen sc1', cond=True)
            e.label(lab)
        else:
            e.V(f'buffer_store_dword v{vONES}, v{vFl}, {srd(sWS)}, s{sSigR} offen sc1'.replace(f'v{vONES},', f'v{vOne},' if kind == 1 else f'v{vONES},', 1), 'sig')
        self.signalled.add(tag)
        print(f'  signal {tag} at epoch {self.epoch} mfma {e.n_mfma}', file=sys.stderr)

def steps_A(): return [(0, ks, t) for ks in range(28) for t in (0, 1, 2, 3)]
def steps_K(): return [(2, ks, t) for ks in range(28) for t in ('k', 'v')]
def steps_B(t3): return [(1, ks, t) for ks in range(28) for t in (0, 1, 2, 'g' if t3 else 3)]

def issue_read(e, st, n, step):
    cfg = st.cfg
    ps, ks, t = step
    ep = st.ep_of(ps, ks)
    if ep != st.epoch:
        if st.pre_barrier: st.pre_barrier(e, ep)
        for d in st.q: assert st.dep(d) > ep, ('DMA not issued in time', d, ep)
        e.wait(vm=[('ep', ep)])
        e.I('s_barrier')
        st.on_epoch(ep)
        if cfg.fine and ep > 0: stamp(e, cfg, 46 + ep)
        if st.post_barrier: st.post_barrier(e, ep)
    if ps == 0 and ks % 4 == 0:
        e.D(f'ds_read_b128 {ar(4*(ks+t))}, v{vAX[t]} offset:{XB + (ep % 3) * 16384}', ('x', ks + t))
    fr = aFR + 4 * (n % 8)
    if t == 'g':
        e.D(f'ds_read_b128 {ar(fr)}, v{vAG} offset:{ks * 32}', ('w', n)); return
    if t in ('k', 'v'):
        reg = vAK if t == 'k' else vAV
        off = ks * 2048
    else:
        a = st.fblk[(ps, ks // 2)]
        reg = vAF[a >> 16][t]; off = (a & 0xffff) + (ks & 1) * 2048
    e.D(f'ds_read_b64_tr_b16 {ar(fr,2)}, v{reg} offset:{off}', ('w', n))
    e.D(f'ds_read_b64_tr_b16 {ar(fr+2,2)}, v{reg} offset:{off+512}', ('w', n))

def issue_mfma(e, st, n, step):
    ps, ks, t = step
    fr = ar(aFR + 4 * (n % 8))
    e.wait(lg=[('w', n), ('w', n | 1), ('x', ks)])
    if ps == 0 and ks % 4 == 1: st.x_done = ks // 4
    x = ar(4 * ks)
    if t == 'k': e.I(f'v_mfma_f32_32x32x16_bf16 {vr(aK,16)}, {x}, {fr}, ' + ('0' if ks == 0 else vr(aK, 16)))
    elif t == 'v': e.I(f'v_mfma_f32_32x32x16_bf16 {vr(aV,16)}, {x}, {fr}, ' + ('0' if ks == 0 else vr(aV, 16)))
    else:
        acc = vr((aA if ps == 0 else aB) + 16 * (3 if t == 'g' else t), 16)
        e.I(f'v_mfma_f32_32x32x16_bf16 {acc}, {fr}, {x}, ' + ('0' if ks == 0 else acc))

def run_steps(e, st, steps, lo, hi, fillers=None, fill=0):
    cfg = st.cfg
    for n in range(lo, hi):
        if n + cfg.LA < len(steps): issue_read(e, st, n + cfg.LA, steps[n + cfg.LA])
        issue_mfma(e, st, n, steps[n])
        st.since += 1
        while fillers and fillers[0][0] == 'g' and fillers[0][1](): fillers.pop(0)
        if fillers and fillers[0][0] == 'm' and st.since >= cfg.gap:
            fillers.pop(0)[1](e); continue
        if (st.since >= cfg.dgap and st.demand(e)) or (st.since >= cfg.gap and st.mem(e)):
            st.since = 0; budget = fill - 3
        else: budget = fill
        while fillers and budget > 0 and fillers[0][0] == 'i':
            f = fillers.pop(0); f[1](e); budget -= f[2]

def run_valu(e, st, fillers):
    k = 0
    for f in fillers:
        if f[0] == 'g': assert f[1](); continue
        f[1](e)
        if f[0] == 'm': k = 0; continue
        k += f[2]
        if k >= st.cfg.vgap and st.mem(e): k = 0
    fillers.clear()

def fI(text, cost=1): return ('i', lambda e: e.I(text), cost)
def fF(fn, cost=1): return ('i', fn, cost)
def fM(fn): return ('m', fn, 3)

def phi_fill(acc, n, tmp):
    L = []
    for r0 in range(0, n, 4):
        for i in range(4): L.append(fI(f'v_mul_f32 v{tmp+i}, s{sInit}, v{acc+r0+i}'))
        for i in range(4):
            L.append(fI(f'v_exp_f32_e64 v{tmp+i}, v{tmp+i} clamp', 2))
            L.append(fI(f'v_max_f32 v{acc+r0+i}, s{sEPS}, v{acc+r0+i}'))
        for i in range(4): L.append(fI(f'v_add_f32 v{acc+r0+i}, v{acc+r0+i}, v{tmp+i}'))
    return L

def kv_fill(st, cover1=(), cover2=()):
    pk, pv, tmp = vT, vT + 8, vT + 16
    L = phi_fill(aK, 16, tmp)
    for i in range(8): L.append(fI(f'v_cvt_pk_bf16_f32 v{pv+i}, v{aV+2*i}, v{aV+2*i+1}'))
    for i in range(8): L.append(fI(f'v_cndmask_b32_e64 v{pv+i}, v{pv+i}, v{vONES}, s[{sPadM}:{sPadM+1}]'))
    for i in range(8): L.append(fI(f'v_cvt_pk_bf16_f32 v{pk+i}, v{aK+2*i}, v{aK+2*i+1}'))
    L.append(fI(f'v_mfma_f32_32x32x16_bf16 {vr(aV,16)}, {vr(pk)}, {vr(pv)}, 0', 2))
    L.append(fI(f'v_mfma_f32_32x32x16_bf16 {vr(aV,16)}, {vr(pk+4)}, {vr(pv+4)}, {vr(aV,16)}', 2))
    L += list(cover1)
    for q in range(4):
        L.append(fF(lambda e, q=q: e.D(f'ds_write_b128 v{vScW}, {vr(aV+4*q)} offset:{q*1024}', 'scw'), 2))
    def mark(e): st.scw_ep = st.epoch
    L.append(fF(mark, 0))
    L2 = [('g', lambda: st.scw_ep is not None and st.epoch > st.scw_ep)]
    for p in range(4):
        for i in (0, 2):
            o = p * 16 + i
            L2.append(fF(lambda e, p=p, i=i, o=o: e.D(f'ds_read2st64_b32 {vr(aK+4*p+i,2)}, v{vScR} offset0:{o} offset1:{o+1}', 'scr')))
    L2 += list(cover2)
    def done(e): e.wait(lg=['scr']); st.scr_ep = st.epoch
    L2.append(fF(done, 1))
    for i in range(4): L2.append(fI(f'v_add_f32 v{aK+i}, v{aK+i}, v{aK+4+i}'))
    for i in range(4): L2.append(fI(f'v_add_f32 v{aK+8+i}, v{aK+8+i}, v{aK+12+i}'))
    for i in range(4): L2.append(fI(f'v_add_f32 v{aK+i}, v{aK+i}, v{aK+8+i}'))
    for i in range(4):
        L2.append(fM(lambda e, i=i: st.pub(e, f'buffer_atomic_add_f32 v{aK+i}, v{vL4}, {srd(sWS)}, s{sSoKV} offen offset:{i*256}', 'K')))
    return L, L2

def f_fill(st, acc, i, ps):
    L = []
    for r in range(8): L.append(fI(f'v_max_f32 v{acc+r}, 0, v{acc+r}'))
    for r in range(8): L.append(fI(f'v_mul_f32 v{acc+r}, v{acc+r}, v{acc+8+r}'))
    for r in range(4): L.append(fI(f'v_cvt_pk_bf16_f32 v{acc+8+r}, v{acc+2*r}, v{acc+2*r+1}'))
    def st_(e):
        e.I(f's_mov_b32 s{sSo}, {(i >> 1) * 147456 + ps * 28672}')
        st.pub(e, f'buffer_store_dwordx4 {vr(acc+8)}, v{vHst}, {srd(sWS)}, s{sSo} offen offset:{(i & 1) * 2048} {st.cfg.st_flag}', 'AB'[ps])
    L.append(fM(st_))
    return L

OOL = []
def spin_check(e, cfg, name, loads, regs, pre='', above=0):
    def test():
        t = [f'v_min_u32 v{regs[0]}, v{regs[0]}, v{r}' for r in regs[1:]]
        return t + [f'v_cmp_lt_u32 vcc, {above}, v{regs[0]}']
    for t in test(): e.I(t)
    e.I('s_cmp_eq_u64 vcc, -1')
    e.I(f's_cbranch_scc0 L_spin_{name}')
    e.label(f'L_ok_{name}')
    OOL.append(f'L_spin_{name}:\n s_mov_b32 s{sT0}, 0\nL_spin2_{name}:\n s_sleep {cfg.psleep}\n{pre}'
               + ''.join(f' {l}\n' for l in loads)
               + f' s_add_u32 s{sT0}, s{sT0}, 1\n s_waitcnt vmcnt(0)\n' + ''.join(f' {t}\n' for t in test())
               + f' s_nop 1\n s_cmp_eq_u64 vcc, -1\n s_cbranch_scc1 L_ok_{name}\n s_cmp_lt_u32 s{sT0}, {cfg.spin}\n'
               + f' s_cbranch_scc1 L_spin2_{name}\n s_branch L_ok_{name}\n')
def poll_txt(kind):
    return f'buffer_load_dword v{vPoll}, v{vPO if kind == 3 else vPA}, {srd(sWS)}, s{sPoll} offen sc1'
def poll_issue(e, kind): e.V(poll_txt(kind), ('poll', kind))
def poll_check(e, cfg, kind):
    e.wait(vm=[('poll', kind)])
    spin_check(e, cfg, f'p{kind}', [poll_txt(kind)], [vPoll], above=1 if kind == 2 else 0)

def prologue1(e, cfg, code_bytes):
    t = [vT + 2 + i for i in range(10)]
    e.many(f'''
    s_cmp_ge_u32 s2, 256
    s_cbranch_scc1 L_end
    s_load_dwordx16 s[4:19], s[0:1], 0
    s_load_dwordx4 s[20:23], s[0:1], 64
    s_load_dwordx2 s[24:25], s[0:1], 80
    s_getpc_b64 s[{sCODE}:{sCODE+1}]
    s_mov_b32 s{sCODE+2}, {code_bytes}
    s_mov_b32 s{sCODE+3}, 0x20000
    s_and_b32 s3, s2, 0xf8
    v_and_b32 v{vT}, 7, v0
    v_add_lshl_u32 v{vT}, v{vT}, s3, 7
    ''')
    e.V(f'buffer_load_dword v{vT+1}, v{vT}, {srd(sCODE)}, 0 offen', 'code')
    e.many(f'''
    v_and_b32 v{vL}, 63, v0
    v_lshrrev_b32 v{t[0]}, 6, v0
    v_lshlrev_b32 v{vL16}, 4, v{vL}
    v_readfirstlane_b32 s{sW}, v{t[0]}
    v_lshlrev_b32 v{vL4}, 2, v{vL}
    s_lshr_b32 s{sT0}, s2, 3
    s_and_b32 s{sT1}, s{sT0}, 7
    s_lshr_b32 s{sT2}, s{sT0}, 3
    s_and_b32 s{sRB}, s2, 4
    s_lshl_b32 s{sRB}, s{sRB}, 1
    s_add_u32 s{sRB}, s{sRB}, s{sT1}
    s_and_b32 s{sHEAD}, s2, 3
    s_lshr_b32 s{sQH}, s{sHEAD}, 1
    s_lshl_b32 s{sHEAD}, s{sHEAD}, 2
    s_add_u32 s{sHEAD}, s{sHEAD}, s{sT2}
    s_xor_b32 s{sT3}, s{sT1}, s2
    s_and_b32 s{sT3}, s{sT3}, 1
    s_and_b32 s{sC}, s2, 1
    s_lshl_b32 s{sC}, s{sC}, 2
    s_add_u32 s{sC}, s{sC}, s{sT2}
    s_lshr_b32 s{sT1}, s{sT1}, 1
    s_add_u32 s{sT1}, s{sT1}, 24
    s_cmp_eq_u32 s{sT2}, 3
    s_cselect_b32 s{sT3}, s{sT3}, 0
    s_cselect_b32 s{sC}, 3, s{sC}
    s_cselect_b32 s{sT0}, s{sT1}, s{sT0}
    s_mul_i32 s{sT1}, s{sQH}, 7
    s_add_u32 s{sC}, s{sC}, s{sT1}
    s_and_b32 s{sRT}, s2, 7
    s_lshl_b32 s{sRT}, s{sRT}, 2
    s_and_b32 s{sT1}, s{sT0}, 3
    s_add_u32 s{sRT}, s{sRT}, s{sT1}
    s_lshr_b32 s{sCT}, s{sT0}, 2
    s_lshl_b32 s{sM1K}, s{sW}, 10
    s_lshl_b32 s{sM2K}, s{sW}, 11
    s_lshl_b32 s{sM4K}, s{sW}, 12
    v_lshrrev_b32 v{t[0]}, 3, v{vL}
    v_and_b32 v{t[1]}, 7, v{vL}
    v_bfe_u32 v{t[2]}, v{vL}, 4, 1
    v_lshlrev_b32 v{t[2]}, 2, v{t[2]}
    v_xor_b32 v{t[2]}, v{t[2]}, v{t[1]}
    s_lshl_b32 s{sT0}, s{sW}, 3
    v_add_u32 v{t[3]}, s{sT0}, v{t[0]}
    ; x
    s_lshl_b32 s{sT0}, s{sRB}, 2
    s_add_u32 s{sT0}, s{sT0}, s{sW}
    s_mul_i32 s{sT0}, s{sT0}, {32*896}
    v_xor_b32 v{t[4]}, v{t[1]}, v{t[0]}
    v_lshlrev_b32 v{t[4]}, 4, v{t[4]}
    v_mul_u32_u24 v{vDX[0]}, 896, v{t[0]}
    v_add3_u32 v{vDX[0]}, v{vDX[0]}, v{t[4]}, s{sT0}
    v_add_u32 v{vDX[1]}, 7168, v{vDX[0]}
    v_add_u32 v{vDX[2]}, {2*7168}, v{vDX[0]}
    v_add_u32 v{vDX[3]}, {3*7168}, v{vDX[0]}
    ; kv window
    s_mul_i32 s{sT0}, s{sHEAD}, 56
    s_and_b32 s{sT0}, s{sT0}, -16
    s_add_u32 s{sT0}, s{sT0}, 896
    v_lshrrev_b32 v{t[4]}, 2, v{t[2]}
    v_mul_u32_u24 v{t[4]}, 832, v{t[4]}
    v_lshl_add_u32 v{t[4]}, v{t[2]}, 4, v{t[4]}
    v_mul_u32_u24 v{vD2}, 2688, v{t[3]}
    v_add3_u32 v{vD2}, v{vD2}, v{t[4]}, s{sT0}
    ; I0 / I1
    s_lshl_b32 s{sT0}, s{sC}, 8
    s_mul_i32 s{sT1}, s{sQH}, 448
    s_add_u32 s{sT2}, s{sT1}, 128
    s_cmp_eq_u32 s{sT3}, 1
    s_cselect_b32 s{sT2}, s{sT2}, s{sT0}
    s_cselect_b32 s{sT1}, s{sT1}, s{sT0}
    s_movk_i32 s{sT0}, 3584
    s_cselect_b32 s{sT0}, 2688, s{sT0}
    s_movk_i32 s{sPB}, 128
    s_cselect_b32 s{sPB}, 256, s{sPB}
    s_lshl_b32 s{sStepF}, s{sT0}, 5
    v_mul_u32_u24 v{t[3]}, s{sT0}, v{t[3]}
    v_lshl_add_u32 v{vD0}, v{t[2]}, 4, v{t[3]}
    v_xor_b32 v{t[4]}, 2, v{t[2]}
    v_lshl_add_u32 v{vD1}, v{t[4]}, 4, v{t[3]}
    v_add_u32 v{vD0}, s{sT1}, v{vD0}
    v_add_u32 v{vD1}, s{sT2}, v{vD1}
    ''')
    if cfg.rot:
        e.many(f'''
        s_bfe_u32 s{sT0}, s2, 0x30003
        s_lshr_b32 s{sT1}, s2, 6
        s_lshl_b32 s{sT1}, s{sT1}, 1
        s_add_u32 s{sT0}, s{sT0}, s{sT1}
        s_and_b32 s{sT1}, s2, 3
        s_add_u32 s{sT0}, s{sT0}, s{sT1}
        s_mul_i32 s{sT1}, s{sT0}, 37
        s_lshr_b32 s{sT1}, s{sT1}, 8
        s_mul_i32 s{sT1}, s{sT1}, 7
        s_sub_u32 s{sT0}, s{sT0}, s{sT1}
        s_lshl_b32 s{sKx}, s{sT0}, 7
        s_mul_i32 s{sKkv}, s{sT0}, {64 * 2688}
        s_mul_i32 s{sRot0F}, s{sT0}, s{sStepF}
        s_lshl_b32 s{sRot0F}, s{sRot0F}, 1
        s_mul_i32 s{sEndF}, s{sStepF}, 14
        v_add_u32 v{vDG}, s{sKx}, v{vL16}
        v_subrev_u32 v{t[4]}, 896, v{vDG}
        v_min_u32 v{vDG}, v{vDG}, v{t[4]}
        ''')
    else:
        e.many(f's_mov_b32 s{sKkv}, 0\ns_mov_b32 s{sRot0F}, 0\nv_mov_b32 v{vDG}, v{vL16}')
    e.many(f'''
    s_mov_b32 s{sX+2}, {2048*896}
    s_mov_b32 s{sX+3}, 0x20000
    s_mov_b32 s{sI0+3}, 0x20000
    s_mov_b32 s{sI1+3}, 0x20000
    s_cmp_eq_u32 s{sT3}, 1
    s_mov_b32 s{sI0+2}, {448*3584}
    s_cselect_b32 s{sI0+2}, {448*2688}, s{sI0+2}
    s_mov_b32 s{sI1+2}, s{sI0+2}
    s_waitcnt lgkmcnt(0)
    s_mov_b32 s{sX}, s4
    s_mov_b32 s{sX+1}, s5
    s_cselect_b32 s{sI0}, s6, s12
    s_cselect_b32 s{sI0+1}, s7, s13
    s_cselect_b32 s{sI1}, s6, s14
    s_cselect_b32 s{sI1+1}, s7, s15
    ''')

def touch_setup(e, rnd):
    t = [vT + 2 + i for i in range(10)]
    a, b, c, sh, n1, n2, u = 4, 5, sT0, sT1, sT2, sSo, sSoF
    sel = sW if rnd == 1 else sGrp
    if rnd == 1:
        e.I(f's_mov_b32 s{u}, s2')
        rows = [((sX, sX + 1), 2048 * 896, 0, 128, 56 * 128, 0, 6, 56, 1),
                ((12, 13), 448 * 3584, 0, 256, 25 * 256, 0, 6, 25, 1),
                ((14, 15), 448 * 3584, 0, 256, 25 * 256, 0, 6, 25, 1),
                ((6, 7), 448 * 2688, 2688, 128, 2 * 2688, 0, 3, 7, 2)]
    else:
        e.many(f'''
        s_lshl_b32 s{u}, s{sZi}, 2
        s_add_u32 s{u}, s{u}, s{sW}
        ''')
        rows = [((6, 7), 448 * 2688, 2688, 128, 2 * 2688, 896, 4, 14, 2),
                (None, 448 * 3584, 0, 256, 49 * 256, 128, 6, 49, 1),
                ((16, 17), 1792 * 896, 0, 128, 49 * 128, 0, 6, 49, 1),
                ((8, 9), 448 * 896, 0, 128, 13 * 128, 0, 6, 13, 1)]
    for g, (ptr, size, A, B, Cu, C0, shv, n1v, n2v) in enumerate(rows):
        if g < 3: e.I(f's_cmp_eq_u32 s{sel}, {g}'); e.I(f's_cbranch_scc0 L_ts{rnd}_{g}')
        if ptr is None:
            e.many(f'''
            s_bitcmp1_b32 s{u}, 0
            s_cselect_b32 s{sTC}, s14, s12
            s_cselect_b32 s{sTC+1}, s15, s13
            s_lshr_b32 s{u}, s{u}, 1
            ''')
        else:
            e.I(f's_mov_b32 s{sTC}, s{ptr[0]}'); e.I(f's_mov_b32 s{sTC+1}, s{ptr[1]}')
        e.many(f'''
        s_mov_b32 s{sTC+2}, {size}
        s_movk_i32 s{a}, {A}
        s_movk_i32 s{b}, {B}
        s_mul_i32 s{c}, s{u}, {Cu}
        s_add_u32 s{c}, s{c}, {C0}
        s_movk_i32 s{sh}, {shv}
        s_movk_i32 s{n1}, {n1v}
        s_movk_i32 s{n2}, {n2v}
        ''')
        if g < 3: e.I(f's_branch L_tx{rnd}'); e.label(f'L_ts{rnd}_{g}')
    e.label(f'L_tx{rnd}')
    e.many(f'''
    s_mov_b32 s{sTC+3}, 0x20000
    v_lshrrev_b32 v{t[0]}, s{sh}, v{vL}
    v_bfe_u32 v{t[1]}, v{vL}, 0, s{sh}
    v_mul_u32_u24 v{vTch}, s{a}, v{t[0]}
    v_mad_u32_u24 v{vTch}, v{t[1]}, s{b}, v{vTch}
    v_add_u32 v{vTch}, s{c}, v{vTch}
    v_cmp_gt_u32 vcc, s{n1}, v{t[1]}
    v_mov_b32 v{t[2]}, 0x7fffff00
    v_cndmask_b32 v{vTch}, v{t[2]}, v{vTch}, vcc
    v_cmp_gt_u32 vcc, s{n2}, v{t[0]}
    v_cndmask_b32 v{vTch}, v{t[2]}, v{vTch}, vcc
    ''')

def prologue1b(e, cfg):
    t = [vT + 2 + i for i in range(10)]
    mk_srd(e, sQKV, 6, 448 * 2688)
    mk_srd(e, sGW, 18, 896)
    e.many(f'''
    s_lshl_b32 s{sSoKV}, s{sHEAD}, 12
    s_add_u32 s{sSoKV}, s{sSoKV}, s{sM1K}
    s_add_u32 s{sSoKV}, s{sSoKV}, {Z_OFF}
    v_mov_b32 v{vT+12}, 0
    v_mov_b32 v{vT+13}, 0
    v_mov_b32 v{vT+14}, 0
    v_mov_b32 v{vT+15}, 0
    s_lshl_b32 s{sT0}, s{sZi}, 12
    s_add_u32 s{sT0}, s{sT0}, s{sM1K}
    s_add_u32 s{sT0}, s{sT0}, {Z_OFF}
    s_cmp_eq_u32 s{sGrp}, 3
    s_cselect_b32 s{sT0}, s{sT0}, 0x7fff0000
    ''')
    e.V(f'buffer_store_dwordx4 {vr(vT+12)}, v{vL16}, {srd(sWS)}, s{sT0} offen sc1', 'zero')
    e.many(f'''
    v_lshrrev_b32 v{t[1]}, 5, v{vL}
    v_bfe_u32 v{t[2]}, v{vL}, 2, 2
    v_lshl_add_u32 v{t[0]}, v{t[1]}, 3, v{t[2]}
    v_lshlrev_b32 v{t[0]}, 7, v{t[0]}
    v_and_b32 v{t[2]}, 3, v{vL}
    v_lshl_add_u32 v{t[0]}, v{t[2]}, 3, v{t[0]}
    v_bfe_u32 v{t[2]}, v{vL}, 3, 1
    v_lshl_add_u32 v{t[0]}, v{t[2]}, 6, v{t[0]}
    v_bfe_u32 v{t[2]}, v{vL}, 4, 1
    v_lshl_add_u32 v{t[0]}, v{t[2]}, 5, v{t[0]}
    v_add_u32 v{vAK}, {KVB}, v{t[0]}
    v_xor_b32 v{vAV}, 64, v{vAK}
    s_cmp_eq_u32 s{sT3}, 1
    s_cselect_b32 s{sT0}, 0, 4096
    v_mad_u32_u24 v{vAF[0][0]}, v{t[2]}, s{sT0}, v{t[0]}
    s_cselect_b32 s{sT0}, 64, 32
    s_cselect_b32 s{sT1}, {4096+32}, 64
    s_movk_i32 s{sT2}, 96
    s_cselect_b32 s{sT2}, {4096+96}, s{sT2}
    v_xor_b32 v{vAF[0][1]}, s{sT0}, v{vAF[0][0]}
    v_xor_b32 v{vAF[0][2]}, s{sT1}, v{vAF[0][0]}
    v_xor_b32 v{vAF[0][3]}, s{sT2}, v{vAF[0][0]}
    ''')
    for w in (1, 2):
        for q in range(4): e.I(f'v_add_u32 v{vAF[w][q]}, {65536*w}, v{vAF[0][q]}')
    e.many(f'''
    v_and_b32 v{t[2]}, 7, v{vL}
    v_xor_b32 v{t[2]}, v{t[2]}, v{t[1]}
    v_and_b32 v{t[3]}, 31, v{vL}
    v_lshlrev_b32 v{t[4]}, 7, v{t[3]}
    v_lshl_add_u32 v{t[4]}, v{t[2]}, 4, v{t[4]}
    v_add_u32 v{vAX[0]}, s{sM4K}, v{t[4]}
    v_xor_b32 v{vAX[1]}, 32, v{vAX[0]}
    v_xor_b32 v{vAX[2]}, 64, v{vAX[0]}
    v_xor_b32 v{vAX[3]}, 96, v{vAX[0]}
    ''')

def prologue1c(cfg):
    t = [vT + 2 + i for i in range(10)]
    txt = f'''
    v_lshrrev_b32 v{t[1]}, 5, v{vL}
    v_lshlrev_b32 v{vAG}, 4, v{t[1]}
    v_add_u32 v{vAG}, {GW_LDS}, v{vAG}
    v_and_b32 v{vFl}, 124, v{vL4}
    s_and_b32 s{sT0}, s{sHEAD}, 1
    s_xor_b32 s{sT0}, s{sT0}, 1
    s_mul_i32 s{sT0}, s{sT0}, 28
    s_lshl_b32 s{sPadM}, 15, s{sT0}
    s_mov_b32 s{sPadM+1}, s{sPadM}
    s_mov_b32 s{sLoM}, -1
    s_mov_b32 s{sLoM+1}, 0
    s_mov_b32 s{sHiM}, 0
    s_mov_b32 s{sHiM+1}, -1
    s_mov_b32 s{sEPS}, {EPS:#x}
    s_mov_b32 s{sInit}, {LOG2E:#x}
    s_add_u32 s{sT0}, s{sM4K}, {KVB}
    v_add_u32 v{vScW}, s{sT0}, v{vL16}
    s_add_u32 s{sT0}, s{sM1K}, {KVB}
    v_add_u32 v{vScR}, s{sT0}, v{vL4}
    s_lshr_b32 s{sT0}, s{sW}, 1
    s_lshl_b32 s{sT1}, s{sRB}, 1
    s_add_u32 s{sT0}, s{sT0}, s{sT1}
    s_mul_i32 s{sT0}, s{sT0}, 144
    s_mul_i32 s{sT1}, s{sQH}, 72
    s_add_u32 s{sT1}, s{sT1}, 28
    s_and_b32 s{sT2}, s{sC}, 1
    s_mul_i32 s{sT2}, s{sT2}, 35
    s_add_u32 s{sT2}, s{sT2}, s{sC}
    s_sub_u32 s{sT1}, s{sT1}, s{sT2}
    s_mul_i32 s{sT1}, s{sT1}, s{sT3}
    s_add_u32 s{sT1}, s{sT1}, s{sT2}
    s_add_u32 s{sT0}, s{sT0}, s{sT1}
    s_lshl_b32 s{sT0}, s{sT0}, 1
    s_and_b32 s{sT1}, s{sW}, 1
    s_add_u32 s{sT0}, s{sT0}, s{sT1}
    s_lshl_b32 s{sT0}, s{sT0}, 10
    v_add_u32 v{vHst}, s{sT0}, v{vL16}
    s_sub_u32 s{sT0}, s{sQH}, s{sC}
    s_add_u32 s{sT0}, s{sT0}, 14
    s_mul_i32 s{sT0}, s{sT0}, s{sT3}
    s_add_u32 s{sT0}, s{sT0}, s{sC}
    s_lshl_b32 s{sT1}, s{sRB}, 4
    s_add_u32 s{sT0}, s{sT0}, s{sT1}
    s_lshl_b32 s{sT0}, s{sT0}, 2
    s_add_u32 s{sT0}, s{sT0}, s{sW}
    s_lshl_b32 s{sT0}, s{sT0}, 7
    s_add_u32 s{sSigR}, s{sT0}, {FR_OFF}
    s_lshl_b32 s{sT0}, s{sHEAD}, 4
    s_add_u32 s{sT0}, s{sT0}, s{sRB}
    s_lshl_b32 s{sT0}, s{sT0}, 7
    s_add_u32 s{sSigK}, s{sT0}, {FK_OFF}
    v_mov_b32 v{vOne}, 1
    s_mov_b32 s{sWD}, s16
    s_mov_b32 s{sWD+1}, s17
    s_mov_b32 s{sWD+2}, {1792*896}
    s_mov_b32 s{sWD+3}, 0x20000
    s_mov_b32 s{sWO}, s8
    s_mov_b32 s{sWO+1}, s9
    s_mov_b32 s{sWO+2}, {448*896}
    s_mov_b32 s{sWO+3}, 0x20000
    v_lshrrev_b32 v{t[0]}, 3, v{vL}
    v_and_b32 v{t[3]}, 7, v{vL}
    v_bfe_u32 v{t[2]}, v{vL}, 4, 1
    v_lshlrev_b32 v{t[2]}, 2, v{t[2]}
    v_xor_b32 v{t[2]}, v{t[2]}, v{t[3]}
    v_mul_u32_u24 v{t[0]}, 896, v{t[0]}
    v_lshl_add_u32 v{t[0]}, v{t[2]}, 4, v{t[0]}
    s_and_b32 s{sT1}, s{sW}, 1
    s_lshl_b32 s{sT1}, s{sT1}, 2
    s_lshr_b32 s{sT2}, s{sW}, 1
    s_add_u32 s{sT1}, s{sT1}, s{sT2}
    s_mul_i32 s{sT1}, s{sT1}, {32*896}
    s_mul_i32 s{sT2}, s{sW}, {112*896}
    s_sub_u32 s{sDW2}, s{sT2}, s{sT1}
    s_lshl_b32 s{sT0}, s{sCT}, 7
    s_add_u32 s{sT1}, s{sT1}, s{sT0}
    v_add_u32 v{vDW0}, s{sT1}, v{t[0]}
    v_add_u32 v{vDW1}, 7168, v{vDW0}
    s_lshl_b32 s{sT0}, s{sRT}, 2
    s_add_u32 s{sT0}, s{sT0}, s{sW}
    s_mul_i32 s{sT0}, s{sT0}, 72
    s_lshr_b32 s{sT1}, s{sW}, 1
    s_add_u32 s{sT0}, s{sT0}, s{sT1}
    s_lshl_b32 s{sT0}, s{sT0}, 10
    v_add_u32 v{vH0}, s{sT0}, v{vL16}
    v_xor_b32 v{vH1}, 1024, v{vH0}
    v_lshlrev_b32 v{t[2]}, 9, v{t[1]}
    v_sub_u32 v{t[0]}, v{vAK}, v{t[2]}
    v_subrev_u32 v{t[0]}, {KVB}, v{t[0]}
    s_and_b32 s{sT0}, s{sW}, 1
    s_lshl_b32 s{sT0}, s{sT0}, 6
    v_xor_b32 v{t[0]}, s{sT0}, v{t[0]}
    v_add_u32 v{vA2[0][0]}, s{sM2K}, v{t[0]}
    v_xor_b32 v{vA2[0][1]}, 64, v{vA2[0][0]}
    v_add_u32 v{vA2[1][0]}, 0x10000, v{vA2[0][0]}
    v_add_u32 v{vA2[1][1]}, 0x10000, v{vA2[0][1]}
    v_add_u32 v{vA2[2][0]}, 0x20000, v{vA2[0][0]}
    v_add_u32 v{vA2[2][1]}, 0x20000, v{vA2[0][1]}
    s_lshl_b32 s{sT1}, s{sRT}, 1
    s_lshr_b32 s{sT2}, s{sW}, 1
    s_add_u32 s{sT1}, s{sT1}, s{sT2}
    s_lshl_b32 s{sT1}, s{sT1}, 5
    v_and_b32 v{t[3]}, 31, v{vL}
    v_add_u32 v{t[3]}, s{sT1}, v{t[3]}
    v_lshlrev_b32 v{vG0}, 2, v{t[3]}
    v_add_u32 v{vG0}, {G_OFF}, v{vG0}
    v_xor_b32 v{vG1}, 128, v{vG0}
    v_mul_u32_u24 v{vOut}, 896, v{t[3]}
    v_lshl_add_u32 v{vOut}, v{t[1]}, 4, v{vOut}
    s_lshl_b32 s{sT1}, s{sCT}, 7
    s_add_u32 s{sT1}, s{sT1}, s{sT0}
    v_add_u32 v{vOut}, s{sT1}, v{vOut}
    v_add_u32 v{vWr}, s{sM2K}, v{vL16}
    v_xor_b32 v{vRd[0]}, 2048, v{vWr}
    v_xor_b32 v{vRd[1]}, 4096, v{vWr}
    v_xor_b32 v{vRd[2]}, 6144, v{vWr}
    s_lshr_b32 s{sT0}, s{sRT}, 1
    s_lshl_b32 s{sT0}, s{sT0}, 13
    s_and_b32 s{sT1}, s{sRT}, 1
    s_lshl_b32 s{sT1}, s{sT1}, 8
    s_add_u32 s{sT0}, s{sT0}, s{sT1}
    s_add_u32 s{sPoll}, s{sT0}, {FR_OFF}
    v_and_b32 v{t[2]}, 1, v{vL}
    v_lshlrev_b32 v{t[2]}, 7, v{t[2]}
    v_lshrrev_b32 v{t[3]}, 1, v{vL}
    v_min_u32 v{t[3]}, 6, v{t[3]}
    v_lshl_add_u32 v{vPA}, v{t[3]}, 10, v{t[2]}
    s_and_b32 s{sT0}, s{sW}, 1
    s_lshl_b32 s{sT0}, s{sT0}, 9
    v_add_u32 v{vPA}, s{sT0}, v{vPA}
    s_lshr_b32 s{sT0}, s{sW}, 1
    s_add_u32 s{sT0}, s{sT0}, 14
    s_lshl_b32 s{sT0}, s{sT0}, 9
    v_add_u32 v{vPO}, s{sT0}, v{t[2]}
    '''
    for a, b in ((sT0, sU0), (sT1, sU1), (sT2, sU2)): txt = re.sub(rf'\bs{a}\b', f's{b}', txt)
    L = [fI(l.strip()) for l in txt.strip().split('\n')]
    return L

def k_hooks(st, cfg):
    def pre(e, ep):
        e.wait(lg=['scw'])
        if st.cnt.get('K', 0) == 4:
            if st.k_ep is None: st.k_ep = ep
            if ep >= st.k_ep + cfg.sigK - 1: e.wait(vm=['K'])
    def post(e, ep): st.try_signal(e, 'K', 4)
    return pre, post

def phase2(e, st, cfg):
    ACC, QM = aA, cfg.QM
    T0 = 36 - QM
    def wreg(sq): return ar(aFR + 8 * (sq % 4), 8) if sq < T0 else vr(aB + 8 * (sq - T0), 8)
    def sub(r, o, n):
        k = r[0]; lo = int(r[2:r.index(':')]); return f'{k}[{lo+o}:{lo+o+n-1}]'
    def reads(sq):
        while (sq, 1) in st.qw: assert st.w2(e), ('no LDS block for W2', sq)
        e.wait(vm=[('W', sq)])
        a = st.w2blk[sq]; f = wreg(sq)
        for n in range(2):
            for j in range(2):
                e.D(f'ds_read_b64_tr_b16 {sub(f,4*n+2*j,2)}, v{vA2[a >> 16][n]} offset:{(a & 0xffff) + j * 1024}', ('w', sq))
    def need_h(sq):
        while (sq, 1) in st.qh: assert st.h(e), ('H not allowed yet', sq)
    def mf(x, sq):
        acc = vr(ACC + 16 * x, 16)
        e.I(f'v_mfma_f32_32x32x16_bf16 {acc}, {sub(wreg(sq),4*(x&1),4)}, {ar(hreg(sq)+4*(x>>1))}, ' + ('0' if sq == 0 else acc))
    def scale(x): return [f'v_mul_f32 v{ACC+16*x+r}, v{ACC+16*x+r}, v{vG0 + (x >> 1)}' for r in range(16)]
    red = lambda x, q: ((x - 1) * 2 + (q >> 1)) * 8192 + (q & 1) * 1024
    reads(0)
    extra = list(range(T0 + 1, 36))
    for t in range(T0):
        if cfg.fine and t < (23 if cfg.fine2 else 31): stamp(e, cfg, 16 + t)
        st.try_signal(e, 'B', 4, force=t >= cfg.sigB)
        if t == 14 - cfg.LHB - cfg.pollB: poll_issue(e, 2)
        if t == 28 - cfg.LH - cfg.pollO: poll_issue(e, 3)
        if t == 14 - cfg.LHB:
            need_h(13)
            while st.w2(e): pass
            print(f'  B check: W2 ops {72-len(st.qw)}', file=sys.stderr)
            stamp(e, cfg, 6); poll_check(e, cfg, 2); stamp(e, cfg, 7); st.h_ok = 27
            hmax = 27
            for _ in range(cfg.burst): st.h(e)
            st.lead = 1
        if t == 28 - cfg.LH:
            st.h_ok = 27; need_h(27); stamp(e, cfg, 8); poll_check(e, cfg, 3); stamp(e, cfg, 9); hmax = 35
            e.V(f'buffer_load_dword v{vG0}, v{vG0}, {srd(sWS)}, 0 offen sc1', 'g')
            e.V(f'buffer_load_dword v{vG1}, v{vG1}, {srd(sWS)}, 0 offen sc1', 'g')
        if t >= 14 - cfg.LHB: st.h_ok = min(hmax, t + cfg.LH)
        if t + 1 < 36: reads(t + 1)
        if extra and t >= T0 - QM + 1: reads(extra.pop(0))
        need_h(t)
        pre = []
        if t == 28:
            e.wait(vm=['g'])
            for s in scale(1): e.I(s)
            pre = [scale(2), scale(3), scale(0), []]
        e.wait(vm=[('H', t)], lg=[('w', t)])
        st.pool.add(st.w2blk[t])
        k = cfg.opseq
        for i, x in enumerate((1, 2, 3, 0)):
            mf(x, t)
            if pre:
                for s in pre[i]: e.I(s)
            if k > 0 and st.mem(e): k -= 1
            if k > 3 - i and st.mem(e): k -= 1
    assert not extra and {'A', 'B', 'K'} <= st.signalled
    st.h_ok = 35
    need_h(35)
    assert not st.qw and not st.qh
    stamp(e, cfg, 10)
    e.wait(lg_all=True)
    if T0 == 28:
        e.wait(vm=['g'])
        for s in scale(1): e.I(s)
    order = (1, 2, 3, 0)
    wr_op = lambda px, q: (lambda e: e.D(f'ds_write_b128 v{vWr}, {vr(ACC+16*px+4*q)} offset:{red(px,q)}', ('rw', px)))
    rd_op = lambda x, q: (lambda e: e.D(f'ds_read_b128 {vr(ACC+16*x+4*q)}, v{vRd[x-1]} offset:{red(x,q)}', ('rr', x)))
    padd = lambda d, a: [f'v_pk_add_f32 {vr(ACC+16*d+r,2)}, {vr(ACC+16*d+r,2)}, {vr(ACC+16*a+r,2)}' for r in range(0, 16, 2)]
    seqs = list(range(T0, 36))
    def ts(i):
        if cfg.fine2:
            e.I(('s_memrealtime' if cfg.rt else 's_memtime') + f' s[{40+2*i}:{41+2*i}]') if False else None
            stamp(e, cfg, 39 + i)
    for i, x in enumerate(order):
        ts(i)
        side = [fI(s)[1] for s in scale(order[i + 1])] if T0 == 28 and i < 3 else []
        wr = [wr_op(order[i - 1], q) for q in range(4)] if i > 0 else []
        for j, sq in enumerate(seqs):
            e.wait(vm=[('H', sq)])
            mf(x, sq)
            if i == 3 and j == 0:
                e.wait(lg=[('rw', 2)]); e.I('s_barrier')
                for xx in (1, 2):
                    for q in range(4): rd_op(xx, q)(e)
            k = -(-len(side) // (len(seqs) - j))
            for f in side[:k]: f(e)
            side = side[k:]
            if j >= 1:
                for f in wr[:2]: f(e)
                wr = wr[2:]
        for f in wr: f(e)
    ts(4)
    e.wait(lg=[('rr', 2)])
    for s in padd(1, 2): e.I(s)
    e.wait(lg=[('rw', 3)]); e.I('s_barrier')
    ts(5)
    for q in range(4): rd_op(3, q)(e)
    for s in padd(0, 1): e.I(s)
    e.wait(lg=[('rr', 3)])
    for s in padd(0, 3): e.I(s)
    ts(6)
    O = aK
    for i in range(8): e.I(f'v_cvt_pk_bf16_f32 v{O+i}, v{ACC+2*i}, v{ACC+2*i+1}')
    for b in (0, 4):
        e.I(f'v_permlane32_swap_b32 v{O+b}, v{O+b+2}'); e.I(f'v_permlane32_swap_b32 v{O+b+1}, v{O+b+3}')
    e.V(f'buffer_store_dwordx4 {vr(O)}, v{vOut}, {srd(sOUT)}, 0 offen {cfg.out_flag}', 'out')
    e.V(f'buffer_store_dwordx4 {vr(O+4)}, v{vOut}, {srd(sOUT)}, 0 offen offset:32 {cfg.out_flag}', 'out')
    stamp(e, cfg, 11)
    if cfg.stamps: e.wait(vm_all=True); stamp(e, cfg, 12)

def t3_tail(e, st, cfg, steps, nA):
    st.t3 = True
    P = aA
    G, G1, Z, vK, vKw, vKp = 60, 61, 62, 63, 85, 86
    def q_fill(acc, t):
        L = phi_fill(acc, 16, vT + 20)
        for i in range(8): L.append(fI(f'v_cvt_pk_bf16_f32 v{P+8*t+i}, v{acc+2*i}, v{acc+2*i+1}'))
        return L
    setup = [fI(l.strip()) for l in f"""v_lshlrev_b32 v{vK}, 5, v{vFl}
    s_lshl_b32 s{sU1}, s{sQH}, 2
    s_add_u32 s{sU1}, s{sU1}, s{sW}
    s_lshl_b32 s{sPoll}, s{sU1}, 12
    s_add_u32 s{sPoll}, s{sPoll}, {FK_OFF}
    s_lshl_b32 s{sU1}, s{sU1}, 13
    s_add_u32 s{sU1}, s{sU1}, {Z_OFF}
    s_add_u32 s{sU2}, s{sU1}, 4096
    v_mov_b32 v{Z}, 0
    v_add_u32 v{vKw}, s{sM4K}, v{vL16}
    s_lshl_b32 s{sU0}, s{sRB}, 2
    s_add_u32 s{sU0}, s{sU0}, s{sW}
    s_lshl_b32 s{sU0}, s{sU0}, 7
    s_add_u32 s{sU0}, s{sU0}, {G_OFF}""".split('\n')]
    kload = f'buffer_load_dword v{vKp}, v{vK}, {srd(sWS)}, s{sPoll} offen sc1'
    kpre, kpost = k_hooks(st, cfg)
    st.pre_barrier = kpre; st.post_barrier = kpost
    fill = setup + sum((q_fill(aA + 16 * t, t) for t in range(4)), [])
    run_steps(e, st, steps, nA, nA + 56, fill, cfg.fill3)
    k1, k2 = kv_fill(st, fill[6:16], fill[28:38])
    fill = fill[:6] + k1 + fill[16:28] + k2 + fill[38:]
    run_steps(e, st, steps, nA + 56, nA + 56 + 40, fill, cfg.fill)
    run_steps(e, st, steps, nA + 96, len(steps) - cfg.pollK, fill, cfg.fill3)
    e.V(kload, 'pk')
    run_steps(e, st, steps, len(steps) - cfg.pollK, len(steps), fill, cfg.fill3)
    print(f'  T3 left-over fillers {len(fill)}', file=sys.stderr)
    stamp(e, cfg, 4)
    assert st.cnt['K'] == 4
    e.wait(vm=['K']); e.I('s_barrier'); st.on_epoch(18); st.try_signal(e, 'K', 4)
    run_valu(e, st, fill)
    stamp(e, cfg, 5)
    e.wait(vm=['pk'])
    spin_check(e, cfg, 'kv', [kload], [vKp])
    stamp(e, cfg, 6)
    R, Q = aK, 64
    for h in range(2):
        for q in range(4):
            e.V(f'buffer_load_dwordx4 {vr(R+16*h+4*q)}, v{vL16}, {srd(sWS)}, s{sU1 if h == 0 else sU2} offen offset:{q*1024} sc1', ('kvl', h))
    lg = aB + 48
    q4 = q_fill(aB, 4)
    gops = [f'v_mul_f32 v{G}, 0xbfb8aa3b, v{lg}', f'v_exp_f32 v{G}, v{G}', f'v_add_f32 v{G}, 1.0, v{G}', f'v_rcp_f32 v{G}, v{G}', f'v_sub_f32 v{G1}, 1.0, v{G}']
    for i, g in enumerate(gops): q4.insert(8 + 3 * i, fI(g))
    q4.insert(30, fM(lambda e: st.pub(e, f'buffer_store_dword v{G1}, v{vFl}, {srd(sWS)}, s{sU0} offen sc1', 'O')))
    q5 = q_fill(aB + 16, 5); q6 = q_fill(aB + 32, 6)
    fs = lambda i: stamp(e, cfg, 16 + i) if cfg.fine else None
    fs(0)
    run_valu(e, st, q4 + q5[:cfg.t3c])
    fs(1)
    for h in range(2):
        e.wait(vm=[('kvl', h)])
        for i in range(8): e.I(f'v_cvt_pk_bf16_f32 v{Q+8*h+i}, v{R+16*h+2*i}, v{R+16*h+2*i+1}')
        pads = (6, 7) if h == 0 else (0, 1); m = sHiM if h == 0 else sLoM
        for i in pads: e.I(f'v_cndmask_b32_e64 v{Q+8*h+i}, v{Q+8*h+i}, v{Z}, s[{m}:{m+1}]')
        for j in range(2): e.D(f'ds_write_b128 v{vKw}, {vr(Q+8*h+4*j)} offset:{(2*h+j)*1024}', 'kvw')
    fs(2)
    rest = q5[cfg.t3c:]
    run_valu(e, st, rest[:12]); rest = rest[12:]
    e.wait(lg=['kvw']); e.I('s_barrier')
    fs(3)
    KF = 112
    for jj in range(8):
        for j in range(2): e.D(f'ds_read_b128 {ar(KF+8*jj+4*j)}, v{vL16} offset:{(2*jj+j)*1024}', ('kf', jj))
    N = [aK, aV, aB + 48, aB]
    def num(jj):
        u0 = (7 * jj) // 2; n = N[jj % 4]
        e.wait(lg=[('kf', jj)])
        e.I(f'v_mfma_f32_32x32x16_bf16 {vr(n,16)}, {ar(KF+8*jj)}, {vr(P+2*u0)}, 0')
        e.I(f'v_mfma_f32_32x32x16_bf16 {vr(n,16)}, {ar(KF+8*jj+4)}, {vr(P+2*u0+4)}, {vr(n,16)}')
    def factor(jj):
        n = N[jj % 4]; odd = jj & 1; D = vT + 8 + 4 * (jj & 1)
        dr = n + (0 if odd else 12); m = sLoM if odd else sHiM
        d = D if odd else D + 1
        return [f'v_add_f32 v{D}, s{sEPS}, v{dr}', f'v_add_f32 v{D+1}, s{sEPS}, v{dr}', None, None,
                f'v_permlane32_swap_b32 v{D}, v{D+1}', None, f'v_rcp_f32 v{D+2}, v{d}', None,
                f'v_mul_f32 v{D}, v{D+2}, v{G}', None, f'v_cndmask_b32_e64 v{D+2}, v{D}, v{Z}, s[{m}:{m+1}]']
    k = len(rest) // 3
    num(0); run_valu(e, st, rest[:k]); num(1); run_valu(e, st, rest[k:2*k]); num(2); run_valu(e, st, rest[2*k:])
    for s in factor(0):
        if s: e.I(s)
    for jj in range(8):
        n = N[jj % 4]; odd = jj & 1; D = vT + 8 + 4 * (jj & 1)
        fs(4 + jj)
        if jj == 3: run_valu(e, st, q6)
        if jj + 3 < 8: num(jj + 3)
        nxt = factor(jj + 1) if jj + 1 < 8 else []
        padr = range(0, 4) if odd else range(12, 16)
        O = 64 + 8 * (jj & 1)
        body = [f'v_pk_mul_f32 {vr(n+r,2)}, {vr(n+r,2)}, {vr(D+2 if r in padr else D,2)} op_sel_hi:[1,0]' for r in range(0, 16, 2)]
        body += [f'v_cvt_pk_bf16_f32 v{O+i}, v{n+2*i}, v{n+2*i+1}' for i in range(8)]
        for s in body:
            e.I(s)
            if nxt:
                s2 = nxt.pop(0)
                if s2: e.I(s2)
        e.I(f's_mov_b32 s{sSo}, {(jj >> 2) * 73728 + (jj & 3) * 4096}')
        for j in range(2):
            st.pub(e, f'buffer_store_dwordx4 {vr(O+4*j)}, v{vHst}, {srd(sWS)}, s{sSo} offen offset:{j*2048} {cfg.st_flag}', 'O')
    stamp(e, cfg, 7)
    st.try_signal(e, 'O', 17, force=True)
    stamp(e, cfg, 8)
    stamp_out(e, cfg)

def gen_all(cfg, code_bytes):
    OOL.clear()
    e = Em()
    if cfg.stamps:
        e.I('v_mov_b32 v35, 0'); stamp(e, cfg, 0)
        if cfg.rt: e.many('s_memtime s[100:101]\ns_waitcnt lgkmcnt(0)\nv_writelane_b32 v35, s100, 14')
    prologue1(e, cfg, code_bytes)
    st = St(cfg)
    n0 = 0
    while n0 < 8 and st.mem(e): n0 += 1
    for b, lo, size in ((sWS, 24, (STAMP_OFF + (1 << 20) if cfg.stamps else WS_USED)), (sDBG, 22, 256), (sOUT, 20, 2048 * 896)): mk_srd(e, b, lo, size)
    e.many(f'''
    s_bfe_u32 s{sGrp}, s2, 0x20003
    s_lshr_b32 s{sZi}, s2, 5
    s_lshl_b32 s{sZi}, s{sZi}, 3
    s_and_b32 s{sT0}, s2, 7
    s_add_u32 s{sZi}, s{sZi}, s{sT0}
    ''')
    if cfg.touch >= 1:
        e.I(f's_mov_b32 s{sSoH}, s{sSoF}')
        if cfg.touch != 3:
            touch_setup(e, 1)
            e.V(f'buffer_load_dword v{vPoll}, v{vTch}, {srd(sTC)}, 0 offen', 'tch')
        if cfg.touch >= 2: touch_setup(e, 2)
        e.I(f's_mov_b32 s{sSoF}, s{sSoH}')
    prologue1b(e, cfg)
    late = prologue1c(cfg)
    e.I(f'v_mov_b32 v{vONES}, 0x3f803f80')
    while n0 < cfg.n0 and st.mem(e): n0 += 1
    stamp(e, cfg, 1)
    dbg_ld = f'buffer_load_dword v{vDbg}, v{vL4}, {srd(sDBG)}, 0 offen sc1'
    def post(e, ep):
        if ep == 0: stamp(e, cfg, 2)
        if ep == 1:
            assert 'zero' not in e.vm
            e.many(f'''
            s_xor_b32 s{sT0}, s{sGrp}, 3
            s_or_b32 s{sT0}, s{sT0}, s{sW}
            s_cbranch_scc1 L_noflag
            s_lshl_b32 s{sT0}, s{sZi}, 2
            s_mov_b64 exec, 1
            ''')
            e.V(f'buffer_store_dword v{vONES}, off, {srd(sDBG)}, s{sT0} sc1', cond=True)
            e.I('s_mov_b64 exec, -1')
            e.label('L_noflag')
        if ep == 5:
            e.I(f's_mov_b32 m0, {GW_LDS}')
            e.V(f'buffer_load_dwordx4 v{vDG}, {srd(sGW)}, 0 offen lds', ('ep', 7))
            e.V(dbg_ld, 'dbg')
        if cfg.touch >= 2 and ep >= cfg.t2ep:
            gs = [g for g in range(4) if cfg.t2ep + g * cfg.t2step == ep]
            if gs:
                if len(gs) == 1:
                    e.I(f's_cmp_eq_u32 s{sGrp}, {gs[0]}'); e.I(f's_cbranch_scc0 L_tch{ep}')
                e.V(f'buffer_load_dword v{vTch}, v{vTch}, {srd(sTC)}, 0 offen', cond=True)
                e.label(f'L_tch{ep}')
    st.post_barrier = post
    A = steps_A(); steps2 = A + steps_K() + steps_B(False); steps3 = A + steps_K() + steps_B(True)
    for n in range(cfg.LA): issue_read(e, st, n, A[n])
    run_steps(e, st, steps2, 0, len(A), late, cfg.fillA)
    print(f'  end of pass A: fillers left {len(late)}', file=sys.stderr)
    run_valu(e, st, late)
    stamp(e, cfg, 3)
    e.wait(vm=['dbg'])
    spin_check(e, cfg, 'z', [dbg_ld], [vDbg])
    e.I(f's_cmp_eq_u32 s{sT3}, 1')
    e.I('s_cbranch_scc1 L_t3')
    e3 = e.fork(); st3 = st.clone()
    st.qw = [(sq, p) for sq in range(36) for p in range(2)]
    st.qh = [(sq, p) for sq in range(36) for p in range(2)]
    kpre, kpost = k_hooks(st, cfg)
    def post2(e, ep):
        kpost(e, ep)
        st.try_signal(e, 'A', 4, force=ep >= cfg.sigA)
        if ep == cfg.pA: poll_issue(e, 1)
        if ep == cfg.pA + 1:
            poll_check(e, cfg, 1); st.h_ok = 13
    st.pre_barrier = kpre; st.post_barrier = post2
    fill = sum((f_fill(st, aA + 16 * i, i, 0) for i in range(4)), [])
    run_steps(e, st, steps2, len(A), len(A) + 56, fill, cfg.fillK)
    print(f'  end of pass K: fillers left {len(fill)}', file=sys.stderr)
    k1, k2 = kv_fill(st)
    fill = fill + k1 + k2
    run_steps(e, st, steps2, len(A) + 56, len(steps2), fill, cfg.fill)
    assert not fill
    print(f'  end of pass B: W2 ops {72-len(st.qw)} H ops {72-len(st.qh)} pool {len(st.pool.free)}', file=sys.stderr)
    stamp(e, cfg, 4)
    e.wait(vm=['K']); e.I('s_barrier'); st.on_epoch(18); post2(e, 18); st.on_epoch(19)
    assert st.h_ok == 13
    run_valu(e, st, sum((f_fill(st, aB + 16 * i, i, 1) for i in range(4)), []))
    stamp(e, cfg, 5)
    print(f'  start of phase 2: W2 ops {72-len(st.qw)} H ops {72-len(st.qh)} pool {len(st.pool.free)}', file=sys.stderr)
    phase2(e, st, cfg)
    stamp_out(e, cfg)
    e.I('s_endpgm')
    e3.label('L_t3')
    t3_tail(e3, st3, cfg, steps3, len(A))
    e3.label('L_end')
    e3.I('s_endpgm')
    print(f'  nops T2 {e.nops} T3 {e3.nops}', file=sys.stderr)
    return e.text() + e3.text() + ''.join(OOL)

KD = '''.amdhsa_kernel {k}
  .amdhsa_next_free_vgpr 512
  .amdhsa_next_free_sgpr 102
  .amdhsa_accum_offset 256
  .amdhsa_group_segment_fixed_size 0
  .amdhsa_kernarg_size 88
  .amdhsa_user_sgpr_count 2
  .amdhsa_user_sgpr_kernarg_segment_ptr 1
  .amdhsa_system_sgpr_workgroup_id_x 1
  .amdhsa_float_denorm_mode_32 3
.end_amdhsa_kernel
'''
def build(cfg):
    k = NAME + '_kernel'
    body = gen_all(cfg, f'L_code_end-{k}-64')
    if cfg.skip:
        L = body.split('\n')
        if 'm' in cfg.skip: L = [l for l in L if not l.startswith((' v_mfma', ' ds_'))]
        if 'v' in cfg.skip: L = [l for l in L if not (l.startswith(' buffer_') and 'v35' not in l)]
        if 'p' in cfg.skip: L = [l for l in L if not l.startswith(' s_cbranch_scc0 L_spin')]
        if 's' in cfg.skip: L = [l for l in L if not (l.startswith((' buffer_store', ' buffer_atomic')) and 'v35' not in l)]
        if 'w' in cfg.skip: L = [l for l in L if not (l.startswith(' s_waitcnt vmcnt') and 'vmcnt(0)' not in l) and not l.startswith(' s_barrier')]
        if 'u' in cfg.skip: L = [l for l in L if not l.startswith((' v_max_f32', ' v_mul_f32', ' v_exp', ' v_cvt', ' v_add_f32', ' v_pk_', ' s_nop', ' v_cndmask_b32_e64'))]
        if 'k' in cfg.skip: L = [l for l in L if not l.startswith(f' buffer_load_dwordx4 v{vD2},')]
        body = '\n'.join(L)
    o = f'; {NAME}: generated by gen/gen3.py\n'
    o += f'; @launch grid=(256,1,1) block=(256,1,1) lds={LDS_BYTES}\n'
    o += '.amdgcn_target "amdgcn-amd-amdhsa--gfx950"\n.text\n'
    o += f'.globl {k}\n.p2align 8\n.type {k},@function\n{k}:\n{body}L_code_end:\n s_endpgm\n'
    o += '.section .rodata,"a"\n.p2align 6\n' + KD.format(k=k)
    return o

if __name__ == '__main__':
    cfg = Cfg(); out = None
    for a in sys.argv[1:]:
        if '=' in a:
            k, v = a.split('=', 1); cur = getattr(cfg, k)
            setattr(cfg, k, (v == '1') if isinstance(cur, bool) else type(cur)(v))
        else: out = a
    open(out or f'cdna_kernels/{NAME}.s', 'w').write(build(cfg))
```

```python
import sys
import gen3 as G
def addz(src, dst, A, B, M=10, pre=False):
    s = open(src).read()
    lines = s.split('\n')
    last = max(i for i, l in enumerate(lines) if '@launch' in l)
    if 'kernel=' not in lines[last]:
        lines[last] = lines[last].replace('@launch ', f'@launch kernel={G.NAME}_kernel ')
    lines.insert(last + 1, '; @launch kernel=z_kernel grid=(1,1,1) block=(64,1,1) lds=0')
    if pre: lines.insert(last, '; @launch kernel=y_kernel grid=(224,1,1) block=(256,1,1) lds=0')
    s = '\n'.join(lines)
    b = '''.globl z_kernel
.p2align 8
.type z_kernel,@function
z_kernel:
 s_memrealtime s[24:25]
 s_cmp_lg_u32 s2, 0
 s_cbranch_scc1 Lz_end
 s_load_dwordx2 s[4:5], s[0:1], 80
 v_lshlrev_b32 v1, 8, v0
 s_waitcnt lgkmcnt(0)
 s_mov_b32 s8, s4
 s_mov_b32 s9, s5
 s_mov_b32 s10, %d
 s_mov_b32 s11, 0x20000
''' % (G.STAMP_OFF + (1 << 20))
    for k, (base, n, idx, op) in enumerate((A, B)):
        if op == 'now':
            b += f' s_mov_b32 s{20+k}, s24\n'; continue
        for i in range(n):
            b += f' s_mov_b32 s12, {G.STAMP_OFF + base + i * 16384 + idx * 4}\n buffer_load_dword v{2+i}, v1, s[8:11], s12 offen\n'
        b += ' s_waitcnt vmcnt(0)\n'
        if op == 'pmean':
            pass
        for i in range(1, n): b += f' v_{op}_u32 v2, v2, v{2+i}\n'
        b += f' s_nop 1\n v_readlane_b32 s{20+k}, v2, 0\n'
        for l in range(1, 64): b += f' v_readlane_b32 s13, v2, {l}\n s_nop 1\n s_{op}_u32 s{20+k}, s{20+k}, s13\n'
    b += f''' s_sub_u32 s20, s21, s20
 s_min_u32 s20, s20, 10000
 s_mul_i32 s20, s20, {M}
 s_memrealtime s[14:15]
 s_waitcnt lgkmcnt(0)
Lz_spin:
 s_memrealtime s[16:17]
 s_waitcnt lgkmcnt(0)
 s_sub_u32 s16, s16, s14
 s_cmp_lt_u32 s16, s20
 s_cbranch_scc1 Lz_spin
Lz_end:
 s_endpgm
'''
    KD = '''.p2align 6
.amdhsa_kernel z_kernel
  .amdhsa_next_free_vgpr 64
  .amdhsa_next_free_sgpr 102
  .amdhsa_accum_offset 64
  .amdhsa_group_segment_fixed_size 0
  .amdhsa_kernarg_size 88
  .amdhsa_user_sgpr_count 2
  .amdhsa_user_sgpr_kernarg_segment_ptr 1
  .amdhsa_system_sgpr_workgroup_id_x 1
.end_amdhsa_kernel
'''
    if pre:
        b += '''.globl y_kernel
.p2align 8
.type y_kernel,@function
y_kernel:
 s_cmp_ge_u32 s2, 224
 s_cbranch_scc1 Ly_end
 s_load_dwordx2 s[4:5], s[0:1], 80
 v_lshlrev_b32 v1, 2, v0
 s_lshl_b32 s12, s2, 10
 s_add_u32 s12, s12, %d
 s_waitcnt lgkmcnt(0)
 s_mov_b32 s8, s4
 s_mov_b32 s9, s5
 s_mov_b32 s10, %d
 s_mov_b32 s11, 0x20000
 s_memrealtime s[24:25]
 s_waitcnt lgkmcnt(0)
 v_mov_b32 v2, s24
 buffer_store_dword v2, v1, s[8:11], s12 offen
Ly_end:
 s_endpgm
''' % (G.STAMP_OFF + (1 << 18), G.STAMP_OFF + (1 << 20))
        KD = KD + KD.replace('z_kernel', 'y_kernel')
    s = s.replace('.section .rodata,"a"\n', b + '.section .rodata,"a"\n') + KD
    open(dst, 'w').write(s)
if __name__ == '__main__':
    src = sys.argv[1]
    for i, spec in enumerate(sys.argv[2:]):
        P = []
        for t in spec.split('-'):
            k, idx, op = t.split(':')
            P.append((0 if k == '1' else 1 << 18, 16 if k == '1' else 14, int(idx), op))
        addz(src, f'z{i}.s', P[0], P[1], pre=any(p[0] for p in P))
```

```python
import re, copy

_REG = re.compile(r'^(-|abs\()?([vas])(?:\[(\d+):(\d+)\]|(\d+))\)?$')
TRANS = ('v_exp_f32', 'v_log_f32', 'v_rcp_f32', 'v_rsq_f32', 'v_sqrt_f32', 'v_sin_f32', 'v_cos_f32')

def regs_of(op):
    op = op.strip()
    if op in ('vcc', 'exec', 'm0', 'scc'):
        return {op}
    if op in ('vcc_lo', 'vcc_hi'): return {'vcc'}
    if op in ('exec_lo', 'exec_hi'): return {'exec'}
    m = _REG.match(op)
    if not m: return set()
    k = m.group(2)
    if m.group(5) is not None: return {k + m.group(5)}
    return {k + str(i) for i in range(int(m.group(3)), int(m.group(4)) + 1)}

class Ins:
    __slots__ = ('text', 'op', 'cls', 'w', 'r', 'a', 'b', 'c', 'passes', 'states', 'wide')
    def __init__(self, text):
        self.text = text
        t = text.split(';')[0].strip()
        parts = t.split(None, 1)
        op = self.op = parts[0]
        rest = parts[1] if len(parts) > 1 else ''
        ops = [o.strip() for o in rest.split(',')] if rest else []
        mods = ''
        if ops:
            l = ops[-1].split(None, 1)
            ops[-1] = l[0]; mods = l[1] if len(l) > 1 else ''
        ops = [o.split(None, 1)[0] if o else o for o in ops]
        R = [regs_of(o) for o in ops]
        allr = set().union(*R) if R else set()
        self.w = set(); self.r = set(); self.a = self.b = self.c = set(); self.passes = 0; self.states = 1; self.wide = False
        if op.startswith('v_mfma'):
            self.cls = 'mfma'; self.w = R[0]; self.a, self.b, self.c = R[1], R[2], R[3]
            self.r = R[1] | R[2] | R[3]
            self.passes = 8 if '32x32' in op else 4
        elif op.startswith('v_'):
            self.cls = 'valu'
            self.w = set(R[0]); self.r = set().union(*R[1:]) if len(R) > 1 else set()
            if op.startswith('v_permlane'): self.w = set(allr); self.r = set(allr)
            if op.startswith('v_fmac') or op.startswith('v_pk_fmac'): self.r |= R[0]
            if op.startswith('v_cndmask') and len(R) == 3: self.r |= {'vcc'}
            if op.startswith('v_cmpx'): self.w |= {'exec'}
        elif op.startswith('ds_'):
            self.cls = 'ds'
            if op.startswith('ds_read') or 'permute' in op or 'swizzle' in op:
                self.w = R[0]; self.r = set().union(*R[1:])
            else:
                self.r = allr
        elif op.startswith('buffer_') or op.startswith('global_'):
            self.cls = 'vmem'
            lds = ' lds' in (' ' + text.split(';')[0])
            if 'load' in op and not lds:
                self.w = R[0]; self.r = set().union(*R[1:])
            else:
                self.r = set(allr)
                if lds: self.r |= {'m0'}
                if 'atomic' in op and 'sc0' in mods: self.w = R[0]
                if 'store' in op and ('x4' in op or 'x3' in op):
                    self.wide = True; self.a = R[0] if op.startswith('buffer_') else R[1]
        elif op == 's_nop':
            self.cls = 'nop'; self.states = int(ops[0], 0) + 1
        elif op.startswith('s_'):
            self.cls = 'salu'
            if op.startswith(('s_cmp', 's_cmpk', 's_waitcnt', 's_barrier', 's_branch', 's_cbranch', 's_sleep', 's_setprio', 's_endpgm', 's_bitcmp')):
                self.r = allr
            else:
                self.w = set(R[0]) if R else set(); self.r = set().union(*R[1:]) if len(R) > 1 else set()
                if 'saveexec' in op: self.w |= {'exec'}
        else:
            raise ValueError('unknown instruction ' + text)

def need(p, c):
    n = 0
    isv = lambda s: {x for x in s if x[0] in 'va' and x != 'vcc'}
    iss = lambda s: {x for x in s if x[0] == 's' or x == 'vcc'}
    if p.cls == 'valu':
        pw = isv(p.w); ps = iss(p.w)
        if c.cls == 'mfma' and pw & c.r: n = max(n, 2)
        if c.cls == 'valu':
            if c.op.startswith('v_permlane') and pw & c.r: n = max(n, 2)
            if c.op.startswith(('v_readfirstlane', 'v_readlane')) and pw & c.r: n = max(n, 1)
            if 'dpp' in c.text or 'row_' in c.text or 'quad_perm' in c.text:
                if pw & c.r: n = max(n, 2)
            if p.op.startswith(TRANS) and pw & c.r: n = max(n, 1)
            if ps & c.r: n = max(n, 4 if c.op.startswith(('v_readlane', 'v_writelane')) else 2)
        if p.op.startswith(TRANS) and c.cls in ('vmem', 'ds') and pw & c.r: n = max(n, 1)
        if c.cls == 'vmem' and ps & c.r: n = max(n, 5)
        if c.cls == 'salu' and ps & c.r: n = max(n, 1)
        if 'exec' in p.w and c.cls == 'mfma': n = max(n, 4)
    elif p.cls == 'mfma':
        big = p.passes == 8
        if c.cls == 'mfma':
            if p.w & (c.a | c.b): n = max(n, 12 if big else 8)
            if p.w & c.c:
                if not (p.w == c.c and p.passes == c.passes): n = max(n, 10 if big else 6)
            elif p.w & c.w: n = max(n, 10 if big else 6) if p.w != c.w else n
        elif c.cls in ('valu', 'vmem', 'ds'):
            if p.w & (c.r | c.w): n = max(n, 12 if big else 8)
            if c.cls == 'valu' and p.c & c.w: n = max(n, 7 if big else 3)
    elif p.cls == 'salu':
        if 'm0' in p.w and 'm0' in c.r: n = max(n, 1)
    elif p.cls == 'vmem':
        if p.wide and p.a & c.w: n = max(n, 2)
    return n

class Em:
    def __init__(self):
        self.out = []; self.hist = []; self.vm = []; self.lg = []; self.nops = 0; self.n_mfma = 0
        self.prev_valu = False; self.clk = 0; self.last_mfma = -99; self.last_vm = -999
    def fork(self):
        e = Em(); e.hist = list(self.hist); e.vm = list(self.vm); e.lg = list(self.lg)
        e.clk = self.clk; e.last_mfma = self.last_mfma; e.last_vm = self.last_vm; return e
    def raw(self, s): self.out.append(s)
    def label(self, name): self.out.append(name + ':')
    def pad_needed(self, ins):
        d = 0; worst = 0
        for p in reversed(self.hist):
            worst = max(worst, need(p, ins) - d)
            d += p.states
            if d > 20: break
        return worst
    def I(self, text):
        ins = Ins(text)
        k = self.pad_needed(ins)
        if (k == 1 and len(self.hist) >= 2 and self.hist[-1].w == {'m0'} and 'm0' in ins.r
                and self.hist[-2].cls in ('mfma', 'valu', 'ds') and not (self.hist[-2].w & self.hist[-1].r)
                and self.out[-1] == ' ' + self.hist[-1].text and self.out[-2] == ' ' + self.hist[-2].text):
            self.out[-1], self.out[-2] = self.out[-2], self.out[-1]
            self.hist[-1], self.hist[-2] = self.hist[-2], self.hist[-1]
            k = self.pad_needed(ins)
        if k > 0:
            self.nops += k
            nop = Ins(f's_nop {k-1}'); self.out.append(' ' + nop.text); self.hist.append(nop)
        self.out.append(' ' + text); self.hist.append(ins)
        if len(self.hist) > 40: del self.hist[:-24]
        self.clk += 4 * max(k, 0)
        if ins.cls in ('ds', 'vmem') and self.prev_valu: self.clk += 8
        if ins.cls in ('valu', 'mfma', 'ds', 'vmem'): self.prev_valu = ins.cls == 'valu'
        if ins.cls == 'mfma':
            self.n_mfma += 1
            self.clk = max(self.clk, self.last_mfma + 4 * ins.passes); self.last_mfma = self.clk; self.clk += 8
        elif ins.op.startswith(TRANS) or ins.op.startswith('v_pk_'): self.clk += 8
        elif ins.op == 's_barrier': self.clk += 24
        elif ins.op.startswith('ds_write_b128'): self.clk += 16
        else: self.clk += 4 * ins.states
        if ins.cls == 'vmem': self.last_vm = self.clk
        return ins
    def many(self, block):
        for l in block.strip().split('\n'):
            l = l.strip()
            if not l or l.startswith(';'): continue
            if l.endswith(':'): self.label(l[:-1])
            else: self.I(l)
    def V(self, text, tag=None, cond=False):
        self.I(text)
        if not cond: self.vm.append(tag)
    def D(self, text, tag=None):
        self.I(text); self.lg.append(tag)
    def _cnt(self, q, tags, cap):
        idx = -1
        for i, t in enumerate(q):
            if t in tags: idx = i
        if idx < 0: return None
        n = len(q) - 1 - idx
        n = min(n, cap)
        del q[:len(q) - n]
        return n
    def wait(self, vm=(), lg=(), vm_all=False, lg_all=False):
        a = b = None
        if vm_all: a = 0; self.vm = []
        elif vm: a = self._cnt(self.vm, set(vm), 62)
        if lg_all: b = 0; self.lg = []
        elif lg: b = self._cnt(self.lg, set(lg), 14)
        s = []
        if a is not None: s.append(f'vmcnt({a})')
        if b is not None: s.append(f'lgkmcnt({b})')
        if s: self.I('s_waitcnt ' + ' '.join(s))
    def text(self): return '\n'.join(self.out) + '\n'
```

```python
import sys, copy, re
from emit import Em

NAME = 'gated_mix__linear_attn_block__glu_gated_reglu__prompt'
H_BYTES = 32 * 4 * 36 * 2048
P_OFF = H_BYTES
CS = 32768 + 512
KV_OFF = P_OFF + 112 * CS
G_OFF = KV_OFF + 32 * 2048
FR_OFF = G_OFF + 8192
FK_OFF = FR_OFF + 131072
WS_USED = FK_OFF + 16384
NZ = 36
STAMP_OFF = 16 << 20
LOG2E = 0x3fb8aa3b
EPS = 0x358637bd
LDS_BYTES = 160 * 1024

class Cfg:
    LA = 5; WP = 2; LK = 2
    gap = 50; dgap = 20; dgap2 = 44; sgap = 20
    fillK = 48; fillA = 200; fillB = 38; fill3 = 38
    st_flag = 'sc1'; out_flag = ''
    touch = 2; tg = '1,2,3,1'
    zep = 5
    sigP = 12; sigA = 18; pA = 19; ageP = 7; ageA = 9; nP = 40; dP = 14
    vgap = 999; opseq = 4
    LH = 5; LHB = 2; LHO = 6; pollB = 2; pollO = 3; sigB = 2; burst = 8
    pre_age = 10; wstart = 7
    pP = 10; t3c = 60; t3k = 70; pburst = 7; kvr = 1; kvage = 8; gap3 = 90; fill3b = 34
    psleep = 2; spin = 4000
    stamps = False; rt = False; fine = False; skip = ''

sX, sQKV, sI0, sI1, sWS, sDBG, sWD, sWO, sOUT, sGW, sCODE = [28 + 4 * i for i in range(11)]
sW, sRB, sC, sRT, sCT, sQH, sGrp, sZi = range(72, 80)
sM1K, sM2K, sM4K, sSoF, sSoJ, sT0, sT1, sT2, sSo, sEPS, sL2E, sPhiC = range(80, 92)
sPadM, sLoM, sHiM = 92, 94, 96
sPhiB, sPoll = 98, 99
sSoH, sSigR, sSoW, sDW2 = 26, 27, 10, 11
sU0, sU1, sU2 = 0, 1, 3
sTC = sCODE
def srd(b): return f's[{b}:{b+3}]'

vL, vL16, vL4, vD0, vD1, vJ0, vJ1, vHst, vPst, vAK, vAV, vONES, vDbg, vAG, vFv, vTch = range(1, 17)
vAX = [17, 18, 19, 20]
vAF = [[21 + 4 * w + t for t in range(4)] for w in range(3)]
vFl = 33
vT = 36
vDW0, vDW1, vH0, vH1, vG0, vG1, vOut, vWr, vPoll = range(60, 69)
vA2 = [[69, 70], [71, 72], [73, 74]]
vRd = [75, 76, 77]
vPA, vPO = 78, 79
vDX = [80, 81, 82, 83]
aK, aV, aA, aB = 96, 112, 128, 192
aFR = 224
XB, JB, FB = 0, 48 * 1024, 104 * 1024
def hreg(sq): return 8 * sq if sq < 28 else 8 * (sq - 28)
def vr(b, n=4): return f'v[{b}:{b+n-1}]'
def ar(b, n=4): return f'a[{b}:{b+n-1}]'
def sub(r, o, n):
    k = r[0]; lo = int(r[2:r.index(':')]); return f'{k}[{lo+o}:{lo+o+n-1}]'
def srd_txt(b, lo, size): return f's_mov_b32 s{b}, s{lo}\ns_mov_b32 s{b+1}, s{lo+1}\ns_mov_b32 s{b+2}, {size}\ns_mov_b32 s{b+3}, 0x20000\n'
def log(*a): print('  ', *a, file=sys.stderr)

def stamp(e, cfg, i):
    if cfg.stamps:
        e.wait(lg_all=True)
        e.I(('s_memrealtime' if cfg.rt else 's_memtime') + ' s[100:101]'); e.I('s_waitcnt lgkmcnt(0)')
        e.I(f'v_writelane_b32 v35, s100, {i}')
def stamp_out(e, cfg):
    if not cfg.stamps: return
    if cfg.rt:
        e.many(f'''
        s_memtime s[100:101]
        v_readlane_b32 s{sT0}, v35, 14
        s_waitcnt lgkmcnt(0)
        s_sub_u32 s{sT0}, s100, s{sT0}
        s_lshr_b32 s{sT0}, s{sT0}, 4
        v_writelane_b32 v35, s{sT0}, 14
        s_memrealtime s[100:101]
        v_readlane_b32 s{sT0}, v35, 0
        s_waitcnt lgkmcnt(0)
        s_sub_u32 s{sT0}, s100, s{sT0}
        v_writelane_b32 v35, s{sT0}, 15
        ''')
    e.many(f's_lshl_b32 s{sT0}, s2, 2\ns_add_u32 s{sT0}, s{sT0}, s{sW}\ns_lshl_b32 s{sT0}, s{sT0}, 8\ns_add_u32 s{sT0}, s{sT0}, {STAMP_OFF}')
    e.V(f'buffer_store_dword v35, v{vL4}, {srd(sWS)}, s{sT0} offen', 'st')

class Pool:
    def __init__(self): self.free = []
    def add(self, addr): assert addr not in self.free; self.free.append(addr)
    def take(self, keep=0):
        if len(self.free) <= keep: return None
        return self.free.pop(0)

class St:
    def __init__(self, cfg, t3):
        self.cfg = cfg; self.t3 = t3
        self.pool = Pool(); self.wpool = Pool()
        for i in range(7): self.pool.add(FB + 8192 * i)
        self.fblk = {}; self.w2blk = {}
        q = []
        for s in range(7):
            q += [('x', s, j) for j in range(4)]
            if t3: q += [('f', 0, p, i) for p in (2 * s, 2 * s + 1) for i in (0, 1)]
            else: q += [('j', s, 0), ('j', s, 1)]
        for ps in ((1,) if t3 else (0, 1)):
            for p in range(14): q += [('f', ps, p, 0), ('f', ps, p, 1)]
        self.q = q; self.qw = []; self.qh = []
        self.e0 = {'K': 0, 0: 0 if t3 else 7, 1: 7 if t3 else 14}
        self.xpass = 0 if t3 else 'K'
        self.epoch = -1; self.h_ok = -1; self.a_ok = False
        self.cnt = {}; self.signalled = set(); self.x_issued = -1
        self.rd_done = []; self.rd_next = 0; self.rd_part = 0
        self.m0 = None
        self.pre_barrier = self.post_barrier = None
    def ep_of(self, ps, ks): return self.e0[ps] + ks // 4
    def dep(self, d): return d[1] if d[0] in 'xj' else self.ep_of(d[1], 2 * d[2])
    def free_epoch(self, ps, pair): return self.ep_of(ps, 2 * pair) + (2 if pair & 1 else 1)
    def demand(self, e):
        if not self.q or self.m0 == 'w': return False
        cfg = self.cfg; d = self.q[0]; tag = ('ep', self.dep(d))
        if self.m0 is None and self.dep(d) > max(self.epoch, 0) + cfg.LK: return False
        if d[0] == 'x':
            _, s, j = d
            if j == 0:
                if s >= 3 and (self.x_issued < 4 * s - 9 or ('x', 4 * s - 9) in e.lg): return False
                e.I(f's_add_u32 m0, s{sM4K}, {XB + (s % 3) * 16384}')
                if s: e.I(f's_movk_i32 s{sSoH}, {s * 128}')
            e.V(f'buffer_load_dwordx4 v{vDX[j]}, {srd(sX)}, ' + (f's{sSoH}' if s else '0') + f' offen offset:{j * 1024} lds', tag)
            self.m0 = 'd' if j < 3 else None
        elif d[0] == 'j':
            _, s, j = d
            if j == 0:
                e.I(f's_add_u32 m0, s{sM2K}, {JB + s * 8192}')
                if s: e.I(f's_mov_b32 s{sSoJ}, {s * 64 * 2688}')
            e.V(f'buffer_load_dwordx4 v{vJ0 + j}, {srd(sQKV)}, ' + (f's{sSoJ}' if s else '0') + f' offen offset:{j * 1024} lds', tag)
            self.m0 = 'd' if j < 1 else None
        else:
            _, ps, p, img = d
            stride = 2688 if self.t3 else 3584
            so = p * 32 * stride + ps * (256 if self.t3 else 128)
            if img == 0:
                a = self.pool.take()
                if a is None: return False
                self.fblk[(ps, p)] = a
                e.I(f's_add_u32 m0, s{sM2K}, {a}')
                if so: e.I(f's_mov_b32 s{sSoF}, {so}')
            e.V(f'buffer_load_dwordx4 v{vD0 + img}, {srd(sI0 + 4 * img)}, ' + (f's{sSoF}' if so else '0') + f' offen offset:{img * 1024} lds', tag)
            self.m0 = 'd' if img < 1 else None
        self.q.pop(0)
        return True
    def w2(self, e):
        if not self.qw or self.epoch < self.cfg.wstart or self.m0 == 'd': return False
        sq, part = self.qw[0]
        if sq < 28:
            p, s2 = divmod(sq, 14); row = 256 * (s2 >> 1) + 16 * (s2 & 1) + 64 * p; sr = sWD
        else:
            hh, j = divmod(sq - 28, 2); row = 28 * hh - 4 * (hh & 1) + 16 * j; sr = sWO
        if part == 0:
            for s2 in [x for x in self.rd_done if ('w2', x) not in e.lg]:
                self.rd_done.remove(s2); self.wpool.add(self.w2blk[s2])
            left = sum(1 for d in self.q if d[0] == 'f' and d[3] == 0)
            a = self.wpool.take()
            if a is None: a = self.pool.take(keep=min(left, 2))
            if a is None: return False
            self.w2blk[sq] = a
            if sq == 28:
                e.I(f'v_add_u32 v{vDW0}, s{sDW2}, v{vDW0}'); e.I(f'v_add_u32 v{vDW1}, s{sDW2}, v{vDW1}')
            e.I(f's_add_u32 m0, s{sM2K}, {a}')
            e.I(f's_mov_b32 s{sSoW}, {row * 896}')
        e.V(f'buffer_load_dwordx4 v{vDW0 + part}, {srd(sr)}, s{sSoW} offen offset:{part * 1024} lds', ('W', sq))
        self.m0 = 'w' if part == 0 else None
        self.qw.pop(0)
        return True
    def wreg(self, sq):
        return ar(112 + 8 * sq, 8) if sq < 14 else (ar(aFR + 8 * (sq % 4), 8) if sq < 28 else vr(aB + 8 * (sq - 28), 8))
    def wread(self, e, sq, parts=(0, 1)):
        a = self.w2blk[sq]; f = self.wreg(sq)
        for n in parts:
            for j in range(2):
                e.D(f'ds_read_b64_tr_b16 {sub(f,4*n+2*j,2)}, v{vA2[a >> 16][n]} offset:{(a & 0xffff) + j * 1024}', ('w2', sq))
        if 1 in parts: self.rd_done.append(sq)
    def preread(self, e):
        sq = self.rd_next
        if sq >= 14 or sq not in self.w2blk or (sq, 1) in self.qw: return False
        if ('W', sq) in e.vm:
            if len(e.vm) - 1 - max(i for i, t in enumerate(e.vm) if t == ('W', sq)) < self.cfg.pre_age: return False
            e.wait(vm=[('W', sq)])
        self.wread(e, sq, (self.rd_part,))
        self.rd_part ^= 1
        if self.rd_part == 0: self.rd_next += 1
        return True
    def h(self, e):
        if not self.qh or self.qh[0][0] > self.h_ok: return False
        sq, b = self.qh.pop(0)
        if b == 0 and sq % 2 == 0: e.I(f's_mov_b32 s{sSoH}, {sq * 2048}')
        e.V(f'buffer_load_dwordx4 {ar(hreg(sq)+4*b)}, v{vH0+b}, {srd(sWS)}, s{sSoH} offen offset:{(sq & 1) * 2048} sc1', ('H', sq))
        return True
    def mem(self, e):
        if self.demand(e): return True
        wn = self.qw[0][0] if self.qw else 99; hn = self.qh[0][0] if self.qh else 99
        order = (self.w2, self.h) if wn <= hn + 1 or self.m0 == 'w' else (self.h, self.w2)
        return order[0](e) or order[1](e)
    def on_epoch(self, ep):
        self.epoch = ep
        for (ps, p), a in self.fblk.items():
            if self.free_epoch(ps, p) == ep: self.pool.add(a)
        if self.t3: return
        if 6 <= ep <= 8:
            a = XB + ((ep - 2) % 3) * 16384; self.pool.add(a); self.pool.add(a + 8192)
        if 2 <= ep <= 8: self.pool.add(JB + 8192 * (ep - 2))
    def pub(self, e, text, tag):
        e.V(text, tag); self.cnt[tag] = self.cnt.get(tag, 0) + 1
    def try_signal(self, e, tag, n, force=False, age=None):
        if tag in self.signalled or self.cnt.get(tag, 0) < n: return
        if age is not None and tag in e.vm and len(e.vm) - 1 - max(i for i, t in enumerate(e.vm) if t == tag) >= age: force = True
        if force: e.wait(vm=[tag])
        if tag in e.vm: return
        assert 'z' in self.signalled
        if tag == 'P': e.V(f'buffer_store_dword v{vFv}, v{vFl}, {srd(sWS)}, s{sSigR} offen sc1', 'sig'); e.I(f'v_mov_b32 v{vDbg}, 2')
        elif tag == 'A': e.V(f'buffer_store_dword v{vDbg}, v{vFl}, {srd(sWS)}, s{sSigR} offen sc1', 'sig')
        else: e.V(f'buffer_store_dword v{vONES}, v{vFl}, {srd(sWS)}, s{sSoW if tag == "K" else sSigR} offen sc1', 'sig')
        self.signalled.add(tag)
        log(f'signal {tag} at epoch {self.epoch} mfma {e.n_mfma}')

def steps(ps, tiles): return [(ps, ks, t) for ks in range(28) for t in tiles]

def issue_read(e, st, S, n):
    cfg = st.cfg
    ps, ks, t = S[n]
    ep = st.ep_of(ps, ks)
    if ep != st.epoch:
        while st.q and st.dep(st.q[0]) <= ep: assert st.mem(e), ('DMA cannot be issued in time', st.q[0], ep)
        if st.pre_barrier: st.pre_barrier(e, ep)
        e.wait(vm=[('ep', ep)])
        e.I('s_barrier')
        st.on_epoch(ep); st.n_ep = n
        if cfg.fine and ep > 0: stamp(e, cfg, 43 + ep)
        if st.post_barrier: st.post_barrier(e, ep)
    if ps == st.xpass and n - st.n_ep < 4:
        q = n - st.n_ep
        e.D(f'ds_read_b128 {ar(4*(4*ep+q))}, v{vAX[q]} offset:{XB + (ep % 3) * 16384}', ('x', 4 * ep + q)); st.x_issued = 4 * ep + q
    fr = aFR + 4 * (n % 8)
    if t == 'g':
        e.D(f'ds_read_b128 {ar(fr)}, v{vAG} offset:{ks * 32}', ('w', n)); return
    if ps == 'K': reg = vAK + t; off = ks * 2048
    else:
        a = st.fblk[(ps, ks // 2)]
        reg = vAF[a >> 16][t]; off = (a & 0xffff) + (ks & 1) * 4096
    e.D(f'ds_read_b64_tr_b16 {ar(fr,2)}, v{reg} offset:{off}', ('w', n))
    e.D(f'ds_read_b64_tr_b16 {ar(fr+2,2)}, v{reg} offset:{off+512}', ('w', n))

def issue_mfma(e, st, S, n):
    ps, ks, t = S[n]
    fr = ar(aFR + 4 * (n % 8)); x = ar(4 * ks)
    e.wait(lg=[('w', n), ('w', n | (st.cfg.WP - 1)), ('x', ks)])
    if ps == 'K':
        acc = vr(aK + 16 * t, 16); a, b = x, fr
    else:
        acc = vr((aA, aB)[ps] + 16 * (3 if t == 'g' else t), 16); a, b = fr, x
    e.I(f'v_mfma_f32_32x32x16_bf16 {acc}, {a}, {b}, ' + ('0' if ks == 0 else acc))

def gap(e, st, fillers, fill, reads=None, tail=0, dg=None):
    cfg = st.cfg; t0 = e.last_mfma
    def gates():
        while fillers and fillers[0][0] == 'g' and fillers[0][1](): fillers.pop(0)
    gates()
    if not st.t3:
        st.try_signal(e, 'P', 4, age=cfg.ageP); st.try_signal(e, 'A', 4, age=cfg.ageA)
    idle = e.clk - e.last_vm; did = False
    if fillers and fillers[0][0] == 'm' and idle >= cfg.sgap: fillers.pop(0)[1](e); did = True
    elif idle >= dg and st.demand(e): did = True
    elif idle >= (cfg.gap3 if st.t3 else cfg.gap) and st.mem(e): did = True
    if reads: reads()
    gates(); k = 0
    while fillers and fillers[0][0] == 'd' and (k == 0 or e.clk - t0 + tail + 4 * fillers[0][2] <= fill):
        fillers.pop(0)[1](e); k += 1
    if not did and not k: st.preread(e)
    while fillers and fillers[0][0] == 'i' and e.clk - t0 + tail + 4 * fillers[0][2] <= fill:
        fillers.pop(0)[1](e)

def run_steps(e, st, S, lo, hi, fillers=None, fill=0, hook=None):
    cfg = st.cfg
    for n in range(lo, hi):
        issue_mfma(e, st, S, n)
        rd = (lambda: issue_read(e, st, S, n + cfg.LA)) if n + cfg.LA < len(S) else None
        gap(e, st, fillers, fill, rd, 4 if (n + 1) % cfg.WP == 0 else 0, cfg.dgap if st.epoch < 6 else cfg.dgap2)
        if hook: hook(n)
        if st.a_ok and S[n][0] == 1: st.h_ok = min(13, S[n][1] // 2 - 1)

def run_valu(e, st, fillers):
    for f in fillers:
        if f[0] == 'g': assert f[1](); continue
        f[1](e)
        if e.clk - e.last_vm >= st.cfg.vgap: st.mem(e)
    fillers.clear()

def fI(text, cost=1): return ('i', lambda e: e.I(text), cost)
def fF(fn, cost=1): return ('i', fn, cost)
def fM(fn): return ('m', fn, 3)
def fD(fn, cost=1): return ('d', fn, cost)
def fT(txt):
    for a, b in ((sT0, sU0), (sT1, sU1), (sT2, sU2)): txt = re.sub(rf'\bs{a}\b', f's{b}', txt)
    return [fI(l.strip()) for l in txt.strip().split('\n') if l.strip()]

def phi_fill(acc, n, tmp, generic=False):
    L = []
    for r0 in range(0, n, 4):
        for i in range(4): L.append(fI(f'v_mul_f32 v{tmp+i}, s{sL2E}, v{acc+r0+i}'))
        for i in range(4):
            L.append(fI(f'v_exp_f32_e64 v{tmp+i}, v{tmp+i} clamp', 2))
            L.append(fI(f'v_max_f32 v{acc+r0+i}, s{sPhiC if generic else sEPS}, v{acc+r0+i}'))
        for i in range(4):
            L.append(fI(f'v_fmac_f32 v{acc+r0+i}, s{sPhiB}, v{tmp+i}' if generic else f'v_add_f32 v{acc+r0+i}, v{acc+r0+i}, v{tmp+i}'))
    return L

def p_fill(st):
    L = []
    for t in range(2):
        for j in range(2):
            acc = aK + 16 * t + 8 * j; pk = vT + 4 + 4 * j
            L += phi_fill(acc, 8, vT, True)
            L += [fI(f'v_cvt_pk_bf16_f32 v{pk+i}, v{acc+2*i}, v{acc+2*i+1}') for i in range(4)]
            def st_(e, t=t, j=j, pk=pk):
                if t and not j: e.I(f's_mov_b32 s{sSo}, {4 * CS}')
                st.pub(e, f'buffer_store_dwordx4 {vr(pk)}, v{vPst}, {srd(sWS)}, ' + (f's{sSo}' if t else '0') + f' offen offset:{j*256} {st.cfg.st_flag}', 'P')
            L.append(fM(st_))
    return L

def f_fill(st, acc, i, ps):
    L = []
    for r in range(8): L.append(fI(f'v_max_f32 v{acc+r}, 0, v{acc+r}'))
    for r in range(8): L.append(fI(f'v_mul_f32 v{acc+r}, v{acc+r}, v{acc+8+r}'))
    for r in range(4): L.append(fI(f'v_cvt_pk_bf16_f32 v{acc+8+r}, v{acc+2*r}, v{acc+2*r+1}'))
    if i % 2 == 0: L.append(fI(f's_mov_b32 s{sSo}, {(i >> 1) * 147456 + ps * 28672}'))
    L.append(fM(lambda e: st.pub(e, f'buffer_store_dwordx4 {vr(acc+8)}, v{vHst}, {srd(sWS)}, s{sSo} offen offset:{(i & 1) * 2048} {st.cfg.st_flag}', 'AB'[ps])))
    return L

OOL = []
def spin_check(e, cfg, name, load, reg, above=0):
    test = f'v_cmp_lt_u32 vcc, {above}, v{reg}'
    e.I(test); e.I('s_cmp_eq_u64 vcc, -1'); e.I(f's_cbranch_scc0 L_spin_{name}')
    e.label(f'L_ok_{name}')
    OOL.append(f'L_spin_{name}:\n s_mov_b32 s{sT0}, 0\nL_spin2_{name}:\n s_sleep {cfg.psleep}\n {load}\n'
               f' s_add_u32 s{sT0}, s{sT0}, 1\n s_waitcnt vmcnt(0)\n {test}\n s_nop 1\n s_cmp_eq_u64 vcc, -1\n'
               f' s_cbranch_scc1 L_ok_{name}\n s_cmp_lt_u32 s{sT0}, {cfg.spin}\n s_cbranch_scc1 L_spin2_{name}\n s_branch L_ok_{name}\n')
def poll_txt(kind): return f'buffer_load_dword v{vPoll}, v{vPO if kind == "O" else vPA}, {srd(sWS)}, s{sPoll} offen sc1'
def poll_issue(e, kind): e.V(poll_txt(kind), ('poll', kind))
def poll_check(e, cfg, kind):
    e.wait(vm=[('poll', kind)])
    spin_check(e, cfg, kind, poll_txt(kind), vPoll, above={'A': 1, 'B': 2}.get(kind, 0))

t_ = [vT + 12 + i for i in range(10)]
def entry(e, cfg, code_bytes):
    t = t_
    e.many(f'''
    s_cmp_ge_u32 s2, 256
    s_cbranch_scc1 L_end
    s_load_dwordx16 s[4:19], s[0:1], 0
    s_load_dwordx4 s[20:23], s[0:1], 64
    s_load_dwordx2 s[24:25], s[0:1], 80
    s_getpc_b64 s[{sCODE}:{sCODE+1}]
    s_mov_b32 s{sCODE+2}, {code_bytes}
    s_mov_b32 s{sCODE+3}, 0x20000
    s_lshr_b32 s{sT0}, s2, 3
    s_mul_i32 s3, s{sT0}, 9
    v_min_u32 v{vT}, 8, v0
    v_add_lshl_u32 v{vT}, v{vT}, s3, 7
    ''')
    e.V(f'buffer_load_dword v{vT+1}, v{vT}, {srd(sCODE)}, 0 offen', 'code')
    e.many(f'''
    v_lshrrev_b32 v{t[0]}, 6, v0
    v_and_b32 v{vL}, 63, v0
    v_readfirstlane_b32 s{sW}, v{t[0]}
    v_lshlrev_b32 v{vL16}, 4, v{vL}
    v_lshlrev_b32 v{vL4}, 2, v{vL}
    s_and_b32 s{sT1}, s{sT0}, 7
    s_lshr_b32 s{sGrp}, s{sT0}, 3
    s_and_b32 s{sRB}, s2, 4
    s_lshl_b32 s{sRB}, s{sRB}, 1
    s_add_u32 s{sRB}, s{sRB}, s{sT1}
    s_bfe_u32 s{sQH}, s2, 0x10001
    s_xor_b32 s3, s{sT1}, s2
    s_and_b32 s3, s3, 1
    s_and_b32 s{sC}, s2, 1
    s_lshl_b32 s{sC}, s{sC}, 2
    s_add_u32 s{sC}, s{sC}, s{sGrp}
    s_lshr_b32 s{sT1}, s{sT1}, 1
    s_add_u32 s{sT1}, s{sT1}, 24
    s_cmp_eq_u32 s{sGrp}, 3
    s_cselect_b32 s3, s3, 0
    s_cselect_b32 s{sC}, 3, s{sC}
    s_cselect_b32 s{sCT}, s{sT1}, s{sT0}
    s_mul_i32 s{sT1}, s{sQH}, 7
    s_add_u32 s{sC}, s{sC}, s{sT1}
    s_and_b32 s{sZi}, s2, 63
    s_lshl_b32 s{sM1K}, s{sW}, 10
    s_lshl_b32 s{sM2K}, s{sW}, 11
    s_lshl_b32 s{sM4K}, s{sW}, 12
    v_lshrrev_b32 v{t[0]}, 3, v{vL}
    v_and_b32 v{t[1]}, 7, v{vL}
    v_bfe_u32 v{t[2]}, v{vL}, 4, 1
    v_lshlrev_b32 v{t[2]}, 2, v{t[2]}
    v_xor_b32 v{t[2]}, v{t[2]}, v{t[1]}
    v_lshlrev_b32 v{t[2]}, 4, v{t[2]}
    s_lshl_b32 s{sT0}, s{sRB}, 2
    s_add_u32 s{sT0}, s{sT0}, s{sW}
    s_mul_i32 s{sT0}, s{sT0}, {32*896}
    v_xor_b32 v{t[4]}, v{t[1]}, v{t[0]}
    v_lshlrev_b32 v{t[4]}, 4, v{t[4]}
    v_mul_u32_u24 v{vDX[0]}, 896, v{t[0]}
    v_add3_u32 v{vDX[0]}, v{vDX[0]}, v{t[4]}, s{sT0}
    v_add_u32 v{vDX[1]}, 6144, v{vDX[0]}
    v_add_u32 v{vDX[2]}, {2*6144}, v{vDX[0]}
    v_add_u32 v{vDX[3]}, {3*6144}, v{vDX[0]}
    s_mov_b32 s{sX+2}, {2048*896}
    s_mov_b32 s{sX+3}, 0x20000
    s_mov_b32 s{sQKV+2}, {448*2688}
    s_mov_b32 s{sQKV+3}, 0x20000
    ''')
    if cfg.touch in (1, 2):
        e.many(f'''
        s_and_b32 s{sT0}, s2, 7
        s_lshl_b32 s{sT0}, s{sT0}, 5
        s_lshr_b32 s{sT1}, s2, 3
        s_add_u32 s{sT0}, s{sT0}, s{sT1}
        s_lshl_b32 s{sT0}, s{sT0}, 1
        s_and_b32 s{sT1}, s{sW}, 1
        s_add_u32 s{sT0}, s{sT0}, s{sT1}
        s_cmp_lt_u32 s{sW}, 2
        s_cselect_b32 s{sT1}, 28, 21
        s_cselect_b32 s{sTC+2}, s{sX+2}, s{sQKV+2}
        s_mul_i32 s{sT0}, s{sT0}, s{sT1}
        s_sub_u32 s{sT1}, s{sT1}, 1
        v_min_u32 v{vTch}, s{sT1}, v{vL}
        v_add_lshl_u32 v{vTch}, v{vTch}, s{sT0}, 7
        ''')
    e.many(f's_cmp_eq_u32 s3, 1\ns_cbranch_scc1 L_t3')

def first_loads(e, st, cfg, n_stage):
    R = '3' if st.t3 else '2'
    t = t_
    if st.t3:
        e.many(f'''
        s_mul_i32 s{sT0}, s{sW}, {8*2688}
        s_mul_i32 s{sT1}, s{sQH}, 448
        s_add_u32 s{sT0}, s{sT0}, s{sT1}
        v_mul_u32_u24 v{t[3]}, 2688, v{t[0]}
        v_add3_u32 v{vD0}, v{t[3]}, v{t[2]}, s{sT0}
        v_xor_b32 v{t[4]}, 32, v{t[2]}
        v_add3_u32 v{vD1}, v{t[3]}, v{t[4]}, s{sT0}
        s_mov_b32 s{sI0+2}, {448*2688}
        s_mov_b32 s{sI0+3}, 0x20000
        s_mov_b32 s{sI1+2}, {448*2688+896}
        s_mov_b32 s{sI1+3}, 0x20000
        s_waitcnt lgkmcnt(0)
        s_mov_b32 s{sI0}, s6
        s_mov_b32 s{sI0+1}, s7
        s_sub_u32 s{sI1}, s6, 896
        s_subb_u32 s{sI1+1}, s7, 0
        ''')
    else:
        e.many(f'''
        s_mul_i32 s{sT0}, s{sW}, {16*2688}
        s_lshl_b32 s{sT1}, s{sC}, 7
        s_add_u32 s{sT0}, s{sT0}, s{sT1}
        s_add_u32 s{sT0}, s{sT0}, 896
        v_mul_u32_u24 v{t[3]}, 2688, v{t[0]}
        v_add3_u32 v{vJ0}, v{t[3]}, v{t[2]}, s{sT0}
        v_add_u32 v{vJ1}, {8*2688-1024}, v{vJ0}
        s_waitcnt lgkmcnt(0)
        s_mov_b32 s{sQKV}, s6
        s_mov_b32 s{sQKV+1}, s7
        ''')
    e.many(f's_mov_b32 s{sX}, s4\ns_mov_b32 s{sX+1}, s5')
    for _ in range(n_stage): assert st.mem(e)
    if cfg.touch in (1, 2):
        e.many(f's_cmp_lt_u32 s{sW}, 2\ns_cselect_b32 s{sTC}, s4, s6\ns_cselect_b32 s{sTC+1}, s5, s7')
        e.V(f'buffer_load_dword v{vPoll}, v{vTch}, {srd(sTC)}, 0 offen', 'tch')
    e.many(srd_txt(sWS, 24, STAMP_OFF + (1 << 20) if cfg.stamps else WS_USED) + f'''
    v_mov_b32 v{vT+4}, 0
    v_mov_b32 v{vT+5}, 0
    v_mov_b32 v{vT+6}, 0
    v_mov_b32 v{vT+7}, 0
    s_lshl_b32 s{sT0}, s2, 12
    s_add_u32 s{sT0}, s{sT0}, s{sM1K}
    s_add_u32 s{sT0}, s{sT0}, {FR_OFF - 128 * 4096}
    s_sub_u32 s{sT1}, s2, 128
    s_cmp_lt_u32 s{sT1}, {NZ}
    s_cselect_b32 s{sT0}, s{sT0}, 0x7fff0000
    ''')
    e.V(f'buffer_store_dwordx4 {vr(vT+4)}, v{vL16}, {srd(sWS)}, s{sT0} offen sc1', 'zero')
    for _ in range(n_stage): assert st.mem(e)
    e.many(f'''
    v_lshrrev_b32 v{t[6]}, 5, v{vL}
    v_bfe_u32 v{t[5]}, v{vL}, 2, 2
    v_lshlrev_b32 v{t[5]}, 7, v{t[5]}
    v_and_b32 v{t[4]}, 3, v{vL}
    v_lshl_add_u32 v{t[5]}, v{t[4]}, 3, v{t[5]}
    v_bfe_u32 v{t[4]}, v{vL}, 3, 1
    v_lshl_add_u32 v{t[5]}, v{t[4]}, 6, v{t[5]}
    v_bfe_u32 v{t[7]}, v{vL}, 4, 1
    v_lshl_add_u32 v{t[5]}, v{t[7]}, 5, v{t[5]}
    v_xor_b32 v{t[4]}, v{t[1]}, v{t[6]}
    v_and_b32 v{t[8]}, 31, v{vL}
    v_lshlrev_b32 v{t[3]}, 7, v{t[8]}
    v_lshl_add_u32 v{t[3]}, v{t[4]}, 4, v{t[3]}
    v_add_u32 v{vAX[0]}, s{sM4K}, v{t[3]}
    v_xor_b32 v{vAX[1]}, 32, v{vAX[0]}
    v_xor_b32 v{vAX[2]}, 64, v{vAX[0]}
    v_xor_b32 v{vAX[3]}, 96, v{vAX[0]}
    v_mov_b32 v{vONES}, 0x3f803f80
    ''' + srd_txt(sDBG, 22, 256))
    af = f'v_lshl_add_u32 v{vAF[0][0]}, v{t[6]}, 11, v{t[5]}\n'
    if not st.t3: af += f'v_lshl_add_u32 v{vAF[0][0]}, v{t[7]}, 10, v{vAF[0][0]}\n'
    for q, X in zip((1, 2, 3), (64, 1024 + 32, 1024 + 96) if st.t3 else (32, 64, 96)): af += f'v_xor_b32 v{vAF[0][q]}, {X}, v{vAF[0][0]}\n'
    for w in (1, 2):
        for q in range(4): af += f'v_add_u32 v{vAF[w][q]}, {65536*w}, v{vAF[0][q]}\n'
    if st.t3: e.many(af); af = ''
    else: e.many(f'v_lshl_add_u32 v{vAK}, v{t[6]}, 10, v{t[5]}\nv_add_u32 v{vAK}, {JB}, v{vAK}\nv_xor_b32 v{vAV}, 64, v{vAK}')
    if cfg.touch >= 2: touch2_setup(e, R)
    return af

def touch2_setup(e, R):
    t = t_
    a, b, c, sh, n1, n2, u = 4, 5, sT0, sT1, sT2, sSo, sSoW
    def par(size, A, B, shv, n2v): return f's_mov_b32 s{sTC+2}, {size}\ns_movk_i32 s{a}, {A}\ns_movk_i32 s{b}, {B}\ns_movk_i32 s{sh}, {shv}\ns_movk_i32 s{n2}, {n2v}\n'
    ff = f'''s_lshl_b32 s{u}, s{sRB}, 1
    s_lshr_b32 s{c}, s{sW}, 1
    s_add_u32 s{u}, s{u}, s{c}
    s_mul_i32 s{c}, s{u}, {14*3584}
    s_and_b32 s{u}, s2, 3
    s_mul_i32 s{u}, s{u}, 7
    s_add_u32 s{u}, s{u}, 1
    s_lshr_b32 s{u}, s{u}, 1
    s_lshl_b32 s{u}, s{u}, 8
    s_add_u32 s{c}, s{c}, s{u}
    s_lshl_b32 s{u}, s{sGrp}, 6
    s_add_u32 s{c}, s{c}, s{u}
    s_and_b32 s{u}, s2, 1
    s_sub_u32 s{n1}, 3, s{u}
    s_bitcmp1_b32 s{sW}, 0
    s_cselect_b32 s{sTC}, s14, s12
    s_cselect_b32 s{sTC+1}, s15, s13
    ''' + par(448 * 3584, 3584, 256, 2, 13)
    lin = f'''s_lshl_b32 s{u}, s{sZi}, 2
    s_add_u32 s{u}, s{u}, s{sW}
    s_cmp_eq_u32 s{sGrp}, 1
    s_cselect_b32 s{n1}, 49, 13
    s_cselect_b32 s{sTC}, s16, s8
    s_cselect_b32 s{sTC+1}, s17, s9
    ''' + par(448 * 896, 0, 128, 6, 0) + f'''s_cselect_b32 s{sTC+2}, {1792*896}, s{sTC+2}
    s_mul_i32 s{c}, s{u}, s{n1}
    s_lshl_b32 s{c}, s{c}, 7
    s_sub_u32 s{n1}, s{n1}, 1
    '''
    if R == '3': e.many(lin)
    else: e.many(f's_bitcmp0_b32 s{sGrp}, 0\ns_cbranch_scc0 L_ts{R}\n' + ff + f's_branch L_tx{R}\nL_ts{R}:\n' + lin + f'L_tx{R}:')
    e.many(f'''
    v_lshrrev_b32 v{t[3]}, s{sh}, v{vL}
    v_bfe_u32 v{t[4]}, v{vL}, 0, s{sh}
    v_min_u32 v{t[3]}, s{n2}, v{t[3]}
    v_min_u32 v{t[4]}, s{n1}, v{t[4]}
    v_mul_u32_u24 v{vTch}, s{a}, v{t[3]}
    v_mad_u32_u24 v{vTch}, v{t[4]}, s{b}, v{vTch}
    v_add_u32 v{vTch}, s{c}, v{vTch}
    ''')

def common_post(st, cfg):
    R = '3' if st.t3 else '2'
    tg = [int(x) for x in cfg.tg.split(',')]
    dbg_ld = f'buffer_load_dword v{vDbg}, v{vT+23}, {srd(sDBG)}, 0 offen sc1'
    def post(e, ep):
        if ep == 0: stamp(e, cfg, 2)
        if ep == 1 and not st.t3:
            assert 'zero' not in e.vm
            e.many(f'''
            s_sub_u32 s{sT0}, s2, 128
            s_lshl_b32 s{sT1}, s{sW}, 8
            s_or_b32 s{sT0}, s{sT0}, s{sT1}
            s_cmp_lt_u32 s{sT0}, {NZ}
            s_cbranch_scc0 L_noflag
            s_lshl_b32 s{sT0}, s{sT0}, 2
            s_mov_b64 exec, 1
            ''')
            e.V(f'buffer_store_dword v{vONES}, off, {srd(sDBG)}, s{sT0} sc1', cond=True)
            e.I('s_mov_b64 exec, -1')
            e.label('L_noflag')
        if ep == cfg.zep:
            e.I(f'v_min_u32 v{vT+23}, {4 * NZ - 4}, v{vL4}'); e.V(dbg_ld, 'dbg')
        if ep == cfg.zep + 2:
            e.wait(vm=['dbg']); spin_check(e, cfg, 'z' + R, dbg_ld, vDbg); st.signalled.add('z')
        if cfg.touch >= 2:
            if st.t3:
                if ep == tg[3]: e.V(f'buffer_load_dword v{vTch}, v{vTch}, {srd(sTC)}, 0 offen', 'tch')
            elif ep in tg:
                mask = sum(1 << g for g in range(4) if tg[g] == ep)
                e.I(f's_bitcmp1_b32 {mask}, s{sGrp}'); e.I(f's_cbranch_scc0 L_tch{ep}')
                e.V(f'buffer_load_dword v{vTch}, v{vTch}, {srd(sTC)}, 0 offen', cond=True)
                e.label(f'L_tch{ep}')
    return post

def late_common(t3):
    xs = f's_mul_i32 s{sT1}, s{sQH}, 72\ns_add_u32 s{sT1}, s{sT1}, 28\n' if t3 else f's_and_b32 s{sT1}, s{sC}, 1\ns_mul_i32 s{sT1}, s{sT1}, 35\ns_add_u32 s{sT1}, s{sT1}, s{sC}\n'
    pr = f's_add_u32 s{sT0}, s{sQH}, 14\n' if t3 else f's_mov_b32 s{sT0}, s{sC}\n'
    return f'''
    v_and_b32 v{vFl}, 124, v{vL4}
    s_mov_b32 s{sEPS}, {EPS:#x}
    s_mov_b32 s{sL2E}, {LOG2E:#x}
    s_lshr_b32 s{sT0}, s{sW}, 1
    s_lshl_b32 s{sT1}, s{sRB}, 1
    s_add_u32 s{sT0}, s{sT0}, s{sT1}
    s_mul_i32 s{sT0}, s{sT0}, 144
    {xs}s_add_u32 s{sT0}, s{sT0}, s{sT1}
    s_lshl_b32 s{sT0}, s{sT0}, 1
    s_and_b32 s{sT1}, s{sW}, 1
    s_add_u32 s{sT0}, s{sT0}, s{sT1}
    s_lshl_b32 s{sT0}, s{sT0}, 10
    v_add_u32 v{vHst}, s{sT0}, v{vL16}
    {pr}s_lshl_b32 s{sT1}, s{sRB}, 4
    s_add_u32 s{sT0}, s{sT0}, s{sT1}
    s_lshl_b32 s{sT0}, s{sT0}, 2
    s_add_u32 s{sT0}, s{sT0}, s{sW}
    s_lshl_b32 s{sT0}, s{sT0}, 7
    s_add_u32 s{sSigR}, s{sT0}, {FR_OFF}
    '''

def late_t2(af):
    t = t_
    early = f'''
    s_mul_i32 s{sT0}, s{sW}, {8*3584}
    s_lshl_b32 s{sT1}, s{sC}, 8
    s_add_u32 s{sT0}, s{sT0}, s{sT1}
    v_mul_u32_u24 v{t[3]}, 3584, v{t[0]}
    v_add3_u32 v{vD0}, v{t[3]}, v{t[2]}, s{sT0}
    v_xor_b32 v{vD1}, 32, v{vD0}
    ''' + srd_txt(sI0, 12, 448 * 3584) + f'''s_mov_b32 s{sI1+2}, {448*3584+1024}
    s_mov_b32 s{sI1+3}, 0x20000
    ''' + af
    pair = fF(lambda e: e.many(f's_sub_u32 s{sI1}, s14, 1024\ns_subb_u32 s{sI1+1}, s15, 0'), 2)
    rest = late_common(False) + f'''
    v_mov_b32 v{vFv}, 1
    s_xor_b32 s{sT0}, s{sQH}, 1
    s_mul_i32 s{sPhiB}, s{sT0}, 0x3f800000
    s_mul_i32 s{sT0}, s{sT0}, {EPS:#x}
    s_mul_i32 s{sT1}, s{sQH}, 0xff800000
    s_add_u32 s{sPhiC}, s{sT0}, s{sT1}
    s_lshl_b32 s{sT0}, s{sRB}, 2
    s_add_u32 s{sT0}, s{sT0}, s{sW}
    s_lshl_b32 s{sT0}, s{sT0}, 9
    s_mul_i32 s{sT1}, s{sC}, {8*CS}
    s_add_u32 s{sT0}, s{sT0}, s{sT1}
    s_add_u32 s{sT0}, s{sT0}, {P_OFF}
    v_and_b32 v{t[3]}, 3, v{t[0]}
    v_mul_u32_u24 v{vPst}, {CS}, v{t[3]}
    v_lshl_add_u32 v{vPst}, v{t[6]}, 7, v{vPst}
    v_lshl_add_u32 v{vPst}, v{t[1]}, 4, v{vPst}
    v_add_u32 v{vPst}, s{sT0}, v{vPst}
    s_and_b32 s{sRT}, s2, 7
    s_lshl_b32 s{sRT}, s{sRT}, 2
    s_and_b32 s{sT1}, s{sCT}, 3
    s_add_u32 s{sRT}, s{sRT}, s{sT1}
    s_lshr_b32 s{sCT}, s{sCT}, 2
    ''' + srd_txt(sWD, 16, 1792 * 896) + srd_txt(sWO, 8, 448 * 896) + srd_txt(sOUT, 20, 2048 * 896) + f'''
    s_and_b32 s{sT1}, s{sW}, 1
    s_lshl_b32 s{sT1}, s{sT1}, 2
    s_lshr_b32 s{sT2}, s{sW}, 1
    s_add_u32 s{sT1}, s{sT1}, s{sT2}
    s_mul_i32 s{sT1}, s{sT1}, {32*896}
    s_mul_i32 s{sT2}, s{sW}, {112*896}
    s_sub_u32 s{sDW2}, s{sT2}, s{sT1}
    s_lshl_b32 s{sT0}, s{sCT}, 7
    s_add_u32 s{sT1}, s{sT1}, s{sT0}
    v_mul_u32_u24 v{t[3]}, 896, v{t[0]}
    v_add3_u32 v{vDW0}, v{t[3]}, v{t[2]}, s{sT1}
    v_add_u32 v{vDW1}, 6144, v{vDW0}
    s_lshl_b32 s{sT0}, s{sRT}, 2
    s_add_u32 s{sT0}, s{sT0}, s{sW}
    s_mul_i32 s{sT0}, s{sT0}, 72
    s_lshr_b32 s{sT1}, s{sW}, 1
    s_add_u32 s{sT0}, s{sT0}, s{sT1}
    s_lshl_b32 s{sT0}, s{sT0}, 10
    v_add_u32 v{vH0}, s{sT0}, v{vL16}
    v_xor_b32 v{vH1}, 1024, v{vH0}
    v_lshl_add_u32 v{t[3]}, v{t[6]}, 9, v{t[5]}
    s_and_b32 s{sT0}, s{sW}, 1
    s_lshl_b32 s{sT0}, s{sT0}, 6
    v_xor_b32 v{t[3]}, s{sT0}, v{t[3]}
    v_add_u32 v{vA2[0][0]}, s{sM2K}, v{t[3]}
    v_xor_b32 v{vA2[0][1]}, 64, v{vA2[0][0]}
    v_add_u32 v{vA2[1][0]}, 0x10000, v{vA2[0][0]}
    v_add_u32 v{vA2[1][1]}, 0x10000, v{vA2[0][1]}
    v_add_u32 v{vA2[2][0]}, 0x20000, v{vA2[0][0]}
    v_add_u32 v{vA2[2][1]}, 0x20000, v{vA2[0][1]}
    s_lshl_b32 s{sT1}, s{sRT}, 1
    s_lshr_b32 s{sT2}, s{sW}, 1
    s_add_u32 s{sT1}, s{sT1}, s{sT2}
    s_lshl_b32 s{sT1}, s{sT1}, 5
    v_add_u32 v{t[3]}, s{sT1}, v{t[8]}
    v_lshlrev_b32 v{vG0}, 2, v{t[3]}
    v_add_u32 v{vG0}, {G_OFF}, v{vG0}
    v_xor_b32 v{vG1}, 128, v{vG0}
    v_mul_u32_u24 v{vOut}, 896, v{t[3]}
    v_lshl_add_u32 v{vOut}, v{t[6]}, 4, v{vOut}
    s_lshl_b32 s{sT1}, s{sCT}, 7
    s_add_u32 s{sT1}, s{sT1}, s{sT0}
    v_add_u32 v{vOut}, s{sT1}, v{vOut}
    v_add_u32 v{vWr}, s{sM2K}, v{vL16}
    v_xor_b32 v{vRd[0]}, 2048, v{vWr}
    v_xor_b32 v{vRd[1]}, 4096, v{vWr}
    v_xor_b32 v{vRd[2]}, 6144, v{vWr}
    s_lshr_b32 s{sT0}, s{sRT}, 1
    s_lshl_b32 s{sT0}, s{sT0}, 13
    s_and_b32 s{sT1}, s{sRT}, 1
    s_lshl_b32 s{sT1}, s{sT1}, 8
    s_add_u32 s{sT0}, s{sT0}, s{sT1}
    s_add_u32 s{sPoll}, s{sT0}, {FR_OFF}
    v_and_b32 v{t[4]}, 1, v{vL}
    v_lshlrev_b32 v{t[4]}, 7, v{t[4]}
    v_lshrrev_b32 v{t[3]}, 1, v{vL}
    v_min_u32 v{t[3]}, 6, v{t[3]}
    v_lshl_add_u32 v{vPA}, v{t[3]}, 10, v{t[4]}
    s_and_b32 s{sT0}, s{sW}, 1
    s_lshl_b32 s{sT0}, s{sT0}, 9
    v_add_u32 v{vPA}, s{sT0}, v{vPA}
    s_lshr_b32 s{sT0}, s{sW}, 1
    s_add_u32 s{sT0}, s{sT0}, 14
    s_lshl_b32 s{sT0}, s{sT0}, 9
    v_add_u32 v{vPO}, s{sT0}, v{t[4]}
    '''
    return [pair] + fT(early), fT(rest)

def phase2(e, st, cfg):
    ACC = aA
    if st.rd_part: st.preread(e)
    def reads(sq):
        if sq < st.rd_next: return
        while (sq, 1) in st.qw: assert st.w2(e), ('no LDS block for W2', sq)
        e.wait(vm=[('W', sq)])
        st.wread(e, sq)
        if sq < 14: st.rd_next = sq + 1
    def need_h(sq):
        while (sq, 1) in st.qh: assert st.h(e), ('H not allowed yet', sq)
    def mf(x, sq):
        acc = vr(ACC + 16 * x, 16)
        e.I(f'v_mfma_f32_32x32x16_bf16 {acc}, {sub(st.wreg(sq),4*(x&1),4)}, {ar(hreg(sq)+4*(x>>1))}, ' + ('0' if sq == 0 else acc))
    def scale(x): return [f'v_mul_f32 v{ACC+16*x+r}, v{ACC+16*x+r}, v{vG0 + (x >> 1)}' for r in range(16)]
    red = lambda x, q: ((x - 1) * 2 + (q >> 1)) * 8192 + (q & 1) * 1024
    reads(0)
    extra = list(range(29, 36)); hmax = 13
    for t in range(28):
        if cfg.fine: stamp(e, cfg, 16 + t)
        st.try_signal(e, 'B', 4, force=t >= cfg.sigB)
        if t == 14 - cfg.LHB - cfg.pollB: poll_issue(e, 'B')
        if t == 28 - cfg.LHO - cfg.pollO: poll_issue(e, 'O')
        if t == 14 - cfg.LHB:
            need_h(13)
            while st.w2(e): pass
            log(f'B check: W2 ops {72-len(st.qw)}')
            stamp(e, cfg, 6); poll_check(e, cfg, 'B'); stamp(e, cfg, 7)
            st.h_ok = hmax = 27
            assert cfg.burst // 2 <= t
            for _ in range(cfg.burst): st.h(e)
        if t == 28 - cfg.LHO:
            stamp(e, cfg, 8); poll_check(e, cfg, 'O'); stamp(e, cfg, 9); hmax = 35
            e.V(f'buffer_load_dword v{vG0}, v{vG0}, {srd(sWS)}, 0 offen sc1', 'g')
            e.V(f'buffer_load_dword v{vG1}, v{vG1}, {srd(sWS)}, 0 offen sc1', 'g')
        if t >= 14 - cfg.LHB: st.h_ok = 35 if hmax == 35 else min(hmax, t + cfg.LH)
        assert st.h_ok < 14 or min(st.h_ok, 27) - 14 < t
        rd = [t + 1]
        if t >= 21: rd.append(extra.pop(0))
        need_h(t)
        e.wait(vm=[('H', t)], lg=[('w2', t)])
        k = cfg.opseq
        for i, x in enumerate((1, 2, 3, 0)):
            mf(x, t)
            if k > 0 and st.mem(e): k -= 1
            if k > 3 - i and st.mem(e): k -= 1
            if rd and i in (0, 2): reads(rd.pop(0))
            if i in (1, 2):
                st.preread(e)
                if i == 2 and st.rd_part: st.preread(e)
    assert not extra and {'P', 'A', 'B'} <= st.signalled
    need_h(35)
    assert not st.qw and not st.qh
    stamp(e, cfg, 10)
    e.wait(vm=['g'], lg_all=True)
    for s in scale(1): e.I(s)
    order = (1, 2, 3, 0)
    wr_op = lambda px, q: e.D(f'ds_write_b128 v{vWr}, {vr(ACC+16*px+4*q)} offset:{red(px,q)}', ('rw', px))
    rd_op = lambda x, q: e.D(f'ds_read_b128 {vr(ACC+16*x+4*q)}, v{vRd[x-1]} offset:{red(x,q)}', ('rr', x))
    add = lambda d, a: [f'v_add_f32 v{ACC+16*d+r}, v{ACC+16*d+r}, v{ACC+16*a+r}' for r in range(16)]
    padd = lambda d, a: [f'v_pk_add_f32 {vr(ACC+16*d+r,2)}, {vr(ACC+16*d+r,2)}, {vr(ACC+16*a+r,2)}' for r in range(0, 16, 2)]
    for i, x in enumerate(order):
        side = scale(order[i + 1]) if i < 3 else add(1, 2)
        for j, sq in enumerate(range(28, 36)):
            e.wait(vm=[('H', sq)])
            mf(x, sq)
            if i >= 2 and j == 1:
                e.wait(lg=[('rw', i - 1)]); e.I('s_barrier')
                for q in range(4): rd_op(i - 1, q)
            if i >= 1 and j in (2, 3, 5, 6): wr_op(i, (2, 3, 5, 6).index(j))
            if i == 3:
                if j < 4: continue
                if j == 4: e.wait(lg=[('rr', 2)])
            n = (6, 6, 0, 0, 4, 0, 0, 0)[j] if i == 1 else (4, 0, 2, 2, 4, 2, 2, 0)[j] if i == 2 else 4 if i == 3 else 3
            for s in side[:n]: e.I(s)
            side = side[n:]
        assert not side
    e.wait(lg=[('rw', 3)]); e.I('s_barrier')
    for q in range(4): rd_op(3, q)
    for s in padd(0, 1): e.I(s)
    e.wait(lg=[('rr', 3)])
    for s in padd(0, 3): e.I(s)
    O = aK
    for i in range(8): e.I(f'v_cvt_pk_bf16_f32 v{O+i}, v{ACC+2*i}, v{ACC+2*i+1}')
    for b in (0, 4):
        e.I(f'v_permlane32_swap_b32 v{O+b}, v{O+b+2}'); e.I(f'v_permlane32_swap_b32 v{O+b+1}, v{O+b+3}')
    e.V(f'buffer_store_dwordx4 {vr(O)}, v{vOut}, {srd(sOUT)}, 0 offen {cfg.out_flag}', 'out')
    e.V(f'buffer_store_dwordx4 {vr(O+4)}, v{vOut}, {srd(sOUT)}, 0 offen offset:32 {cfg.out_flag}', 'out')
    stamp(e, cfg, 11)
    if cfg.stamps: e.wait(vm_all=True); stamp(e, cfg, 12)

def role_t2(e, cfg):
    st = St(cfg, False)
    af = first_loads(e, st, cfg, 6)
    early, late = late_t2(af)
    stamp(e, cfg, 1)
    cpost = common_post(st, cfg)
    def post(e, ep):
        cpost(e, ep)
        st.try_signal(e, 'P', 4, force=ep >= cfg.sigP)
        st.try_signal(e, 'A', 4, force=ep >= cfg.sigA)
        if ep == cfg.pA: poll_issue(e, 'A')
        if ep == cfg.pA + 1: poll_check(e, cfg, 'A'); st.a_ok = True
    st.post_barrier = post
    S = steps('K', (0, 1)) + steps(0, (0, 1, 2, 3)) + steps(1, (0, 1, 2, 3))
    for n in range(cfg.LA): issue_read(e, st, S, n)
    run_steps(e, st, S, 0, 16, early, cfg.fillK)
    assert not early
    run_steps(e, st, S, 16, 56, late, cfg.fillK)
    log(f'end of pass K: fillers left {len(late)}')
    run_valu(e, st, late)
    stamp(e, cfg, 13)
    st.qw = [(sq, p) for sq in range(36) for p in range(2)]
    st.qh = [(sq, p) for sq in range(36) for p in range(2)]
    run_steps(e, st, S, 56, 58)
    fill = p_fill(st)
    run_steps(e, st, S, 58, 170, fill, cfg.fillA)
    assert not fill
    log(f'end of pass A: W2 ops {72-len(st.qw)} pool {len(st.pool.free)} preread {st.rd_next}')
    stamp(e, cfg, 3)
    fill = sum((f_fill(st, aA + 16 * i, i, 0) for i in range(4)), [])
    run_steps(e, st, S, 170, len(S), fill, cfg.fillB)
    assert not fill
    log(f'end of pass B: W2 ops {72-len(st.qw)} H ops {72-len(st.qh)} pool {len(st.pool.free)} preread {st.rd_next}')
    stamp(e, cfg, 4)
    e.I('s_barrier'); st.on_epoch(21); post(e, 21); st.on_epoch(22)
    assert st.a_ok
    st.h_ok = 13
    run_valu(e, st, sum((f_fill(st, aB + 16 * i, i, 1) for i in range(4)), []))
    stamp(e, cfg, 5)
    phase2(e, st, cfg)
    stamp_out(e, cfg)
    e.I('s_endpgm')

def role_t3(e, cfg):
    st = St(cfg, True); st.rd_next = 99
    first_loads(e, st, cfg, 8)
    t = t_
    P = aA
    G, G1, Z, vPk, vPv, vPp, vKp, vSw, vSr, vKw = 60, 61, 62, 63, 84, 85, 86, 87, 88, 89
    ON = 92
    sKV, sGo, sKo, sXm, sRowM = sWD, sWD + 1, sWD + 2, sWD + 3, sWO
    vL8 = 90
    GW, SCR, XCH = JB, JB + 8192, JB + 24576
    setup = fT(late_common(True) + srd_txt(sGW, 18, 896) + f'''
    v_lshlrev_b32 v{vAG}, 4, v{t[6]}
    v_add_u32 v{vAG}, {GW}, v{vAG}
    s_and_b32 s{sT0}, s{sRB}, 1
    s_xor_b32 s{sT0}, s{sT0}, 1
    s_mul_i32 s{sT0}, s{sT0}, 28
    s_lshl_b32 s{sPadM}, 15, s{sT0}
    s_mov_b32 s{sPadM+1}, s{sPadM}
    s_mov_b32 s{sLoM}, -1
    s_mov_b32 s{sLoM+1}, 0
    s_mov_b32 s{sHiM}, 0
    s_mov_b32 s{sHiM+1}, -1
    v_mov_b32 v{Z}, 0
    v_mov_b32 v{ON}, v{vONES}
    v_mov_b32 v{ON+1}, v{vONES}
    v_mov_b32 v{ON+2}, v{vONES}
    v_mov_b32 v{ON+3}, v{vONES}
    s_lshl_b32 s{sT2}, s{sQH}, 2
    s_add_u32 s{sT2}, s{sT2}, s{sW}
    s_lshl_b32 s{sT0}, s{sT2}, 12
    s_mul_i32 s{sT1}, s{sRB}, 28
    s_and_b32 s{sT1}, s{sT1}, -8
    v_add_u32 v{t[3]}, s{sT1}, v{t[8]}
    v_lshrrev_b32 v{t[3]}, 3, v{t[3]}
    v_mul_u32_u24 v{vPk}, {CS}, v{t[3]}
    v_lshl_add_u32 v{vPk}, v{t[6]}, 7, v{vPk}
    v_lshl_add_u32 v{vPk}, v{t[1]}, 4, v{vPk}
    s_add_u32 s{sT0}, s{sT0}, {P_OFF}
    v_add_u32 v{vPk}, s{sT0}, v{vPk}
    v_add_u32 v{vPv}, {56*CS}, v{vPk}
    v_bfe_u32 v{t[3]}, v{vL}, 2, 1
    v_mul_u32_u24 v{t[3]}, 31, v{t[3]}
    v_add_u32 v{t[3]}, s{sT1}, v{t[3]}
    v_lshrrev_b32 v{t[3]}, 6, v{t[3]}
    v_bfe_u32 v{t[4]}, v{vL}, 3, 1
    v_mad_u32_u24 v{t[3]}, v{t[4]}, 7, v{t[3]}
    v_lshl_add_u32 v{t[3]}, v{t[7]}, 4, v{t[3]}
    v_and_b32 v{t[4]}, 3, v{vL}
    v_lshl_add_u32 v{t[3]}, v{t[3]}, 2, v{t[4]}
    v_lshlrev_b32 v{vPp}, 7, v{t[3]}
    s_lshl_b32 s{sPoll}, s{sT2}, 14
    s_lshr_b32 s{sKV}, s{sPoll}, 1
    s_add_u32 s{sKV}, s{sKV}, {KV_OFF}
    s_add_u32 s{sPoll}, s{sPoll}, {FR_OFF}
    v_and_b32 v{vKp}, 15, v{vL}
    v_lshlrev_b32 v{vKp}, 7, v{vKp}
    s_lshl_b32 s{sT0}, s{sT2}, 11
    s_add_u32 s{sT0}, s{sT0}, {FK_OFF}
    v_add_u32 v{vKp}, s{sT0}, v{vKp}
    s_lshl_b32 s{sT0}, s{sRB}, 1
    s_add_u32 s{sT0}, s{sT0}, s{sQH}
    s_lshl_b32 s{sT0}, s{sT0}, 2
    s_add_u32 s{sT0}, s{sT0}, s{sW}
    s_lshl_b32 s{sKo}, s{sT0}, 9
    s_add_u32 s{sKo}, s{sKo}, {KV_OFF}
    s_lshl_b32 s{sT0}, s{sT0}, 7
    s_add_u32 s{sSoW}, s{sT0}, {FK_OFF}
    v_add_u32 v{vSw}, s{sM4K}, v{vL16}
    v_add_u32 v{vSw}, {SCR}, v{vSw}
    v_add_u32 v{vKw}, {XCH}, v{vL16}
    v_and_b32 v{t[3]}, 1, v{vL}
    v_lshrrev_b32 v{t[4]}, 1, v{vL}
    v_lshlrev_b32 v{t[4]}, 4, v{t[4]}
    v_lshl_add_u32 v{vSr}, v{t[3]}, 10, v{t[4]}
    s_lshr_b32 s{sT0}, s{sW}, 1
    s_lshl_b32 s{sT0}, s{sT0}, 11
    s_and_b32 s{sT1}, s{sW}, 1
    s_lshl_b32 s{sT1}, s{sT1}, 9
    s_add_u32 s{sT0}, s{sT0}, s{sT1}
    s_add_u32 s{sT0}, s{sT0}, {SCR}
    v_add_u32 v{vSr}, s{sT0}, v{vSr}
    v_lshlrev_b32 v{vL8}, 3, v{vL}
    s_and_b32 s{sT0}, s{sRB}, 1
    s_xor_b32 s{sT0}, s{sT0}, 1
    s_mul_i32 s{sT0}, s{sT0}, 7
    s_lshl_b32 s{sT1}, s{sW}, 1
    v_add_u32 v{t[3]}, s{sT1}, v{t[3]}
    v_cmp_eq_u32_e64 s[{sRowM}:{sRowM+1}], s{sT0}, v{t[3]}
    s_lshl_b32 s{sXm}, s{sW}, 13
    s_add_u32 s{sXm}, s{sXm}, {XCH}
    s_lshl_b32 s{sGo}, s{sRB}, 2
    s_add_u32 s{sGo}, s{sGo}, s{sW}
    s_lshl_b32 s{sGo}, s{sGo}, 7
    s_add_u32 s{sGo}, s{sGo}, {G_OFF}
    ''')
    stamp(e, cfg, 1)
    def q_fill(acc, tl):
        L = phi_fill(acc, 16, vT)
        for i in range(8): L.append(fI(f'v_cvt_pk_bf16_f32 v{P+8*tl+i}, v{acc+2*i}, v{acc+2*i+1}'))
        return L
    pload = f'buffer_load_dword v{vPoll}, v{vPp}, {srd(sWS)}, s{sPoll} offen sc1'
    kload = f'buffer_load_dword v{vPoll}, v{vKp}, {srd(sWS)}, 0 offen sc1'
    preg = lambda u, b: 112 + 8 * u + 4 * b if u < 14 else 8 * (u - 14) + 4 * b
    pq = [(u, b) for u in range(16) for b in range(2)]
    state = {'ok': -1}
    def p_op(e):
        if not pq or pq[0][0] > state['ok']: return False
        u, b = pq.pop(0)
        e.V(f'buffer_load_dwordx4 {ar(preg(u, b))}, v{vPv if b else vPk}, {srd(sWS)}, 0 offen offset:{u*256} sc1', ('P', u))
        return True
    st.h = p_op
    cpost = common_post(st, cfg)
    def post(e, ep):
        cpost(e, ep)
        if ep == 4:
            assert not setup
            while st.m0: st.mem(e)
            e.I(f's_mov_b32 m0, {GW}')
            e.V(f'buffer_load_dwordx4 v{vL16}, {srd(sGW)}, 0 offen lds', ('ep', 7))
    st.post_barrier = post
    S = steps(0, (0, 1, 2, 3)) + steps(1, (0, 1, 2, 'g'))
    for n in range(cfg.LA): issue_read(e, st, S, n)
    run_steps(e, st, S, 0, 114, setup, cfg.fill3)
    stamp(e, cfg, 3)
    fill = sum((q_fill(aA + 16 * tl, tl) for tl in range(4)), [])
    def kv_step(fl):
        u = state['u']; state['u'] += 1
        while (u, 1) in pq: p_op(e)
        e.wait(vm=[('P', u)])
        for b in range(2):
            acc = vr(aK + 16 * b, 16)
            e.I(f'v_mfma_f32_32x32x16_bf16 {acc}, {ar(preg(u,0))}, ' + (vr(ON) if b else ar(preg(u, 1))) + ', ' + ('0' if u == 0 else acc))
            gap(e, st, fill, fl, None, 0, cfg.dgap2)
    def hook(n):
        if n == 112 + cfg.nP: e.V(pload, 'pp')
        if n == 112 + cfg.nP + cfg.dP:
            assert 'z' in st.signalled
            stamp(e, cfg, 5); e.wait(vm=['pp']); spin_check(e, cfg, 'P', pload, vPoll); stamp(e, cfg, 6)
            state['ok'] = 15
            for _ in range(cfg.pburst): p_op(e)
        u = state['u']
        if u < 16 and n % cfg.kvr == cfg.kvr - 1 and (u, 1) not in pq and (not pq or 2 * u + 2 + cfg.kvage <= 32 - len(pq)): kv_step(cfg.fill3b)
    state['u'] = 0
    run_steps(e, st, S, 114, len(S), fill, cfg.fill3b, hook)
    log(f'T3 left-over fillers {len(fill)}, P loads left {len(pq)}, KV steps done {state["u"]}')
    stamp(e, cfg, 4)
    fs = lambda i: stamp(e, cfg, 16 + i) if cfg.fine else None
    lg = aB + 48
    q4 = q_fill(aB, 4)
    gops = [f'v_mul_f32 v{G}, 0xbfb8aa3b, v{lg}', f'v_exp_f32 v{G}, v{G}', f'v_add_f32 v{G}, 1.0, v{G}', f'v_rcp_f32 v{G}, v{G}', f'v_sub_f32 v{G1}, 1.0, v{G}']
    for i, g in enumerate(gops): q4.insert(12 + 3 * i, fI(g))
    fill += q4 + q_fill(aB + 16, 5) + q_fill(aB + 32, 6)
    def some(k):
        nonlocal fill
        run_valu(e, st, fill[:k]); del fill[:k]
    assert state['ok'] == 15
    while pq and 32 - len(pq) < 2 * state['u'] + cfg.kvage: p_op(e)
    cfg2 = copy.copy(cfg); cfg2.gap3 = 20; st.cfg = cfg2
    while state['u'] < 16: kv_step(cfg.t3c if pq else 36)
    fs(0)
    some(10)
    for q in range(4):
        for r in range(4 * q, 4 * q + 4): e.I(f'v_cndmask_b32_e64 v{aK+r}, v{aK+r}, v{aV+r}, s[{sPadM}:{sPadM+1}]')
        e.D(f'ds_write_b128 v{vSw}, {vr(aK+4*q)} offset:{q*1024}', 'scw')
    some(12)
    e.wait(lg=['scw']); e.I('s_barrier')
    for p in range(4): e.D(f'ds_read_b128 {vr(aV+4*p)}, v{vSr} offset:{p*4096}', 'scr')
    some(12)
    e.wait(lg=['scr'])
    for a, b in ((0, 4), (8, 12), (0, 8)):
        for r in (0, 2): e.I(f'v_pk_add_f32 {vr(aV+a+r,2)}, {vr(aV+a+r,2)}, {vr(aV+b+r,2)}')
    for i in range(2): e.I(f'v_cvt_pk_bf16_f32 v{aV+4+i}, v{aV+2*i}, v{aV+2*i+1}')
    for i in range(2): e.I(f'v_cndmask_b32_e64 v{aV+4+i}, v{aV+4+i}, v{Z}, s[{sRowM}:{sRowM+1}]')
    st.pub(e, f'buffer_store_dwordx2 {vr(aV+4,2)}, v{vL8}, {srd(sWS)}, s{sKo} offen sc1', 'K')
    fs(1)
    some(cfg.t3k)
    st.try_signal(e, 'K', 1, force=True)
    log(f'T3 fillers left at signal K: {len(fill)}')
    run_valu(e, st, fill)
    st.pub(e, f'buffer_store_dword v{G1}, v{vFl}, {srd(sWS)}, s{sGo} offen sc1', 'O')
    fs(2)
    e.V(kload, 'pk'); e.wait(vm=['pk']); spin_check(e, cfg, 'K', kload, vPoll)
    fs(3)
    KF = 0
    for i in range(2):
        e.I(f's_add_u32 m0, s{sXm}, {i * 4096}'); e.I(f's_add_u32 s{sSo}, s{sKV}, {i * 4096}')
        for q in range(4):
            e.V(f'buffer_load_dwordx4 v{vL16}, {srd(sWS)}, s{sSo} offen offset:{q*1024} sc1 lds', 'kvl')
    e.wait(vm=['kvl']); e.I('s_barrier')
    def kf_read(jj):
        for q in range(4): e.D(f'ds_read_b128 {ar(KF+16*jj+4*q)}, v{vKw} offset:{(4*jj+q)*1024}', ('kf', jj))
    for jj in range(4): kf_read(jj)
    N = [aB, aB + 16, aB + 32, aB + 48]
    def num(jj):
        u0 = (7 * jj) // 2; n = N[jj % 4]
        e.wait(lg=[('kf', jj)])
        return [f'v_mfma_f32_32x32x16_bf16 {vr(n,16)}, {ar(KF+16*jj+4*q)}, {vr(P+2*u0+4*(q&1))}, ' + (vr(n,16) if q else '0') for q in range(4)]
    def factor(jj):
        n = N[jj % 4]; odd = jj & 1; D = vT + 4 * (jj & 1)
        dr = n + (0 if odd else 12); m = sLoM if odd else sHiM
        d = D if odd else D + 1
        return [f'v_add_f32 v{D}, s{sEPS}, v{dr}', f'v_add_f32 v{D+1}, s{sEPS}, v{dr}', None, None,
                f'v_permlane32_swap_b32 v{D}, v{D+1}', None, f'v_rcp_f32 v{D+2}, v{d}', None,
                f'v_mul_f32 v{D}, v{D+2}, v{G}', None, f'v_cndmask_b32_e64 v{D+2}, v{D}, v{Z}, s[{m}:{m+1}]']
    for k, s in enumerate(num(0)):
        e.I(s); kf_read(4 + k)
    mq = num(1)
    e.I(mq.pop(0)); e.I(mq.pop(0))
    for s in factor(0):
        if s: e.I(s)
    pend = []
    for jj in range(8):
        n = N[jj % 4]; odd = jj & 1; D = vT + 4 * (jj & 1)
        fs(4 + jj)
        if jj + 2 < 8: mq += num(jj + 2)
        nxt = factor(jj + 1) if jj + 1 < 8 else []
        padr = range(0, 4) if odd else range(12, 16)
        O = 64 + 8 * (jj & 1)
        body = [f'v_mul_f32 v{n+r}, v{n+r}, v{D+2 if r in padr else D}' for r in range(16)]
        body += [f'v_cvt_pk_bf16_f32 v{O+i}, v{n+2*i}, v{n+2*i+1}' for i in range(8)]
        for k, s in enumerate(body):
            if k in (0, 3, 11, 18):
                if mq and (k < 11 or jj + 2 < 8): e.I(mq.pop(0))
                if pend: pend.pop(0)()
            e.I(s)
            if nxt and k >= 13:
                s2 = nxt.pop(0)
                if s2: e.I(s2)
        assert not nxt
        e.I(f's_mov_b32 s{sSo}, {(jj >> 2) * 73728 + (jj & 3) * 4096}')
        pend = [lambda j=j, O=O: st.pub(e, f'buffer_store_dwordx4 {vr(O+4*j)}, v{vHst}, {srd(sWS)}, s{sSo} offen offset:{j*2048} {cfg.st_flag}', 'O') for j in range(2)]
    for f in pend: f()
    assert not mq
    stamp(e, cfg, 7)
    st.try_signal(e, 'O', 17, force=True)
    stamp(e, cfg, 8)
    stamp_out(e, cfg)

def gen_all(cfg, code_bytes):
    OOL.clear()
    e = Em()
    if cfg.stamps:
        e.I('v_mov_b32 v35, 0'); stamp(e, cfg, 0)
        if cfg.rt: e.many('s_memtime s[100:101]\ns_waitcnt lgkmcnt(0)\nv_writelane_b32 v35, s100, 14')
    entry(e, cfg, code_bytes)
    e3 = e.fork()
    role_t2(e, cfg)
    e3.label('L_t3')
    role_t3(e3, cfg)
    e3.label('L_end')
    e3.I('s_endpgm')
    log(f'nops T2 {e.nops} T3 {e3.nops}')
    return e.text() + e3.text() + ''.join(OOL)

KD = '''.amdhsa_kernel {k}
  .amdhsa_next_free_vgpr 512
  .amdhsa_next_free_sgpr 102
  .amdhsa_accum_offset 256
  .amdhsa_group_segment_fixed_size 0
  .amdhsa_kernarg_size 88
  .amdhsa_user_sgpr_count 2
  .amdhsa_user_sgpr_kernarg_segment_ptr 1
  .amdhsa_system_sgpr_workgroup_id_x 1
  .amdhsa_float_denorm_mode_32 3
.end_amdhsa_kernel
'''
def build(cfg):
    k = NAME + '_kernel'
    body = gen_all(cfg, f'L_code_end-{k}-64')
    if cfg.skip:
        L = body.split('\n')
        if 'm' in cfg.skip: L = [l for l in L if not l.startswith((' v_mfma', ' ds_'))]
        if 'v' in cfg.skip: L = [l for l in L if not (l.startswith(' buffer_') and 'v35' not in l)]
        if 'p' in cfg.skip: L = [l for l in L if not l.startswith(' s_cbranch_scc0 L_spin')]
        if 's' in cfg.skip: L = [l for l in L if not (l.startswith((' buffer_store', ' buffer_atomic')) and 'v35' not in l)]
        body = '\n'.join(L)
    o = f'; {NAME}: generated by gen/gen5.py\n'
    o += f'; @launch grid=(256,1,1) block=(256,1,1) lds={LDS_BYTES}\n'
    o += '.amdgcn_target "amdgcn-amd-amdhsa--gfx950"\n.text\n'
    o += f'.globl {k}\n.p2align 8\n.type {k},@function\n{k}:\n{body}L_code_end:\n s_endpgm\n'
    o += '.section .rodata,"a"\n.p2align 6\n' + KD.format(k=k)
    return o

if __name__ == '__main__':
    cfg = Cfg(); out = None
    for a in sys.argv[1:]:
        if '=' in a:
            k, v = a.split('=', 1); cur = getattr(cfg, k)
            setattr(cfg, k, (v == '1') if isinstance(cur, bool) else type(cur)(v))
        else: out = a
    open(out or f'cdna_kernels/{NAME}.s', 'w').write(build(cfg))
```

```python
import sys, copy, re
from emit import Em

NAME = 'gated_mix__linear_attn_block__glu_gated_reglu__prompt'
H_BYTES = 32 * 4 * 36 * 2048
P_OFF = H_BYTES
CS = 32768 + 512
KV_OFF = P_OFF + 112 * CS
G_OFF = KV_OFF + 32 * 2048
FR_OFF = G_OFF + 8192
FK_OFF = FR_OFF + 131072
WS_USED = FK_OFF + 16384
NZ = 36
STAMP_OFF = 16 << 20
LOG2E = 0x3fb8aa3b
EPS = 0x358637bd
LDS_BYTES = 160 * 1024

class Cfg:
    LA = 5; WP = 2; LK = 2
    gap = 50; dgap = 20; dgap2 = 44; sgap = 20
    fillK = 48; fillA = 200; fillB = 38; fill3 = 38
    st_flag = 'sc1'; out_flag = ''
    touch = 2; tg = '1,2,3,1'
    zep = 5; n1a = 0; n1b = 6
    sigP = 12; sigA = 18; nA = 8; dA = 16; TM = 8; fillT = 36; nB = 2; ageB = 4; ageP = 7; ageA = 9; nP = 40; dP = 14
    vgap = 999; opseq = 4
    LH = 5; LHB = 2; LHO = 7; pollB = 4; pollO = 5; sigB = 2; burst = 8
    pre_age = 10; NPRE = 18; wstart = 7
    pP = 10; t3c = 60; t3k = 70; pburst = 7; kvr = 1; kvage = 8; gap3 = 90; fill3b = 34
    sigwg = 'PAB'; psleep = 2; spin = 4000
    stamps = False; rt = False; fine = False; fine2 = False; skip = ''

sX, sQKV, sI0, sI1, sWS, sDBG, sWD, sWO, sOUT, sGW, sCODE = [28 + 4 * i for i in range(11)]
sW, sRB, sC, sRT, sCT, sQH, sGrp, sZi = range(72, 80)
sM1K, sM2K, sM4K, sSoF, sSoJ, sT0, sT1, sT2, sSo, sEPS, sL2E, sPhiC = range(80, 92)
sPadM, sLoM, sHiM = 92, 94, 96
sPhiB, sPoll = 98, 99
sSoH, sSigR, sSoW, sDW2 = 26, 27, 10, 11
sU0, sU1, sU2 = 0, 1, 3
sTC = sCODE
def srd(b): return f's[{b}:{b+3}]'

vL, vL16, vL4, vD0, vD1, vJ0, vJ1, vHst, vPst, vAK, vAV, vONES, vDbg, vAG, vFv, vTch = range(1, 17)
vAX = [17, 18, 19, 20]
vAF = [[21 + 4 * w + t for t in range(4)] for w in range(3)]
vFl = 33
vT = 36
vDW0, vDW1, vH0, vH1, vG0, vG1, vOut, vWr, vPoll = range(60, 69)
vA2 = [[69, 70], [71, 72], [73, 74]]
vRd = [75, 76, 77]
vPA, vPO = 78, 79
vDX = [80, 81, 82, 83]
vPW = 84
aK, aV, aA, aB = 96, 112, 128, 192
aFR = 224
XB, JB, FB = 0, 48 * 1024, 104 * 1024
def hreg(sq): return 8 * sq if sq < 28 else 8 * (sq - 28)
def vr(b, n=4): return f'v[{b}:{b+n-1}]'
def ar(b, n=4): return f'a[{b}:{b+n-1}]'
def sub(r, o, n):
    k = r[0]; lo = int(r[2:r.index(':')]); return f'{k}[{lo+o}:{lo+o+n-1}]'
def srd_txt(b, lo, size): return f's_mov_b32 s{b}, s{lo}\ns_mov_b32 s{b+1}, s{lo+1}\ns_mov_b32 s{b+2}, {size}\ns_mov_b32 s{b+3}, 0x20000\n'
def log(*a): print('  ', *a, file=sys.stderr)

def stamp(e, cfg, i):
    if cfg.stamps:
        e.wait(lg_all=True)
        e.I(('s_memrealtime' if cfg.rt else 's_memtime') + ' s[100:101]'); e.I('s_waitcnt lgkmcnt(0)')
        e.I(f'v_writelane_b32 v35, s100, {i}')
def stamp_out(e, cfg):
    if not cfg.stamps: return
    if cfg.rt:
        e.many(f'''
        s_memtime s[100:101]
        v_readlane_b32 s{sT0}, v35, 14
        s_waitcnt lgkmcnt(0)
        s_sub_u32 s{sT0}, s100, s{sT0}
        s_lshr_b32 s{sT0}, s{sT0}, 4
        v_writelane_b32 v35, s{sT0}, 14
        s_memrealtime s[100:101]
        v_readlane_b32 s{sT0}, v35, 0
        s_waitcnt lgkmcnt(0)
        s_sub_u32 s{sT0}, s100, s{sT0}
        v_writelane_b32 v35, s{sT0}, 15
        ''')
    e.many(f's_lshl_b32 s{sT0}, s2, 2\ns_add_u32 s{sT0}, s{sT0}, s{sW}\ns_lshl_b32 s{sT0}, s{sT0}, 8\ns_add_u32 s{sT0}, s{sT0}, {STAMP_OFF}')
    e.V(f'buffer_store_dword v35, v{vL4}, {srd(sWS)}, s{sT0} offen', 'st')

class Pool:
    def __init__(self): self.free = []
    def add(self, addr): assert addr not in self.free; self.free.append(addr)
    def take(self, keep=0):
        if len(self.free) <= keep: return None
        return self.free.pop(0)

class St:
    def __init__(self, cfg, t3):
        self.cfg = cfg; self.t3 = t3
        self.pool = Pool(); self.wpool = Pool()
        for i in range(7): self.pool.add(FB + 8192 * i)
        self.fblk = {}; self.w2blk = {}
        q = []
        for s in range(7):
            q += [('x', s, j) for j in range(4)]
            if t3: q += [('f', 0, p, i) for p in (2 * s, 2 * s + 1) for i in (0, 1)]
            else: q += [('j', s, 0), ('j', s, 1)]
        for ps in ((1,) if t3 else (0, 1)):
            for p in range(14): q += [('f', ps, p, 0), ('f', ps, p, 1)]
        self.q = q; self.qw = []; self.qh = []
        self.e0 = {'K': 0, 0: 0 if t3 else 7, 1: 7 if t3 else 14}
        self.xpass = 0 if t3 else 'K'
        self.epoch = -1; self.h_ok = -1; self.a_ok = False
        self.cnt = {}; self.signalled = set(); self.x_issued = -1
        self.rd_done = []; self.rd_next = 0; self.rd_part = 0
        self.m0 = None
        self.pre_barrier = self.post_barrier = None
    def ep_of(self, ps, ks):
        if ps == 1 and not self.t3: ks = min(ks, 28 - self.cfg.TM)
        return self.e0[ps] + ks // 4
    def dep(self, d): return d[1] if d[0] in 'xj' else self.ep_of(d[1], 2 * d[2])
    def free_epoch(self, ps, pair):
        if ps == 1 and not self.t3 and 2 * pair >= 26 - self.cfg.TM: return 21
        return self.ep_of(ps, 2 * pair) + (2 if pair & 1 else 1)
    def demand(self, e):
        if not self.q or self.m0 == 'w': return False
        cfg = self.cfg; d = self.q[0]; tag = ('ep', self.dep(d))
        if self.m0 is None and self.dep(d) > max(self.epoch, 0) + cfg.LK: return False
        if d[0] == 'x':
            _, s, j = d
            if j == 0:
                if s >= 3 and (self.x_issued < 4 * s - 9 or ('x', 4 * s - 9) in e.lg): return False
                e.I(f's_add_u32 m0, s{sM4K}, {XB + (s % 3) * 16384}')
                if s: e.I(f's_movk_i32 s{sSoH}, {s * 128}')
            e.V(f'buffer_load_dwordx4 v{vDX[j]}, {srd(sX)}, ' + (f's{sSoH}' if s else '0') + f' offen offset:{j * 1024} lds', tag)
            self.m0 = 'd' if j < 3 else None
        elif d[0] == 'j':
            _, s, j = d
            if j == 0:
                e.I(f's_add_u32 m0, s{sM2K}, {JB + s * 8192}')
                if s: e.I(f's_mov_b32 s{sSoJ}, {s * 64 * 2688}')
            e.V(f'buffer_load_dwordx4 v{vJ0 + j}, {srd(sQKV)}, ' + (f's{sSoJ}' if s else '0') + f' offen offset:{j * 1024} lds', tag)
            self.m0 = 'd' if j < 1 else None
        else:
            _, ps, p, img = d
            stride = 2688 if self.t3 else 3584
            so = p * 32 * stride + ps * (256 if self.t3 else 128)
            if img == 0:
                a = self.pool.take()
                if a is None: return False
                self.fblk[(ps, p)] = a
                e.I(f's_add_u32 m0, s{sM2K}, {a}')
                if so: e.I(f's_mov_b32 s{sSoF}, {so}')
            e.V(f'buffer_load_dwordx4 v{vD0 + img}, {srd(sI0 + 4 * img)}, ' + (f's{sSoF}' if so else '0') + f' offen offset:{img * 1024} lds', tag)
            self.m0 = 'd' if img < 1 else None
        self.q.pop(0)
        return True
    def w2(self, e):
        if not self.qw or self.epoch < self.cfg.wstart or self.m0 == 'd': return False
        sq, part = self.qw[0]
        if sq < 28:
            p, s2 = divmod(sq, 14); row = 256 * (s2 >> 1) + 16 * (s2 & 1) + 64 * p; sr = sWD
        else:
            row = 16 * (sq - 28); sr = sWO
        if part == 0:
            for s2 in [x for x in self.rd_done if ('w2', x) not in e.lg]:
                self.rd_done.remove(s2); self.wpool.add(self.w2blk[s2])
            left = sum(1 for d in self.q if d[0] == 'f' and d[3] == 0)
            a = self.wpool.take()
            if a is None: a = self.pool.take(keep=min(left, 2))
            if a is None: return False
            self.w2blk[sq] = a
            if sq == 28:
                e.I(f'v_add_u32 v{vDW0}, s{sDW2}, v{vDW0}'); e.I(f'v_add_u32 v{vDW1}, s{sDW2}, v{vDW1}')
            e.I(f's_add_u32 m0, s{sM2K}, {a}')
            e.I(f's_mov_b32 s{sSoW}, {row * 896}')
        e.V(f'buffer_load_dwordx4 v{vDW0 + part}, {srd(sr)}, s{sSoW} offen offset:{part * 1024} lds', ('W', sq))
        self.m0 = 'w' if part == 0 else None
        self.qw.pop(0)
        return True
    def wreg(self, sq):
        if 14 <= sq < self.cfg.NPRE: return vr(aK + 8 * (sq - 14), 8)
        return ar(112 + 8 * sq, 8) if sq < 14 else (ar(aFR + 8 * (sq % 4), 8) if sq < 28 else vr(aB + 8 * (sq - 28), 8))
    def wread(self, e, sq, parts=(0, 1)):
        a = self.w2blk[sq]; f = self.wreg(sq)
        for n in parts:
            for j in range(2):
                e.D(f'ds_read_b64_tr_b16 {sub(f,4*n+2*j,2)}, v{vA2[a >> 16][n]} offset:{(a & 0xffff) + j * 1024}', ('w2', sq))
        if 1 in parts: self.rd_done.append(sq)
    def preread(self, e):
        sq = self.rd_next
        if sq >= self.cfg.NPRE or sq not in self.w2blk or (sq, 1) in self.qw: return False
        assert sq < 14 or self.cnt.get('P', 0) == 4
        if ('W', sq) in e.vm:
            if len(e.vm) - 1 - max(i for i, t in enumerate(e.vm) if t == ('W', sq)) < self.cfg.pre_age: return False
            e.wait(vm=[('W', sq)])
        self.wread(e, sq, (self.rd_part,))
        self.rd_part ^= 1
        if self.rd_part == 0: self.rd_next += 1
        return True
    def h(self, e):
        if not self.qh or self.qh[0][0] > self.h_ok: return False
        sq, b = self.qh.pop(0)
        if b == 0 and sq % 2 == 0: e.I(f's_mov_b32 s{sSoH}, {sq * 2048}')
        e.V(f'buffer_load_dwordx4 {ar(hreg(sq)+4*b)}, v{vH0+b}, {srd(sWS)}, s{sSoH} offen offset:{(sq & 1) * 2048} sc1', ('H', sq))
        return True
    def mem(self, e):
        if self.demand(e): return True
        wn = self.qw[0][0] if self.qw else 99; hn = self.qh[0][0] if self.qh else 99
        order = (self.w2, self.h) if wn <= hn + 1 or self.m0 == 'w' else (self.h, self.w2)
        return order[0](e) or order[1](e)
    def on_epoch(self, ep):
        self.epoch = ep
        for (ps, p), a in self.fblk.items():
            if self.free_epoch(ps, p) == ep: self.pool.add(a)
        if self.t3: return
        if 6 <= ep <= 8:
            a = XB + ((ep - 2) % 3) * 16384; self.pool.add(a); self.pool.add(a + 8192)
        if 2 <= ep <= 8: self.pool.add(JB + 8192 * (ep - 2))
    def pub(self, e, text, tag):
        e.V(text, tag); self.cnt[tag] = self.cnt.get(tag, 0) + 1
    def try_signal(self, e, tag, n, force=False, age=None):
        if tag in self.signalled or self.cnt.get(tag, 0) < n: return
        if age is not None and tag in e.vm and len(e.vm) - 1 - max(i for i, t in enumerate(e.vm) if t == tag) >= age: force = True
        if force: e.wait(vm=[tag])
        if tag in e.vm: return
        assert 'z' in self.signalled
        if tag in self.cfg.sigwg:
            e.I('s_barrier'); e.I(f's_cmp_eq_u32 s{sW}, 0'); e.I(f's_cbranch_scc0 L_sig{tag}')
            e.V(f'buffer_store_dword v{ {"P": vFv, "A": vDbg}.get(tag, vONES)}, v{vFl}, {srd(sWS)}, s{sSigR} offen sc1', cond=True)
            e.label(f'L_sig{tag}')
            if tag == 'P': e.I(f'v_mov_b32 v{vDbg}, 2')
        elif tag == 'P': e.V(f'buffer_store_dword v{vFv}, v{vFl}, {srd(sWS)}, s{sSigR} offen sc1', 'sig'); e.I(f'v_mov_b32 v{vDbg}, 2')
        elif tag == 'A': e.V(f'buffer_store_dword v{vDbg}, v{vFl}, {srd(sWS)}, s{sSigR} offen sc1', 'sig')
        else: e.V(f'buffer_store_dword v{vONES}, v{vFl}, {srd(sWS)}, s{sSoW if tag == "K" else sSigR} offen sc1', 'sig')
        if self.cfg.fine2 and tag in 'PAB': stamp(e, self.cfg, 44 + 'PAB'.index(tag))
        self.signalled.add(tag)
        log(f'signal {tag} at epoch {self.epoch} mfma {e.n_mfma}')

def steps(ps, tiles): return [(ps, ks, t) for ks in range(28) for t in tiles]

def issue_read(e, st, S, n):
    cfg = st.cfg
    ps, ks, t = S[n]
    ep = st.ep_of(ps, ks)
    if ep != st.epoch:
        while st.q and st.dep(st.q[0]) <= ep: assert st.mem(e), ('DMA cannot be issued in time', st.q[0], ep)
        if st.pre_barrier: st.pre_barrier(e, ep)
        e.wait(vm=[('ep', ep)])
        e.I('s_barrier')
        st.on_epoch(ep); st.n_ep = n
        if cfg.fine and ep > 0: stamp(e, cfg, 43 + ep)
        if st.post_barrier: st.post_barrier(e, ep)
    if ps == st.xpass and n - st.n_ep < 4:
        q = n - st.n_ep
        e.D(f'ds_read_b128 {ar(4*(4*ep+q))}, v{vAX[q]} offset:{XB + (ep % 3) * 16384}', ('x', 4 * ep + q)); st.x_issued = 4 * ep + q
    fr = aFR + 4 * (n % 8)
    if t == 'g':
        e.D(f'ds_read_b128 {ar(fr)}, v{vAG} offset:{ks * 32}', ('w', n)); return
    if ps == 'K': reg = vAK + t; off = ks * 2048
    else:
        a = st.fblk[(ps, ks // 2)]
        reg = vAF[a >> 16][t]; off = (a & 0xffff) + (ks & 1) * 4096
    e.D(f'ds_read_b64_tr_b16 {ar(fr,2)}, v{reg} offset:{off}', ('w', n))
    e.D(f'ds_read_b64_tr_b16 {ar(fr+2,2)}, v{reg} offset:{off+512}', ('w', n))

def issue_mfma(e, st, S, n):
    ps, ks, t = S[n]
    fr = ar(aFR + 4 * (n % 8)); x = ar(4 * ks)
    e.wait(lg=[('w', n), ('w', n | (st.cfg.WP - 1)), ('x', ks)])
    if ps == 'K':
        acc = vr(aK + 16 * t, 16); a, b = x, fr
    else:
        acc = vr((aA, aB)[ps] + 16 * (3 if t == 'g' else t), 16); a, b = fr, x
    e.I(f'v_mfma_f32_32x32x16_bf16 {acc}, {a}, {b}, ' + ('0' if ks == 0 else acc))

def gap(e, st, fillers, fill, reads=None, tail=0, dg=None):
    cfg = st.cfg; t0 = e.last_mfma
    def gates():
        while fillers and fillers[0][0] == 'g' and fillers[0][1](): fillers.pop(0)
    gates()
    if not st.t3:
        st.try_signal(e, 'P', 4, age=cfg.ageP); st.try_signal(e, 'A', 4, age=cfg.ageA)
    idle = e.clk - e.last_vm; did = False
    if fillers and fillers[0][0] == 'm' and idle >= cfg.sgap: fillers.pop(0)[1](e); did = True
    elif idle >= dg and st.demand(e): did = True
    elif idle >= (cfg.gap3 if st.t3 else cfg.gap) and st.mem(e): did = True
    if reads: reads()
    gates(); k = 0
    while fillers and fillers[0][0] == 'd' and (k == 0 or e.clk - t0 + tail + 4 * fillers[0][2] <= fill):
        fillers.pop(0)[1](e); k += 1
    if not did and not k: st.preread(e)
    while fillers and fillers[0][0] == 'i' and e.clk - t0 + tail + 4 * fillers[0][2] <= fill:
        fillers.pop(0)[1](e)

def run_steps(e, st, S, lo, hi, fillers=None, fill=0, hook=None):
    cfg = st.cfg
    for n in range(lo, hi):
        issue_mfma(e, st, S, n)
        rd = (lambda: issue_read(e, st, S, n + cfg.LA)) if n + cfg.LA < len(S) else None
        gap(e, st, fillers, fill, rd, 4 if (n + 1) % cfg.WP == 0 else 0, cfg.dgap if st.epoch < 6 else cfg.dgap2)
        if hook: hook(n)
        if st.a_ok and S[n][0] == 1: st.h_ok = min(S[n][1], 28 - cfg.TM) // 2 - 1

def run_valu(e, st, fillers):
    for f in fillers:
        if f[0] == 'g': assert f[1](); continue
        f[1](e)
        if e.clk - e.last_vm >= st.cfg.vgap: st.mem(e)
    fillers.clear()

def fI(text, cost=1): return ('i', lambda e: e.I(text), cost)
def fF(fn, cost=1): return ('i', fn, cost)
def fM(fn): return ('m', fn, 3)
def fD(fn, cost=1): return ('d', fn, cost)
def fT(txt):
    for a, b in ((sT0, sU0), (sT1, sU1), (sT2, sU2)): txt = re.sub(rf'\bs{a}\b', f's{b}', txt)
    return [fI(l.strip()) for l in txt.strip().split('\n') if l.strip()]

def phi_fill(acc, n, tmp, generic=False):
    L = []
    for r0 in range(0, n, 4):
        for i in range(4): L.append(fI(f'v_mul_f32 v{tmp+i}, s{sL2E}, v{acc+r0+i}'))
        for i in range(4):
            L.append(fI(f'v_exp_f32_e64 v{tmp+i}, v{tmp+i} clamp', 2))
            L.append(fI(f'v_max_f32 v{acc+r0+i}, s{sPhiC if generic else sEPS}, v{acc+r0+i}'))
        for i in range(4):
            L.append(fI(f'v_fmac_f32 v{acc+r0+i}, s{sPhiB}, v{tmp+i}' if generic else f'v_add_f32 v{acc+r0+i}, v{acc+r0+i}, v{tmp+i}'))
    return L

def p_fill(st):
    L = []
    for t in range(2):
        for j in range(2):
            acc = aK + 16 * t + 8 * j; pk = vT + 4 + 4 * j
            L += phi_fill(acc, 8, vT, True)
            L += [fI(f'v_cvt_pk_bf16_f32 v{pk+i}, v{acc+2*i}, v{acc+2*i+1}') for i in range(4)]
            def st_(e, t=t, j=j, pk=pk):
                if t and not j: e.I(f's_mov_b32 s{sSo}, {4 * CS}')
                st.pub(e, f'buffer_store_dwordx4 {vr(pk)}, v{vPst}, {srd(sWS)}, ' + (f's{sSo}' if t else '0') + f' offen offset:{j*256} {st.cfg.st_flag}', 'P')
            L.append(fM(st_))
    return L

def f_fill(st, acc, i, ps):
    L = []
    for r in range(8): L.append(fI(f'v_max_f32 v{acc+r}, 0, v{acc+r}'))
    for r in range(8): L.append(fI(f'v_mul_f32 v{acc+r}, v{acc+r}, v{acc+8+r}'))
    for r in range(4): L.append(fI(f'v_cvt_pk_bf16_f32 v{acc+8+r}, v{acc+2*r}, v{acc+2*r+1}'))
    if i % 2 == 0: L.append(fI(f's_mov_b32 s{sSo}, {(i >> 1) * 147456 + ps * 28672}'))
    L.append(fM(lambda e: st.pub(e, f'buffer_store_dwordx4 {vr(acc+8)}, v{vHst}, {srd(sWS)}, s{sSo} offen offset:{(i & 1) * 2048} {st.cfg.st_flag}', 'AB'[ps])))
    return L

OOL = []
def spin_check(e, cfg, name, load, reg, above=0):
    test = f'v_cmp_lt_u32 vcc, {above}, v{reg}'
    e.I(test); e.I('s_cmp_eq_u64 vcc, -1'); e.I(f's_cbranch_scc0 L_spin_{name}')
    e.label(f'L_ok_{name}')
    OOL.append(f'L_spin_{name}:\n s_mov_b32 s{sT0}, 0\nL_spin2_{name}:\n s_sleep {cfg.psleep}\n {load}\n'
               f' s_add_u32 s{sT0}, s{sT0}, 1\n s_waitcnt vmcnt(0)\n {test}\n s_nop 1\n s_cmp_eq_u64 vcc, -1\n'
               f' s_cbranch_scc1 L_ok_{name}\n s_cmp_lt_u32 s{sT0}, {cfg.spin}\n s_cbranch_scc1 L_spin2_{name}\n s_branch L_ok_{name}\n')
WG = ['']
def poll_txt(kind): return f'buffer_load_dword v{vPoll}, v{vPO if kind == "O" else vPW if kind in WG[0] else vPA}, {srd(sWS)}, s{sT2 if kind in WG[0] else sPoll} offen sc1'
def poll_issue(e, kind):
    if kind in WG[0]: e.I(f's_andn2_b32 s{sT2}, s{sPoll}, 256')
    e.V(poll_txt(kind), ('poll', kind))
def poll_check(e, cfg, kind):
    e.wait(vm=[('poll', kind)])
    spin_check(e, cfg, kind, poll_txt(kind), vPoll, above={'A': 1, 'B': 2}.get(kind, 0))

t_ = [vT + 12 + i for i in range(10)]
def entry(e, cfg, code_bytes):
    t = t_
    e.many(f'''
    s_cmp_ge_u32 s2, 256
    s_cbranch_scc1 L_end
    s_load_dwordx16 s[4:19], s[0:1], 0
    s_load_dwordx4 s[20:23], s[0:1], 64
    s_load_dwordx2 s[24:25], s[0:1], 80
    s_getpc_b64 s[{sCODE}:{sCODE+1}]
    s_mov_b32 s{sCODE+2}, {code_bytes}
    s_mov_b32 s{sCODE+3}, 0x20000
    s_lshr_b32 s{sCT}, s2, 3
    s_mul_i32 s3, s{sCT}, 9
    v_min_u32 v{vT}, 8, v0
    v_add_lshl_u32 v{vT}, v{vT}, s3, 7
    ''')
    e.V(f'buffer_load_dword v{vT+1}, v{vT}, {srd(sCODE)}, 0 offen', 'code')
    e.many(f'''
    v_lshrrev_b32 v{t[3]}, 6, v0
    v_and_b32 v{vL}, 63, v0
    v_readfirstlane_b32 s{sW}, v{t[3]}
    v_lshrrev_b32 v{t[0]}, 3, v{vL}
    v_and_b32 v{t[1]}, 7, v0
    s_and_b32 s{sT1}, s{sCT}, 7
    s_lshr_b32 s{sGrp}, s2, 6
    s_and_b32 s{sRB}, s2, 4
    s_lshl1_add_u32 s{sRB}, s{sRB}, s{sT1}
    s_lshl2_add_u32 s{sT0}, s{sRB}, s{sW}
    s_mulk_i32 s{sT0}, {32*896}
    s_movk_i32 s{sT2}, 896
    v_xor_b32 v{t[4]}, v{t[1]}, v{t[0]}
    v_lshl_add_u32 v{t[4]}, v{t[4]}, 4, s{sT0}
    v_mad_u32_u24 v{vDX[0]}, v{t[0]}, s{sT2}, v{t[4]}
    s_movk_i32 s{sT0}, 6144
    v_add_u32 v{vDX[1]}, s{sT0}, v{vDX[0]}
    v_add_u32 v{vDX[2]}, s{sT0}, v{vDX[1]}
    v_add_u32 v{vDX[3]}, s{sT0}, v{vDX[2]}
    s_lshl_b32 s{sM2K}, s{sW}, 11
    s_lshl_b32 s{sM4K}, s{sW}, 12
    s_mov_b32 s{sX+2}, {2048*896}
    s_mov_b32 s{sX+3}, s{sCODE+3}
    s_mov_b32 s{sQKV+2}, {448*2688}
    s_mov_b32 s{sQKV+3}, s{sCODE+3}
    v_lshrrev_b32 v{t[2]}, 2, v0
    v_and_b32 v{t[2]}, 4, v{t[2]}
    v_xor_b32 v{t[2]}, v{t[2]}, v{t[1]}
    v_lshlrev_b32 v{t[2]}, 4, v{t[2]}
    s_lshr_b32 s{sQH}, s2, 1
    s_and_b32 s{sQH}, s{sQH}, 1
    s_xor_b32 s3, s{sT1}, s2
    s_and_b32 s3, s3, 1
    s_and_b32 s{sC}, s2, 1
    s_lshl2_add_u32 s{sC}, s{sC}, s{sGrp}
    s_cmp_eq_u32 s{sGrp}, 3
    s_cselect_b32 s3, s3, 0
    s_cselect_b32 s{sC}, 3, s{sC}
    s_mul_i32 s{sT0}, s{sQH}, 7
    s_add_u32 s{sC}, s{sC}, s{sT0}
    s_add_u32 s{sT0}, s{sC}, 7
    s_lshl_b32 s{sT0}, s{sT0}, 7
    s_movk_i32 s{sT2}, 2688
    v_lshl_add_u32 v{t[3]}, v{t[3]}, 4, v{t[0]}
    v_add_u32 v{t[4]}, s{sT0}, v{t[2]}
    v_mad_u32_u24 v{vJ0}, v{t[3]}, s{sT2}, v{t[4]}
    v_add_u32 v{vJ1}, {8*2688-1024}, v{vJ0}
    s_mov_b32 m0, s{sM4K}
    s_cmp_eq_u32 s3, 1
    {'s_memtime s[92:93]' if cfg.fine2 else ''}
    s_waitcnt lgkmcnt(0)
    {'s_memtime s[94:95]' if cfg.fine2 else ''}
    s_mov_b64 s[{sX}:{sX+1}], s[4:5]
    s_mov_b64 s[{sQKV}:{sQKV+1}], s[6:7]
    ''')
    for j in range(4): e.V(f'buffer_load_dwordx4 v{vDX[j]}, {srd(sX)}, 0 offen offset:{j * 1024} lds', ('ep', 0))
    e.I('s_cbranch_scc1 L_t3')

def first_loads(e, st, cfg, n_stage):
    R = '3' if st.t3 else '2'
    t = t_
    del st.q[:4]
    if st.t3:
        e.many(f'''
        s_mul_i32 s{sT0}, s{sW}, {8*2688}
        s_mul_i32 s{sT1}, s{sQH}, 448
        s_add_u32 s{sT0}, s{sT0}, s{sT1}
        v_mul_u32_u24 v{t[3]}, 2688, v{t[0]}
        v_add3_u32 v{vD0}, v{t[3]}, v{t[2]}, s{sT0}
        v_xor_b32 v{t[4]}, 32, v{t[2]}
        v_add3_u32 v{vD1}, v{t[3]}, v{t[4]}, s{sT0}
        s_mov_b32 s{sI0+2}, {448*2688}
        s_mov_b32 s{sI0+3}, 0x20000
        s_mov_b32 s{sI1+2}, {448*2688+896}
        s_mov_b32 s{sI1+3}, 0x20000
        s_mov_b32 s{sI0}, s6
        s_mov_b32 s{sI0+1}, s7
        s_sub_u32 s{sI1}, s6, 896
        s_subb_u32 s{sI1+1}, s7, 0
        ''')
    for _ in range(n_stage - 4): assert st.mem(e)
    if cfg.fine2 and not st.t3:
        stamp(e, cfg, 49); e.I('v_writelane_b32 v35, s92, 47'); e.I('v_writelane_b32 v35, s94, 48')
    if cfg.touch in (1, 2):
        e.many(f'''
        s_and_b32 s{sT0}, s2, 7
        s_lshl_b32 s{sT0}, s{sT0}, 5
        s_add_u32 s{sT0}, s{sT0}, s{sCT}
        s_and_b32 s{sT1}, s{sW}, 1
        s_lshl1_add_u32 s{sT0}, s{sT0}, s{sT1}
        s_cmp_lt_u32 s{sW}, 2
        s_cselect_b32 s{sT1}, 28, 21
        s_cselect_b32 s{sTC+2}, s{sX+2}, s{sQKV+2}
        s_cselect_b32 s{sTC}, s4, s6
        s_cselect_b32 s{sTC+1}, s5, s7
        s_mul_i32 s{sT0}, s{sT0}, s{sT1}
        s_sub_u32 s{sT1}, s{sT1}, 1
        v_min_u32 v{vTch}, s{sT1}, v{vL}
        v_add_lshl_u32 v{vTch}, v{vTch}, s{sT0}, 7
        ''')
        e.V(f'buffer_load_dword v{vPoll}, v{vTch}, {srd(sTC)}, 0 offen', 'tch')
    e.many(f'''
    v_lshlrev_b32 v{vL16}, 4, v{vL}
    v_lshlrev_b32 v{vL4}, 2, v{vL}
    s_and_b32 s{sZi}, s2, 63
    s_lshl_b32 s{sM1K}, s{sW}, 10
    s_bfe_u32 s{sT1}, s2, 0x20004
    s_add_u32 s{sT1}, s{sT1}, 24
    s_cmp_eq_u32 s{sGrp}, 3
    s_cselect_b32 s{sCT}, s{sT1}, s{sCT}
    ''')
    e.many(srd_txt(sWS, 24, STAMP_OFF + (1 << 20) if cfg.stamps else WS_USED) + f'''
    v_mov_b32 v{vT+4}, 0
    v_mov_b32 v{vT+5}, 0
    v_mov_b32 v{vT+6}, 0
    v_mov_b32 v{vT+7}, 0
    s_lshl_b32 s{sT0}, s2, 12
    s_add_u32 s{sT0}, s{sT0}, s{sM1K}
    s_add_u32 s{sT0}, s{sT0}, {FR_OFF - 128 * 4096}
    s_sub_u32 s{sT1}, s2, 128
    s_cmp_lt_u32 s{sT1}, {NZ}
    s_cselect_b32 s{sT0}, s{sT0}, 0x7fff0000
    ''')
    e.V(f'buffer_store_dwordx4 {vr(vT+4)}, v{vL16}, {srd(sWS)}, s{sT0} offen sc1', 'zero')
    for _ in range(cfg.n1a): assert st.mem(e)
    e.many(f'''
    v_lshrrev_b32 v{t[6]}, 5, v{vL}
    v_bfe_u32 v{t[5]}, v{vL}, 2, 2
    v_lshlrev_b32 v{t[5]}, 7, v{t[5]}
    v_and_b32 v{t[4]}, 3, v{vL}
    v_lshl_add_u32 v{t[5]}, v{t[4]}, 3, v{t[5]}
    v_bfe_u32 v{t[4]}, v{vL}, 3, 1
    v_lshl_add_u32 v{t[5]}, v{t[4]}, 6, v{t[5]}
    v_bfe_u32 v{t[7]}, v{vL}, 4, 1
    v_lshl_add_u32 v{t[5]}, v{t[7]}, 5, v{t[5]}
    v_xor_b32 v{t[4]}, v{t[1]}, v{t[6]}
    v_and_b32 v{t[8]}, 31, v{vL}
    v_lshlrev_b32 v{t[3]}, 7, v{t[8]}
    v_lshl_add_u32 v{t[3]}, v{t[4]}, 4, v{t[3]}
    v_add_u32 v{vAX[0]}, s{sM4K}, v{t[3]}
    v_xor_b32 v{vAX[1]}, 32, v{vAX[0]}
    v_xor_b32 v{vAX[2]}, 64, v{vAX[0]}
    v_xor_b32 v{vAX[3]}, 96, v{vAX[0]}
    v_mov_b32 v{vONES}, 0x3f803f80
    ''' + srd_txt(sDBG, 22, 256))
    af = f'v_lshl_add_u32 v{vAF[0][0]}, v{t[6]}, 11, v{t[5]}\n'
    if not st.t3: af += f'v_lshl_add_u32 v{vAF[0][0]}, v{t[7]}, 10, v{vAF[0][0]}\n'
    for q, X in zip((1, 2, 3), (64, 1024 + 32, 1024 + 96) if st.t3 else (32, 64, 96)): af += f'v_xor_b32 v{vAF[0][q]}, {X}, v{vAF[0][0]}\n'
    for w in (1, 2):
        for q in range(4): af += f'v_add_u32 v{vAF[w][q]}, {65536*w}, v{vAF[0][q]}\n'
    if st.t3: e.many(af); af = ''
    else: e.many(f'v_lshl_add_u32 v{vAK}, v{t[6]}, 10, v{t[5]}\nv_add_u32 v{vAK}, {JB}, v{vAK}\nv_xor_b32 v{vAV}, 64, v{vAK}')
    if cfg.touch >= 2: touch2_setup(e, R)
    if cfg.fine2 and not st.t3: stamp(e, cfg, 50)
    for _ in range(cfg.n1b): assert st.mem(e)
    if cfg.fine2 and not st.t3: stamp(e, cfg, 51)
    return af

def touch2_setup(e, R):
    t = t_
    a, b, c, sh, n1, n2, u = 4, 5, sT0, sT1, sT2, sSo, sSoW
    def par(size, A, B, shv, n2v): return f's_mov_b32 s{sTC+2}, {size}\ns_movk_i32 s{a}, {A}\ns_movk_i32 s{b}, {B}\ns_movk_i32 s{sh}, {shv}\ns_movk_i32 s{n2}, {n2v}\n'
    ff = f'''s_lshl_b32 s{u}, s{sRB}, 1
    s_lshr_b32 s{c}, s{sW}, 1
    s_add_u32 s{u}, s{u}, s{c}
    s_mul_i32 s{c}, s{u}, {14*3584}
    s_and_b32 s{u}, s2, 3
    s_mul_i32 s{u}, s{u}, 7
    s_add_u32 s{u}, s{u}, 1
    s_lshr_b32 s{u}, s{u}, 1
    s_lshl_b32 s{u}, s{u}, 8
    s_add_u32 s{c}, s{c}, s{u}
    s_lshl_b32 s{u}, s{sGrp}, 6
    s_add_u32 s{c}, s{c}, s{u}
    s_and_b32 s{u}, s2, 1
    s_sub_u32 s{n1}, 3, s{u}
    s_bitcmp1_b32 s{sW}, 0
    s_cselect_b32 s{sTC}, s14, s12
    s_cselect_b32 s{sTC+1}, s15, s13
    ''' + par(448 * 3584, 3584, 256, 2, 13)
    lin = f'''s_lshl_b32 s{u}, s{sZi}, 2
    s_add_u32 s{u}, s{u}, s{sW}
    s_cmp_eq_u32 s{sGrp}, 1
    s_cselect_b32 s{n1}, 49, 13
    s_cselect_b32 s{sTC}, s16, s8
    s_cselect_b32 s{sTC+1}, s17, s9
    ''' + par(448 * 896, 0, 128, 6, 0) + f'''s_cselect_b32 s{sTC+2}, {1792*896}, s{sTC+2}
    s_mul_i32 s{c}, s{u}, s{n1}
    s_lshl_b32 s{c}, s{c}, 7
    s_sub_u32 s{n1}, s{n1}, 1
    '''
    if R == '3': e.many(lin)
    else: e.many(f's_bitcmp0_b32 s{sGrp}, 0\ns_cbranch_scc0 L_ts{R}\n' + ff + f's_branch L_tx{R}\nL_ts{R}:\n' + lin + f'L_tx{R}:')
    e.many(f'''
    v_lshrrev_b32 v{t[3]}, s{sh}, v{vL}
    v_bfe_u32 v{t[4]}, v{vL}, 0, s{sh}
    v_min_u32 v{t[3]}, s{n2}, v{t[3]}
    v_min_u32 v{t[4]}, s{n1}, v{t[4]}
    v_mul_u32_u24 v{vTch}, s{a}, v{t[3]}
    v_mad_u32_u24 v{vTch}, v{t[4]}, s{b}, v{vTch}
    v_add_u32 v{vTch}, s{c}, v{vTch}
    ''')

def common_post(st, cfg):
    R = '3' if st.t3 else '2'
    tg = [int(x) for x in cfg.tg.split(',')]
    dbg_ld = f'buffer_load_dword v{vDbg}, v{vT+23}, {srd(sDBG)}, 0 offen sc1'
    def post(e, ep):
        if ep == 0: stamp(e, cfg, 2)
        if ep == 1 and not st.t3:
            assert 'zero' not in e.vm
            e.many(f'''
            s_sub_u32 s{sT0}, s2, 128
            s_lshl_b32 s{sT1}, s{sW}, 8
            s_or_b32 s{sT0}, s{sT0}, s{sT1}
            s_cmp_lt_u32 s{sT0}, {NZ}
            s_cbranch_scc0 L_noflag
            s_lshl_b32 s{sT0}, s{sT0}, 2
            s_mov_b64 exec, 1
            ''')
            e.V(f'buffer_store_dword v{vONES}, off, {srd(sDBG)}, s{sT0} sc1', cond=True)
            e.I('s_mov_b64 exec, -1')
            e.label('L_noflag')
        if ep == cfg.zep:
            e.I(f'v_min_u32 v{vT+23}, {4 * NZ - 4}, v{vL4}'); e.V(dbg_ld, 'dbg')
        if ep == cfg.zep + 2:
            e.wait(vm=['dbg']); spin_check(e, cfg, 'z' + R, dbg_ld, vDbg); st.signalled.add('z')
        if cfg.touch >= 2:
            if st.t3:
                if ep == tg[3]: e.V(f'buffer_load_dword v{vTch}, v{vTch}, {srd(sTC)}, 0 offen', 'tch')
            elif ep in tg:
                mask = sum(1 << g for g in range(4) if tg[g] == ep)
                e.I(f's_bitcmp1_b32 {mask}, s{sGrp}'); e.I(f's_cbranch_scc0 L_tch{ep}')
                e.V(f'buffer_load_dword v{vTch}, v{vTch}, {srd(sTC)}, 0 offen', cond=True)
                e.label(f'L_tch{ep}')
    return post

def late_common(t3):
    xs = f's_mul_i32 s{sT1}, s{sQH}, 72\ns_add_u32 s{sT1}, s{sT1}, 28\n' if t3 else f's_and_b32 s{sT1}, s{sC}, 1\ns_mul_i32 s{sT1}, s{sT1}, 35\ns_add_u32 s{sT1}, s{sT1}, s{sC}\n'
    pr = f's_add_u32 s{sT0}, s{sQH}, 14\n' if t3 else f's_mov_b32 s{sT0}, s{sC}\n'
    return f'''
    v_and_b32 v{vFl}, 124, v{vL4}
    s_mov_b32 s{sEPS}, {EPS:#x}
    s_mov_b32 s{sL2E}, {LOG2E:#x}
    s_lshr_b32 s{sT0}, s{sW}, 1
    s_lshl_b32 s{sT1}, s{sRB}, 1
    s_add_u32 s{sT0}, s{sT0}, s{sT1}
    s_mul_i32 s{sT0}, s{sT0}, 144
    {xs}s_add_u32 s{sT0}, s{sT0}, s{sT1}
    s_lshl_b32 s{sT0}, s{sT0}, 1
    s_and_b32 s{sT1}, s{sW}, 1
    s_add_u32 s{sT0}, s{sT0}, s{sT1}
    s_lshl_b32 s{sT0}, s{sT0}, 10
    v_add_u32 v{vHst}, s{sT0}, v{vL16}
    {pr}s_lshl_b32 s{sT1}, s{sRB}, 4
    s_add_u32 s{sT0}, s{sT0}, s{sT1}
    s_lshl_b32 s{sT0}, s{sT0}, 2
    s_add_u32 s{sT0}, s{sT0}, s{sW}
    s_lshl_b32 s{sT0}, s{sT0}, 7
    s_add_u32 s{sSigR}, s{sT0}, {FR_OFF}
    '''

def late_t2(af):
    t = t_
    early = f'''
    s_mul_i32 s{sT0}, s{sW}, {8*3584}
    s_lshl_b32 s{sT1}, s{sC}, 8
    s_add_u32 s{sT0}, s{sT0}, s{sT1}
    v_mul_u32_u24 v{t[3]}, 3584, v{t[0]}
    v_add3_u32 v{vD0}, v{t[3]}, v{t[2]}, s{sT0}
    v_xor_b32 v{vD1}, 32, v{vD0}
    ''' + srd_txt(sI0, 12, 448 * 3584) + f'''s_mov_b32 s{sI1+2}, {448*3584+1024}
    s_mov_b32 s{sI1+3}, 0x20000
    ''' + af
    pair = fF(lambda e: e.many(f's_sub_u32 s{sI1}, s14, 1024\ns_subb_u32 s{sI1+1}, s15, 0'), 2)
    rest = late_common(False) + f'''
    v_mov_b32 v{vFv}, 1
    s_xor_b32 s{sT0}, s{sQH}, 1
    s_mul_i32 s{sPhiB}, s{sT0}, 0x3f800000
    s_mul_i32 s{sT0}, s{sT0}, {EPS:#x}
    s_mul_i32 s{sT1}, s{sQH}, 0xff800000
    s_add_u32 s{sPhiC}, s{sT0}, s{sT1}
    s_lshl_b32 s{sT0}, s{sRB}, 2
    s_add_u32 s{sT0}, s{sT0}, s{sW}
    s_lshl_b32 s{sT0}, s{sT0}, 9
    s_mul_i32 s{sT1}, s{sC}, {8*CS}
    s_add_u32 s{sT0}, s{sT0}, s{sT1}
    s_add_u32 s{sT0}, s{sT0}, {P_OFF}
    v_and_b32 v{t[3]}, 3, v{t[0]}
    v_mul_u32_u24 v{vPst}, {CS}, v{t[3]}
    v_lshl_add_u32 v{vPst}, v{t[6]}, 7, v{vPst}
    v_lshl_add_u32 v{vPst}, v{t[1]}, 4, v{vPst}
    v_add_u32 v{vPst}, s{sT0}, v{vPst}
    s_and_b32 s{sRT}, s2, 7
    s_lshl_b32 s{sRT}, s{sRT}, 2
    s_and_b32 s{sT1}, s{sCT}, 3
    s_add_u32 s{sRT}, s{sRT}, s{sT1}
    s_lshr_b32 s{sCT}, s{sCT}, 2
    ''' + srd_txt(sWD, 16, 1792 * 896) + srd_txt(sWO, 8, 448 * 896) + srd_txt(sOUT, 20, 2048 * 896) + f'''
    s_and_b32 s{sT1}, s{sW}, 1
    s_lshl_b32 s{sT1}, s{sT1}, 2
    s_lshr_b32 s{sT2}, s{sW}, 1
    s_add_u32 s{sT1}, s{sT1}, s{sT2}
    s_mul_i32 s{sT1}, s{sT1}, {32*896}
    s_mul_i32 s{sT2}, s{sW}, {112*896}
    s_sub_u32 s{sDW2}, s{sT2}, s{sT1}
    s_lshl_b32 s{sT0}, s{sCT}, 7
    s_add_u32 s{sT1}, s{sT1}, s{sT0}
    v_mul_u32_u24 v{t[3]}, 896, v{t[0]}
    v_add3_u32 v{vDW0}, v{t[3]}, v{t[2]}, s{sT1}
    v_add_u32 v{vDW1}, 6144, v{vDW0}
    s_lshl_b32 s{sT0}, s{sRT}, 2
    s_add_u32 s{sT0}, s{sT0}, s{sW}
    s_mul_i32 s{sT0}, s{sT0}, 72
    s_lshr_b32 s{sT1}, s{sW}, 1
    s_add_u32 s{sT0}, s{sT0}, s{sT1}
    s_lshl_b32 s{sT0}, s{sT0}, 10
    v_add_u32 v{vH0}, s{sT0}, v{vL16}
    v_xor_b32 v{vH1}, 1024, v{vH0}
    v_lshl_add_u32 v{t[3]}, v{t[6]}, 9, v{t[5]}
    s_and_b32 s{sT0}, s{sW}, 1
    s_lshl_b32 s{sT0}, s{sT0}, 6
    v_xor_b32 v{t[3]}, s{sT0}, v{t[3]}
    v_add_u32 v{vA2[0][0]}, s{sM2K}, v{t[3]}
    v_xor_b32 v{vA2[0][1]}, 64, v{vA2[0][0]}
    v_add_u32 v{vA2[1][0]}, 0x10000, v{vA2[0][0]}
    v_add_u32 v{vA2[1][1]}, 0x10000, v{vA2[0][1]}
    v_add_u32 v{vA2[2][0]}, 0x20000, v{vA2[0][0]}
    v_add_u32 v{vA2[2][1]}, 0x20000, v{vA2[0][1]}
    s_lshl_b32 s{sT1}, s{sRT}, 1
    s_lshr_b32 s{sT2}, s{sW}, 1
    s_add_u32 s{sT1}, s{sT1}, s{sT2}
    s_lshl_b32 s{sT1}, s{sT1}, 5
    v_add_u32 v{t[3]}, s{sT1}, v{t[8]}
    v_lshlrev_b32 v{vG0}, 2, v{t[3]}
    v_add_u32 v{vG0}, {G_OFF}, v{vG0}
    v_lshlrev_b32 v{vG1}, 7, v{t[6]}
    v_xor_b32 v{vG0}, v{vG1}, v{vG0}
    v_mul_u32_u24 v{vOut}, 896, v{t[3]}
    v_lshl_add_u32 v{vOut}, v{t[6]}, 4, v{vOut}
    s_lshl_b32 s{sT1}, s{sCT}, 7
    s_add_u32 s{sT1}, s{sT1}, s{sT0}
    v_add_u32 v{vOut}, s{sT1}, v{vOut}
    v_add_u32 v{vWr}, s{sM2K}, v{vL16}
    v_xor_b32 v{vRd[0]}, 2048, v{vWr}
    v_xor_b32 v{vRd[1]}, 4096, v{vWr}
    v_xor_b32 v{vRd[2]}, 6144, v{vWr}
    s_lshr_b32 s{sT0}, s{sRT}, 1
    s_lshl_b32 s{sT0}, s{sT0}, 13
    s_and_b32 s{sT1}, s{sRT}, 1
    s_lshl_b32 s{sT1}, s{sT1}, 8
    s_add_u32 s{sT0}, s{sT0}, s{sT1}
    s_add_u32 s{sPoll}, s{sT0}, {FR_OFF}
    v_and_b32 v{t[4]}, 1, v{vL}
    v_lshlrev_b32 v{t[4]}, 7, v{t[4]}
    v_lshrrev_b32 v{t[3]}, 1, v{vL}
    v_min_u32 v{t[3]}, 6, v{t[3]}
    v_lshl_add_u32 v{vPA}, v{t[3]}, 10, v{t[4]}
    s_and_b32 s{sT0}, s{sW}, 1
    s_lshl_b32 s{sT0}, s{sT0}, 9
    v_add_u32 v{vPA}, s{sT0}, v{vPA}
    v_and_b32 v{vPW}, 0xffffff7f, v{vPA}
    s_lshr_b32 s{sT0}, s{sW}, 1
    s_add_u32 s{sT0}, s{sT0}, 14
    s_lshl_b32 s{sT0}, s{sT0}, 9
    v_add_u32 v{vPO}, s{sT0}, v{t[4]}
    '''
    return [pair] + fT(early), fT(rest)

def phase2(e, st, cfg):
    ACC = aA
    if st.rd_part: st.preread(e)
    def reads(sq):
        if sq < st.rd_next: return
        while (sq, 1) in st.qw: assert st.w2(e), ('no LDS block for W2', sq)
        e.wait(vm=[('W', sq)])
        st.wread(e, sq)
        if sq < cfg.NPRE: st.rd_next = sq + 1
    def need_h(sq):
        while (sq, 1) in st.qh: assert st.h(e), ('H not allowed yet', sq)
    def mf(x, sq):
        acc = vr(ACC + 16 * x, 16)
        e.I(f'v_mfma_f32_32x32x16_bf16 {acc}, {sub(st.wreg(sq),4*(x&1),4)}, {ar(hreg(sq)+4*(x>>1))}, ' + ('0' if sq == 0 else acc))
    def scale(x): return [f'v_mul_f32 v{ACC+16*x+r}, v{ACC+16*x+r}, v{vG0 + (x >> 1)}' for r in range(16)]
    red = lambda x, q: ((x - 1) * 2 + (q >> 1)) * 8192 + (q & 1) * 1024
    reads(0)
    extra = list(range(29, 35)); hmax = 13
    for t in range(28):
        if cfg.fine: stamp(e, cfg, 16 + t)
        st.try_signal(e, 'B', 4, force=t >= cfg.sigB)
        if t == 14 - cfg.LHB - cfg.pollB: poll_issue(e, 'B')
        if t == 28 - cfg.LHO - cfg.pollO: poll_issue(e, 'O')
        if t == 14 - cfg.LHB:
            need_h(13)
            while st.w2(e): pass
            log(f'B check: W2 ops {70-len(st.qw)}')
            stamp(e, cfg, 6); poll_check(e, cfg, 'B'); stamp(e, cfg, 7)
            st.h_ok = hmax = 27
            assert cfg.burst // 2 <= t
            for _ in range(cfg.burst): st.h(e)
        if t == 28 - cfg.LHO:
            stamp(e, cfg, 8); poll_check(e, cfg, 'O'); stamp(e, cfg, 9); hmax = 35
            e.V(f'buffer_load_dword v{vG0}, v{vG0}, {srd(sWS)}, 0 offen sc1', 'g')
        if t >= 14 - cfg.LHB: st.h_ok = 35 if hmax == 35 else min(hmax, t + cfg.LH)
        assert st.h_ok < 14 or min(st.h_ok, 27) - 14 < t
        rd = [t + 1]
        if t >= 22: rd.append(extra.pop(0))
        need_h(t)
        e.wait(vm=[('H', t)], lg=[('w2', t)])
        k = cfg.opseq
        for i, x in enumerate((1, 2, 3, 0)):
            mf(x, t)
            st.try_signal(e, 'B', 4, age=cfg.ageB)
            if k > 0 and st.mem(e): k -= 1
            if k > 3 - i and st.mem(e): k -= 1
            if rd and i in (0, 2): reads(rd.pop(0))
            if i in (1, 2):
                st.preread(e)
                if i == 2 and st.rd_part: st.preread(e)
            if t == 27 and i == 1: e.wait(vm=['g']); e.I(f'v_mov_b32 v{vG1}, v{vG0}')
            if t == 27 and i == 2: e.I(f'v_permlane32_swap_b32 v{vG0}, v{vG1}')
    assert not extra and {'P', 'A', 'B'} <= st.signalled
    need_h(34)
    assert not st.qw and not st.qh
    stamp(e, cfg, 10)
    qs = []
    def q(i):
        if cfg.fine2: e.I(('s_memrealtime' if cfg.rt else 's_memtime') + f' s[{12+2*i}:{13+2*i}]'); qs.append(i)
    e.wait(vm=['g'], lg_all=True)
    for s in scale(1): e.I(s)
    order = (1, 2, 3, 0)
    wr_op = lambda px, q: e.D(f'ds_write_b128 v{vWr}, {vr(ACC+16*px+4*q)} offset:{red(px,q)}', ('rw', px))
    rd_op = lambda x, q: e.D(f'ds_read_b128 {vr(ACC+16*x+4*q)}, v{vRd[x-1]} offset:{red(x,q)}', ('rr', x))
    add = lambda d, a: [f'v_add_f32 v{ACC+16*d+r}, v{ACC+16*d+r}, v{ACC+16*a+r}' for r in range(16)]
    padd = lambda d, a: [f'v_pk_add_f32 {vr(ACC+16*d+r,2)}, {vr(ACC+16*d+r,2)}, {vr(ACC+16*a+r,2)}' for r in range(0, 16, 2)]
    for i, x in enumerate(order):
        side = scale(order[i + 1]) if i < 3 else add(1, 2)
        q(i)
        wj = (2, 3, 5, 6) if i < 3 else (2, 3, 4, 5)
        for j, sq in enumerate(range(28, 35)):
            e.wait(vm=[('H', sq)])
            mf(x, sq)
            if i >= 2 and j == 1:
                e.wait(lg=[('rw', i - 1)]); e.I('s_barrier')
                for qq in range(4): rd_op(i - 1, qq)
            if i >= 1 and j in wj: wr_op(i, wj.index(j))
            if i == 3 and j == 3: e.wait(lg=[('rr', 2)])
            n = ((3, 3, 3, 3, 2, 2, 0), (6, 6, 0, 0, 4, 0, 0), (6, 0, 2, 2, 4, 2, 0), (0, 0, 0, 4, 4, 4, 4))[i][j]
            for s in side[:n]: e.I(s)
            side = side[n:]
        assert not side
    q(4)
    e.wait(lg=[('rw', 3)]); e.I('s_barrier')
    q(5)
    for qq in range(4): rd_op(3, qq)
    for s in padd(0, 1): e.I(s)
    e.wait(lg=[('rr', 3)])
    for s in padd(0, 3): e.I(s)
    q(6)
    O = aK
    for i in range(8): e.I(f'v_cvt_pk_bf16_f32 v{O+i}, v{ACC+2*i}, v{ACC+2*i+1}')
    for b in (0, 4):
        e.I(f'v_permlane32_swap_b32 v{O+b}, v{O+b+2}'); e.I(f'v_permlane32_swap_b32 v{O+b+1}, v{O+b+3}')
    e.V(f'buffer_store_dwordx4 {vr(O)}, v{vOut}, {srd(sOUT)}, 0 offen {cfg.out_flag}', 'out')
    e.V(f'buffer_store_dwordx4 {vr(O+4)}, v{vOut}, {srd(sOUT)}, 0 offen offset:32 {cfg.out_flag}', 'out')
    stamp(e, cfg, 11)
    for i in qs: e.I(f'v_writelane_b32 v35, s{12+2*i}, {16+i}')
    if cfg.stamps: e.wait(vm_all=True); stamp(e, cfg, 12)

def role_t2(e, cfg):
    st = St(cfg, False)
    af = first_loads(e, st, cfg, 6)
    early, late = late_t2(af)
    stamp(e, cfg, 1)
    cpost = common_post(st, cfg)
    def post(e, ep):
        cpost(e, ep)
        st.try_signal(e, 'P', 4, force=ep >= cfg.sigP)
        st.try_signal(e, 'A', 4, force=ep >= cfg.sigA)
    st.post_barrier = post
    S = steps('K', (0, 1)) + steps(0, (0, 1, 2, 3)) + steps(1, (0, 1, 2, 3))
    TM = cfg.TM; S[len(S) - 4 * TM:] = [(1, ks, t) for t in range(4) for ks in range(28 - TM, 28)]
    for n in range(cfg.LA): issue_read(e, st, S, n)
    run_steps(e, st, S, 0, 16, early, cfg.fillK)
    assert not early
    run_steps(e, st, S, 16, 56, late, cfg.fillK)
    log(f'end of pass K: fillers left {len(late)}')
    run_valu(e, st, late)
    stamp(e, cfg, 13)
    st.qw = [(sq, p) for sq in range(35) for p in range(2)]
    st.qh = [(sq, p) for sq in range(35) for p in range(2)]
    run_steps(e, st, S, 56, 58)
    fill = p_fill(st)
    run_steps(e, st, S, 58, 170, fill, cfg.fillA)
    assert not fill
    log(f'end of pass A: W2 ops {70-len(st.qw)} pool {len(st.pool.free)} preread {st.rd_next}')
    stamp(e, cfg, 3)
    fill = sum((f_fill(st, aA + 16 * i, i, 0) for i in range(4)), [])
    def hook(n):
        if n == len(S) - cfg.nA - cfg.dA: poll_issue(e, 'A')
        if n == len(S) - cfg.nA: poll_check(e, cfg, 'A'); st.a_ok = True
    n0 = len(S) - 3 * TM + 2
    run_steps(e, st, S, 170, n0, fill, cfg.fillB, hook)
    assert not fill
    for i in range(3):
        fill += f_fill(st, aB + 16 * i, i, 1)
        run_steps(e, st, S, n0 + i * TM, min(n0 + (i + 1) * TM, len(S)), fill, cfg.fillT, hook)
    log(f'end of pass B: W2 ops {70-len(st.qw)} H ops {70-len(st.qh)} pool {len(st.pool.free)} preread {st.rd_next} fillers {len(fill)}')
    stamp(e, cfg, 4)
    e.I('s_barrier'); st.on_epoch(21)
    assert st.a_ok and 'A' in st.signalled
    st.h_ok = 13
    for _ in range(cfg.nB): st.mem(e)
    run_valu(e, st, fill + f_fill(st, aB + 48, 3, 1))
    stamp(e, cfg, 5)
    phase2(e, st, cfg)
    stamp_out(e, cfg)
    e.I('s_endpgm')

def role_t3(e, cfg):
    st = St(cfg, True); st.rd_next = 99
    first_loads(e, st, cfg, 8)
    t = t_
    P = aA
    G, G1, Z, vPk, vPv, vPp, vKp, vSw, vSr, vKw = 60, 61, 62, 63, 84, 85, 86, 87, 88, 89
    ON = 92
    sKV, sGo, sKo, sXm, sRowM = sWD, sWD + 1, sWD + 2, sWD + 3, sWO
    vL8 = 90
    GW, SCR, XCH = JB, JB + 8192, JB + 24576
    setup = fT(late_common(True) + srd_txt(sGW, 18, 896) + f'''
    v_lshlrev_b32 v{vAG}, 4, v{t[6]}
    v_add_u32 v{vAG}, {GW}, v{vAG}
    s_and_b32 s{sT0}, s{sRB}, 1
    s_xor_b32 s{sT0}, s{sT0}, 1
    s_mul_i32 s{sT0}, s{sT0}, 28
    s_lshl_b32 s{sPadM}, 15, s{sT0}
    s_mov_b32 s{sPadM+1}, s{sPadM}
    s_mov_b32 s{sLoM}, -1
    s_mov_b32 s{sLoM+1}, 0
    s_mov_b32 s{sHiM}, 0
    s_mov_b32 s{sHiM+1}, -1
    v_mov_b32 v{Z}, 0
    v_mov_b32 v{ON}, v{vONES}
    v_mov_b32 v{ON+1}, v{vONES}
    v_mov_b32 v{ON+2}, v{vONES}
    v_mov_b32 v{ON+3}, v{vONES}
    s_lshl_b32 s{sT2}, s{sQH}, 2
    s_add_u32 s{sT2}, s{sT2}, s{sW}
    s_lshl_b32 s{sT0}, s{sT2}, 12
    s_mul_i32 s{sT1}, s{sRB}, 28
    s_and_b32 s{sT1}, s{sT1}, -8
    v_add_u32 v{t[3]}, s{sT1}, v{t[8]}
    v_lshrrev_b32 v{t[3]}, 3, v{t[3]}
    v_mul_u32_u24 v{vPk}, {CS}, v{t[3]}
    v_lshl_add_u32 v{vPk}, v{t[6]}, 7, v{vPk}
    v_lshl_add_u32 v{vPk}, v{t[1]}, 4, v{vPk}
    s_add_u32 s{sT0}, s{sT0}, {P_OFF}
    v_add_u32 v{vPk}, s{sT0}, v{vPk}
    v_add_u32 v{vPv}, {56*CS}, v{vPk}
    v_bfe_u32 v{t[3]}, v{vL}, 2, 1
    v_mul_u32_u24 v{t[3]}, 31, v{t[3]}
    v_add_u32 v{t[3]}, s{sT1}, v{t[3]}
    v_lshrrev_b32 v{t[3]}, 6, v{t[3]}
    v_bfe_u32 v{t[4]}, v{vL}, 3, 1
    v_mad_u32_u24 v{t[3]}, v{t[4]}, 7, v{t[3]}
    v_lshl_add_u32 v{t[3]}, v{t[7]}, 4, v{t[3]}
    v_and_b32 v{t[4]}, {0 if 'P' in cfg.sigwg else 3}, v{vL}
    v_lshl_add_u32 v{t[3]}, v{t[3]}, 2, v{t[4]}
    v_lshlrev_b32 v{vPp}, 7, v{t[3]}
    s_lshl_b32 s{sPoll}, s{sT2}, 14
    s_lshr_b32 s{sKV}, s{sPoll}, 1
    s_add_u32 s{sKV}, s{sKV}, {KV_OFF}
    s_add_u32 s{sPoll}, s{sPoll}, {FR_OFF}
    v_and_b32 v{vKp}, 15, v{vL}
    v_lshlrev_b32 v{vKp}, 7, v{vKp}
    s_lshl_b32 s{sT0}, s{sT2}, 11
    s_add_u32 s{sT0}, s{sT0}, {FK_OFF}
    v_add_u32 v{vKp}, s{sT0}, v{vKp}
    s_lshl_b32 s{sT0}, s{sRB}, 1
    s_add_u32 s{sT0}, s{sT0}, s{sQH}
    s_lshl_b32 s{sT0}, s{sT0}, 2
    s_add_u32 s{sT0}, s{sT0}, s{sW}
    s_lshl_b32 s{sKo}, s{sT0}, 9
    s_add_u32 s{sKo}, s{sKo}, {KV_OFF}
    s_lshl_b32 s{sT0}, s{sT0}, 7
    s_add_u32 s{sSoW}, s{sT0}, {FK_OFF}
    v_add_u32 v{vSw}, s{sM4K}, v{vL16}
    v_add_u32 v{vSw}, {SCR}, v{vSw}
    v_add_u32 v{vKw}, {XCH}, v{vL16}
    v_and_b32 v{t[3]}, 1, v{vL}
    v_lshrrev_b32 v{t[4]}, 1, v{vL}
    v_lshlrev_b32 v{t[4]}, 4, v{t[4]}
    v_lshl_add_u32 v{vSr}, v{t[3]}, 10, v{t[4]}
    s_lshr_b32 s{sT0}, s{sW}, 1
    s_lshl_b32 s{sT0}, s{sT0}, 11
    s_and_b32 s{sT1}, s{sW}, 1
    s_lshl_b32 s{sT1}, s{sT1}, 9
    s_add_u32 s{sT0}, s{sT0}, s{sT1}
    s_add_u32 s{sT0}, s{sT0}, {SCR}
    v_add_u32 v{vSr}, s{sT0}, v{vSr}
    v_lshlrev_b32 v{vL8}, 3, v{vL}
    s_and_b32 s{sT0}, s{sRB}, 1
    s_xor_b32 s{sT0}, s{sT0}, 1
    s_mul_i32 s{sT0}, s{sT0}, 7
    s_lshl_b32 s{sT1}, s{sW}, 1
    v_add_u32 v{t[3]}, s{sT1}, v{t[3]}
    v_cmp_eq_u32_e64 s[{sRowM}:{sRowM+1}], s{sT0}, v{t[3]}
    s_lshl_b32 s{sXm}, s{sW}, 13
    s_add_u32 s{sXm}, s{sXm}, {XCH}
    s_lshl_b32 s{sGo}, s{sRB}, 2
    s_add_u32 s{sGo}, s{sGo}, s{sW}
    s_lshl_b32 s{sGo}, s{sGo}, 7
    s_add_u32 s{sGo}, s{sGo}, {G_OFF}
    ''')
    stamp(e, cfg, 1)
    def q_fill(acc, tl):
        L = phi_fill(acc, 16, vT)
        for i in range(8): L.append(fI(f'v_cvt_pk_bf16_f32 v{P+8*tl+i}, v{acc+2*i}, v{acc+2*i+1}'))
        return L
    pload = f'buffer_load_dword v{vPoll}, v{vPp}, {srd(sWS)}, s{sPoll} offen sc1'
    kload = f'buffer_load_dword v{vPoll}, v{vKp}, {srd(sWS)}, 0 offen sc1'
    preg = lambda u, b: 112 + 8 * u + 4 * b if u < 14 else 8 * (u - 14) + 4 * b
    pq = [(u, b) for u in range(16) for b in range(2)]
    state = {'ok': -1}
    def p_op(e):
        if not pq or pq[0][0] > state['ok']: return False
        u, b = pq.pop(0)
        e.V(f'buffer_load_dwordx4 {ar(preg(u, b))}, v{vPv if b else vPk}, {srd(sWS)}, 0 offen offset:{u*256} sc1', ('P', u))
        return True
    st.h = p_op
    cpost = common_post(st, cfg)
    def post(e, ep):
        cpost(e, ep)
        if ep == 4:
            assert not setup
            while st.m0: st.mem(e)
            e.I(f's_mov_b32 m0, {GW}')
            e.V(f'buffer_load_dwordx4 v{vL16}, {srd(sGW)}, 0 offen lds', ('ep', 7))
    st.post_barrier = post
    S = steps(0, (0, 1, 2, 3)) + steps(1, (0, 1, 2, 'g'))
    for n in range(cfg.LA): issue_read(e, st, S, n)
    run_steps(e, st, S, 0, 114, setup, cfg.fill3)
    stamp(e, cfg, 3)
    fill = sum((q_fill(aA + 16 * tl, tl) for tl in range(4)), [])
    def kv_step(fl):
        u = state['u']; state['u'] += 1
        while (u, 1) in pq: p_op(e)
        e.wait(vm=[('P', u)])
        for b in range(2):
            acc = vr(aK + 16 * b, 16)
            e.I(f'v_mfma_f32_32x32x16_bf16 {acc}, {ar(preg(u,0))}, ' + (vr(ON) if b else ar(preg(u, 1))) + ', ' + ('0' if u == 0 else acc))
            gap(e, st, fill, fl, None, 0, cfg.dgap2)
    def hook(n):
        if n == 112 + cfg.nP: e.V(pload, 'pp')
        if n == 112 + cfg.nP + cfg.dP:
            assert 'z' in st.signalled
            stamp(e, cfg, 5); e.wait(vm=['pp']); spin_check(e, cfg, 'P', pload, vPoll); stamp(e, cfg, 6)
            state['ok'] = 15
            for _ in range(cfg.pburst): p_op(e)
        u = state['u']
        if u < 16 and n % cfg.kvr == cfg.kvr - 1 and (u, 1) not in pq and (not pq or 2 * u + 2 + cfg.kvage <= 32 - len(pq)): kv_step(cfg.fill3b)
    state['u'] = 0
    run_steps(e, st, S, 114, len(S), fill, cfg.fill3b, hook)
    log(f'T3 left-over fillers {len(fill)}, P loads left {len(pq)}, KV steps done {state["u"]}')
    stamp(e, cfg, 4)
    fs = lambda i: stamp(e, cfg, 16 + i) if cfg.fine else None
    lg = aB + 48
    q4 = q_fill(aB, 4)
    gops = [f'v_mul_f32 v{G}, 0xbfb8aa3b, v{lg}', f'v_exp_f32 v{G}, v{G}', f'v_add_f32 v{G}, 1.0, v{G}', f'v_rcp_f32 v{G}, v{G}', f'v_sub_f32 v{G1}, 1.0, v{G}']
    for i, g in enumerate(gops): q4.insert(12 + 3 * i, fI(g))
    fill += q4 + q_fill(aB + 16, 5) + q_fill(aB + 32, 6)
    def some(k):
        nonlocal fill
        run_valu(e, st, fill[:k]); del fill[:k]
    assert state['ok'] == 15
    while pq and 32 - len(pq) < 2 * state['u'] + cfg.kvage: p_op(e)
    cfg2 = copy.copy(cfg); cfg2.gap3 = 20; st.cfg = cfg2
    while state['u'] < 16: kv_step(cfg.t3c if pq else 36)
    fs(0)
    some(10)
    for q in range(4):
        for r in range(4 * q, 4 * q + 4): e.I(f'v_cndmask_b32_e64 v{aK+r}, v{aK+r}, v{aV+r}, s[{sPadM}:{sPadM+1}]')
        e.D(f'ds_write_b128 v{vSw}, {vr(aK+4*q)} offset:{q*1024}', 'scw')
    some(12)
    e.wait(lg=['scw']); e.I('s_barrier')
    for p in range(4): e.D(f'ds_read_b128 {vr(aV+4*p)}, v{vSr} offset:{p*4096}', 'scr')
    some(12)
    e.wait(lg=['scr'])
    for a, b in ((0, 4), (8, 12), (0, 8)):
        for r in (0, 2): e.I(f'v_pk_add_f32 {vr(aV+a+r,2)}, {vr(aV+a+r,2)}, {vr(aV+b+r,2)}')
    for i in range(2): e.I(f'v_cvt_pk_bf16_f32 v{aV+4+i}, v{aV+2*i}, v{aV+2*i+1}')
    for i in range(2): e.I(f'v_cndmask_b32_e64 v{aV+4+i}, v{aV+4+i}, v{Z}, s[{sRowM}:{sRowM+1}]')
    st.pub(e, f'buffer_store_dwordx2 {vr(aV+4,2)}, v{vL8}, {srd(sWS)}, s{sKo} offen sc1', 'K')
    fs(1)
    some(cfg.t3k)
    st.try_signal(e, 'K', 1, force=True)
    log(f'T3 fillers left at signal K: {len(fill)}')
    run_valu(e, st, fill)
    st.pub(e, f'buffer_store_dword v{G1}, v{vFl}, {srd(sWS)}, s{sGo} offen sc1', 'O')
    fs(2)
    e.V(kload, 'pk'); e.wait(vm=['pk']); spin_check(e, cfg, 'K', kload, vPoll)
    fs(3)
    KF = 0
    for i in range(2):
        e.I(f's_add_u32 m0, s{sXm}, {i * 4096}'); e.I(f's_add_u32 s{sSo}, s{sKV}, {i * 4096}')
        for q in range(4):
            e.V(f'buffer_load_dwordx4 v{vL16}, {srd(sWS)}, s{sSo} offen offset:{q*1024} sc1 lds', 'kvl')
    e.wait(vm=['kvl']); e.I('s_barrier')
    def kf_read(jj):
        for q in range(4): e.D(f'ds_read_b128 {ar(KF+16*jj+4*q)}, v{vKw} offset:{(4*jj+q)*1024}', ('kf', jj))
    for jj in range(4): kf_read(jj)
    N = [aB, aB + 16, aB + 32, aB + 48]
    def num(jj):
        u0 = (7 * jj) // 2; n = N[jj % 4]
        e.wait(lg=[('kf', jj)])
        return [f'v_mfma_f32_32x32x16_bf16 {vr(n,16)}, {ar(KF+16*jj+4*q)}, {vr(P+2*u0+4*(q&1))}, ' + (vr(n,16) if q else '0') for q in range(4)]
    def factor(jj):
        n = N[jj % 4]; odd = jj & 1; D = vT + 4 * (jj & 1)
        dr = n + (0 if odd else 12); m = sLoM if odd else sHiM
        d = D if odd else D + 1
        return [f'v_add_f32 v{D}, s{sEPS}, v{dr}', f'v_add_f32 v{D+1}, s{sEPS}, v{dr}', None, None,
                f'v_permlane32_swap_b32 v{D}, v{D+1}', None, f'v_rcp_f32 v{D+2}, v{d}', None,
                f'v_mul_f32 v{D}, v{D+2}, v{G}']
    for k, s in enumerate(num(0)):
        e.I(s); kf_read(4 + k)
    mq = num(1)
    e.I(mq.pop(0)); e.I(mq.pop(0))
    for s in factor(0):
        if s: e.I(s)
    pend = []
    for jj in range(8):
        n = N[jj % 4]; odd = jj & 1; D = vT + 4 * (jj & 1)
        fs(4 + jj)
        if jj + 2 < 8: mq += num(jj + 2)
        nxt = factor(jj + 1) if jj + 1 < 8 else []
        O = P + 2 * ((7 * jj) // 2); dst = [64 + i if odd and i < 2 else O + i for i in range(8)]
        body = [f'v_mul_f32 v{n+r}, v{n+r}, v{D}' for r in range(16)]
        body += [f'v_cvt_pk_bf16_f32 v{dst[i]}, v{n+2*i}, v{n+2*i+1}' for i in range(8)]
        if odd: body += [f'v_cndmask_b32_e64 v{O+i}, v{O+i}, v{64+i}, s[{sHiM}:{sHiM+1}]' for i in range(2)]
        for k, s in enumerate(body):
            if k in (0, 3, 11, 18):
                if mq and (k < 11 or jj + 2 < 8): e.I(mq.pop(0))
                if pend: pend.pop(0)()
            e.I(s)
            if nxt and k >= 14:
                s2 = nxt.pop(0)
                if s2: e.I(s2)
        assert not nxt and not pend
        def o_store(m):
            e.I(f's_mov_b32 s{sSo}, {(m // 7) * 73728 + (m % 7) * 2048}')
            st.pub(e, f'buffer_store_dwordx4 {vr(P+4*m)}, v{vHst}, {srd(sWS)}, s{sSo} offen {cfg.st_flag}', 'O')
        done = ((7 * jj) // 2 + 3 + odd) // 2
        pend = [lambda m=m: o_store(m) for m in range(state.get('m', 0), done)]; state['m'] = done
    for f in pend: f()
    assert not mq
    stamp(e, cfg, 7)
    st.try_signal(e, 'O', 15, force=True)
    stamp(e, cfg, 8)
    stamp_out(e, cfg)

def gen_all(cfg, code_bytes):
    OOL.clear(); WG[0] = cfg.sigwg
    assert FR_OFF % 512 == 0
    e = Em()
    if cfg.stamps:
        e.I('v_mov_b32 v35, 0'); stamp(e, cfg, 0)
        if cfg.rt: e.many('s_memtime s[100:101]\ns_waitcnt lgkmcnt(0)\nv_writelane_b32 v35, s100, 14')
    entry(e, cfg, code_bytes)
    e3 = e.fork()
    role_t2(e, cfg)
    e3.label('L_t3')
    role_t3(e3, cfg)
    e3.label('L_end')
    e3.I('s_endpgm')
    log(f'nops T2 {e.nops} T3 {e3.nops}')
    return e.text() + e3.text() + ''.join(OOL)

KD = '''.amdhsa_kernel {k}
  .amdhsa_next_free_vgpr 512
  .amdhsa_next_free_sgpr 102
  .amdhsa_accum_offset 256
  .amdhsa_group_segment_fixed_size 0
  .amdhsa_kernarg_size 88
  .amdhsa_user_sgpr_count 2
  .amdhsa_user_sgpr_kernarg_segment_ptr 1
  .amdhsa_system_sgpr_workgroup_id_x 1
  .amdhsa_float_denorm_mode_32 3
.end_amdhsa_kernel
'''
def build(cfg):
    k = NAME + '_kernel'
    body = gen_all(cfg, f'L_code_end-{k}-64')
    if cfg.skip:
        L = body.split('\n')
        if 'm' in cfg.skip: L = [l for l in L if not l.startswith((' v_mfma', ' ds_'))]
        if 'v' in cfg.skip: L = [l for l in L if not (l.startswith(' buffer_') and 'v35' not in l)]
        if 'p' in cfg.skip: L = [l for l in L if not l.startswith(' s_cbranch_scc0 L_spin')]
        if 's' in cfg.skip: L = [l for l in L if not (l.startswith((' buffer_store', ' buffer_atomic')) and 'v35' not in l)]
        body = '\n'.join(L)
    o = f'; {NAME}: generated by gen/gen5.py\n'
    o += f'; @launch grid=(256,1,1) block=(256,1,1) lds={LDS_BYTES}\n'
    o += '.amdgcn_target "amdgcn-amd-amdhsa--gfx950"\n.text\n'
    o += f'.globl {k}\n.p2align 8\n.type {k},@function\n{k}:\n{body}L_code_end:\n s_endpgm\n'
    o += '.section .rodata,"a"\n.p2align 6\n' + KD.format(k=k)
    return o

if __name__ == '__main__':
    cfg = Cfg(); out = None
    for a in sys.argv[1:]:
        if '=' in a:
            k, v = a.split('=', 1); cur = getattr(cfg, k)
            setattr(cfg, k, (v == '1') if isinstance(cur, bool) else type(cur)(v))
        else: out = a
    open(out or f'cdna_kernels/{NAME}.s', 'w').write(build(cfg))
```

```python
import sys, copy, re
from emit import Em

NAME = 'gated_mix__linear_attn_block__glu_gated_reglu__prompt'
H_BYTES = 32 * 4 * 36 * 2048
Z_OFF = H_BYTES
FR_OFF = Z_OFF + 65536
FK_OFF = FR_OFF + 131072
G_OFF = Z_OFF + 16 * 16384
WS_USED = G_OFF + 2048 * 4
STAMP_OFF = 12 << 20
LOG2E = 0x3fb8aa3b
EPS = 0x358637bd
NEG_EPS_LOG2E = 0xb5c1a2c3
LDS_BYTES = 160 * 1024

class Cfg:
    LA = 4
    LK = 2
    gap = 50
    sgap = 20
    fill = 36
    fill3 = 40
    st_flag = 'sc1'
    ld_flag = ''
    ld2_flag = ''
    out_flag = ''
    rot = False
    n0 = 12
    touch = 2
    tg = '1,2,7,1'
    zep = 6
    pA = 20
    sigA = 18
    fillK = 48
    fillA = 36
    pK = 17
    t3c = 40
    skip = ''
    vgap = 999
    opseq = 4
    LH = 5
    LHB = 2
    dgap = 20
    dgap2 = 44
    burst = 8
    pre_age = 10
    fillR = 34
    wstart = 7
    wcap = 35
    wrate = 1.0
    pollB = 2
    pollO = 3
    sigB = 2
    sigK = 2
    QM = 4
    psleep = 4
    spin = 4000
    stamps = False
    rt = False
    fine = False
    fine2 = False

sX, sQKV, sI0, sI1, sWS, sDBG, sWD, sWO, sOUT, sGW, sCODE = [28 + 4 * i for i in range(11)]
sW, sRB, sHEAD, sT3, sC, sRT, sCT, sQH = 72, 73, 74, 75, 76, 77, 78, 79
sM1K, sM4K, sSoF, sStepF, sSoKV, sT0, sT1, sT2, sRot0F = 80, 81, 82, 83, 84, 85, 86, 87, 88
sPB, sEPS, sInit = 89, 90, 91
sPadM, sLoM, sHiM = 92, 94, 96
sM2K, sSo = 98, 99
sKx, sKkv, sEndF = 26, 27, 3
sPoll, sSoH = 10, 11
sU0, sU1, sU2 = 18, 19, 25
sZi = 0
sTC, sGrp = 20, 24
sSigR, sSigK, sSoW, sDW2 = 68, 69, 70, 71
def srd(b): return f's[{b}:{b+3}]'

vL, vL16, vL4, vD0, vD1, vD2, vHst, vAK, vAV, vOne, vONES, vDbg, vScW, vScR, vAG, vDG = range(1, 17)
vAX = [17, 18, 19, 20]
vAF = [[21 + 4 * w + t for t in range(4)] for w in range(3)]
vFl = 33
vT = 36
vDW0, vDW1, vH0, vH1, vG0, vG1, vOut, vWr, vPoll = range(60, 69)
vA2 = [[69, 70], [71, 72], [73, 74]]
vRd = [75, 76, 77]
vTch, vPA, vPO = 78, 79, 80
vDX = [81, 82, 83, 84]
aK, aV, aA, aB = 96, 112, 128, 192
aFR = 224
XB, KVB, FB = 0, 48 * 1024, 104 * 1024
GW_LDS = XB + 16384
def hreg(sq): return 8 * sq if sq < 28 else 8 * (sq - 28)
def sub(r, o, n):
    k = r[0]; lo = int(r[2:r.index(':')]); return f'{k}[{lo+o}:{lo+o+n-1}]'

def vr(b, n=4): return f'v[{b}:{b+n-1}]'
def ar(b, n=4): return f'a[{b}:{b+n-1}]'

def mk_srd(e, b, lo, size):
    e.I(f's_mov_b32 s{b}, s{lo}'); e.I(f's_mov_b32 s{b+1}, s{lo+1}')
    e.I(f's_mov_b32 s{b+2}, {size}'); e.I(f's_mov_b32 s{b+3}, 0x20000')

def stamp(e, cfg, i):
    if cfg.stamps:
        e.wait(lg_all=True)
        e.I(('s_memrealtime' if cfg.rt else 's_memtime') + ' s[100:101]'); e.I('s_waitcnt lgkmcnt(0)')
        e.I(f'v_writelane_b32 v35, s100, {i}')

def stamp_out(e, cfg):
    if not cfg.stamps: return
    if cfg.rt:
        e.many(f'''
        s_memtime s[100:101]
        v_readlane_b32 s{sT0}, v35, 14
        s_waitcnt lgkmcnt(0)
        s_sub_u32 s{sT0}, s100, s{sT0}
        s_lshr_b32 s{sT0}, s{sT0}, 4
        v_writelane_b32 v35, s{sT0}, 14
        s_memrealtime s[100:101]
        v_readlane_b32 s{sT0}, v35, 0
        s_waitcnt lgkmcnt(0)
        s_sub_u32 s{sT0}, s100, s{sT0}
        v_writelane_b32 v35, s{sT0}, 15
        ''')
    e.many(f'''
    s_lshl_b32 s{sT0}, s2, 2
    s_add_u32 s{sT0}, s{sT0}, s{sW}
    s_lshl_b32 s{sT0}, s{sT0}, 8
    s_add_u32 s{sT0}, s{sT0}, {STAMP_OFF}
    ''')
    e.V(f'buffer_store_dword v35, v{vL4}, {srd(sWS)}, s{sT0} offen', 'st')

class Pool:
    def __init__(self): self.free = []
    def add(self, addr): assert addr not in self.free; self.free.append(addr)
    def take(self, keep=0):
        if len(self.free) <= keep: return None
        return self.free.pop(0)

class St:
    def __init__(self, cfg):
        self.cfg = cfg
        self.pool = Pool()
        for i in range(7): self.pool.add(FB + 8192 * i)
        self.fblk = {}; self.w2blk = {}
        q = []
        for s in range(7):
            q += [('x', s, 0), ('x', s, 1), ('x', s, 2), ('x', s, 3)]
            q += [('kv', 2 * s), ('kv', 2 * s + 1)]
        for ps in (0, 1):
            for p in range(14): q += [('f', ps, p, 0), ('f', ps, p, 1)]
        self.q = q; self.qw = []; self.qh = []
        self.epoch = -1; self.x_done = -1; self.since = 99
        self.h_ok = -1
        self.cnt = {}; self.signalled = set()
        self.wcap = cfg.wcap; self.lead = 1; self.wpool = Pool(); self.rd_done = []; self.rd_next = 0; self.rd_part = 0; self.a_ok = False
        self.t3 = False; self.scw_ep = self.scr_ep = self.k_ep = None
        self.pre_barrier = self.post_barrier = None
    def clone(self):
        s = copy.copy(self); s.pool = copy.deepcopy(self.pool); s.fblk = dict(self.fblk); s.w2blk = {}
        s.wpool = Pool(); s.rd_done = []; s.rd_next = 99
        s.q = list(self.q); s.qw = []; s.qh = []; s.cnt = dict(self.cnt); s.signalled = set(self.signalled)
        return s
    def ep_of(self, ps, ks): return ks // 4 if ps == 2 else 7 + 7 * ps + ks // 4
    def dep(self, d): return d[1] if d[0] == 'x' else (d[1] // 2 if d[0] == 'kv' else self.ep_of(d[1], 2 * d[2]))
    def free_epoch(self, ps, pair): return self.ep_of(ps, 2 * pair) + (2 if pair & 1 else 1)
    def demand(self, e):
        if not self.q: return False
        cfg = self.cfg; d = self.q[0]
        if self.dep(d) > max(self.epoch, 0) + cfg.LK: return False
        if d[0] == 'x':
            _, s, j = d
            if s >= 3 and self.x_done < s - 3: return False
            base = XB + (s % 3) * 16384 + j * 1024
            if cfg.rot:
                e.I(f's_add_u32 m0, s{sM4K}, {base}')
                if j == 0 and s > 0:
                    e.I(f's_add_u32 s{sKx}, s{sKx}, 128'); e.I(f's_cmp_eq_u32 s{sKx}, 896'); e.I(f's_cselect_b32 s{sKx}, 0, s{sKx}')
                e.V(f'buffer_load_dwordx4 v{vDX[j]}, {srd(sX)}, s{sKx} offen {cfg.ld_flag} lds', ('ep', s))
            elif base >= s * 128:
                e.I(f's_add_u32 m0, s{sM4K}, {base - s * 128}')
                e.V(f'buffer_load_dwordx4 v{vDX[j]}, {srd(sX)}, 0 offen offset:{s * 128} {cfg.ld_flag} lds', ('ep', s))
            else:
                e.I(f's_add_u32 m0, s{sM4K}, {base}'); e.I(f's_movk_i32 s{sSo}, {s * 128}')
                e.V(f'buffer_load_dwordx4 v{vDX[j]}, {srd(sX)}, s{sSo} offen {cfg.ld_flag} lds', ('ep', s))
        elif d[0] == 'kv':
            p = d[1]
            e.I(f's_add_u32 m0, s{sM1K}, {KVB + p * 4096}')
            if p > 0: e.I(f's_add_u32 s{sKkv}, s{sKkv}, {32 * 2688}')
            if cfg.rot and p > 0 and p % 2 == 0:
                e.I(f's_cmp_eq_u32 s{sKkv}, {448 * 2688}'); e.I(f's_cselect_b32 s{sKkv}, 0, s{sKkv}')
            e.V(f'buffer_load_dwordx4 v{vD2}, {srd(sQKV)}, s{sKkv} offen {cfg.ld_flag} lds', ('ep', self.dep(d)))
        else:
            _, ps, p, img = d
            if img == 0:
                a = self.pool.take()
                if a is None: return False
                self.fblk[(ps, p)] = a
            a = self.fblk[(ps, p)]
            e.I(f's_add_u32 m0, s{sM1K}, {a + img * 4096}')
            if img == 0:
                if p == 0:
                    e.I(f's_mov_b32 s{sSoF}, s{sRot0F}')
                    if ps == 1:
                        e.I(f'v_add_u32 v{vD0}, s{sPB}, v{vD0}'); e.I(f'v_add_u32 v{vD1}, s{sPB}, v{vD1}')
                else:
                    e.I(f's_add_u32 s{sSoF}, s{sSoF}, s{sStepF}')
                    if cfg.rot and p % 2 == 0:
                        e.I(f's_cmp_eq_u32 s{sSoF}, s{sEndF}'); e.I(f's_cselect_b32 s{sSoF}, 0, s{sSoF}')
            e.V(f'buffer_load_dwordx4 v{vD0 + img}, {srd(sI0 + 4 * img)}, s{sSoF} offen {cfg.ld_flag} lds', ('ep', self.dep(d)))
        self.q.pop(0)
        return True
    def w2(self, e):
        if not self.qw or self.epoch < self.cfg.wstart or self.qw[0][0] > self.wcap: return False
        sq, part = self.qw[0]
        if part == 0:
            for s2 in [x for x in self.rd_done if ('w2', x) not in e.lg]:
                self.rd_done.remove(s2); self.wpool.add(self.w2blk[s2])
            left = sum(1 for d in self.q if d[0] == 'f' and d[3] == 0)
            a = self.wpool.take()
            if a is None: a = self.pool.take(keep=min(left, 2))
            if a is None: return False
            self.w2blk[sq] = a
        a = self.w2blk[sq]
        e.I(f's_add_u32 m0, s{sM2K}, {a + part * 1024}')
        if sq < 28:
            p, s2 = divmod(sq, 14); row = 256 * (s2 >> 1) + 16 * (s2 & 1) + 64 * p; sr = sWD
        else:
            hh, j = divmod(sq - 28, 2); row = 28 * hh - 4 * (hh & 1) + 16 * j; sr = sWO
        if part == 0:
            if sq == 28:
                e.I(f'v_add_u32 v{vDW0}, s{sDW2}, v{vDW0}'); e.I(f'v_add_u32 v{vDW1}, s{sDW2}, v{vDW1}')
            e.I(f's_mov_b32 s{sSoW}, {row * 896}')
        e.V(f'buffer_load_dwordx4 v{vDW0 + part}, {srd(sr)}, s{sSoW} offen {self.cfg.ld2_flag} lds', ('W', sq))
        self.qw.pop(0)
        return True
    def wreg(self, sq):
        T0 = 36 - self.cfg.QM
        return ar(112 + 8 * sq, 8) if sq < 14 else (ar(aFR + 8 * (sq % 4), 8) if sq < T0 else vr(aB + 8 * (sq - T0), 8))
    def wread(self, e, sq, parts=(0, 1)):
        a = self.w2blk[sq]; f = self.wreg(sq)
        for n in parts:
            for j in range(2):
                e.D(f'ds_read_b64_tr_b16 {sub(f,4*n+2*j,2)}, v{vA2[a >> 16][n]} offset:{(a & 0xffff) + j * 1024}', ('w2', sq))
        if 1 in parts: self.rd_done.append(sq)
    def preread(self, e):
        sq = self.rd_next
        if sq >= 14 or sq not in self.w2blk or (sq, 1) in self.qw: return False
        if ('W', sq) in e.vm:
            if len(e.vm) - 1 - max(i for i, t in enumerate(e.vm) if t == ('W', sq)) < self.cfg.pre_age: return False
            e.wait(vm=[('W', sq)])
        self.wread(e, sq, (self.rd_part,))
        self.rd_part ^= 1
        if self.rd_part == 0: self.rd_next += 1
        return True
    def h(self, e):
        if not self.qh or self.qh[0][0] > self.h_ok: return False
        sq, b = self.qh.pop(0)
        if b == 0 and sq % 2 == 0: e.I(f's_mov_b32 s{sSoH}, {sq * 2048}')
        e.V(f'buffer_load_dwordx4 {ar(hreg(sq)+4*b)}, v{vH0+b}, {srd(sWS)}, s{sSoH} offen offset:{(sq & 1) * 2048} sc1', ('H', sq))
        return True
    def mem(self, e):
        if self.demand(e): return True
        wn = self.qw[0][0] if self.qw else 99; hn = self.qh[0][0] if self.qh else 99
        order = (self.w2, self.h) if wn <= hn + self.lead else (self.h, self.w2)
        return order[0](e) or order[1](e)
    def on_epoch(self, ep):
        self.epoch = ep
        for (ps, p), a in self.fblk.items():
            if self.free_epoch(ps, p) == ep: self.pool.add(a)
        if ep == 5: self.pool.add(XB + 16384 + 8192)
        if ep == 6: self.pool.add(XB + 32768); self.pool.add(XB + 32768 + 8192)
        if ep == 7: self.pool.add(XB); self.pool.add(XB + 8192)
        if ep == 15 and not self.t3: self.pool.add(GW_LDS)
        if 4 <= ep <= 8: self.pool.add(KVB + 8192 * (ep - 2))
        if self.scr_ep is not None and ep == self.scr_ep + 1: self.wpool.add(KVB); self.wpool.add(KVB + 8192)
    def pub(self, e, text, tag):
        e.V(text, tag); self.cnt[tag] = self.cnt.get(tag, 0) + 1; self.since = 0
    def try_signal(self, e, tag, n, force=False):
        if tag in self.signalled or self.cnt.get(tag, 0) < n: return
        if force: e.wait(vm=[tag])
        if tag in e.vm: return
        kind = {'K': 0, 'A': 1, 'B': 2, 'O': 3}[tag]
        if kind == 0:
            lab = 'L_sigk' + ('3' if self.t3 else '2')
            e.I(f's_cmp_eq_u32 s{sW}, 0'); e.I(f's_cbranch_scc0 {lab}')
            e.V(f'buffer_store_dword v{vONES}, v{vFl}, {srd(sWS)}, s{sSigK} offen sc1', cond=True)
            e.label(lab)
        else:
            e.V(f'buffer_store_dword v{vONES}, v{vFl}, {srd(sWS)}, s{sSigR} offen sc1'.replace(f'v{vONES},', f'v{vOne},' if kind == 1 else f'v{vONES},', 1), 'sig')
        self.signalled.add(tag)
        print(f'  signal {tag} at epoch {self.epoch} mfma {e.n_mfma}', file=sys.stderr)

def steps_A(): return [(0, ks, t) for ks in range(28) for t in (0, 1, 2, 3)]
def steps_K(): return [(2, ks, t) for ks in range(28) for t in ('k', 'v')]
def steps_B(t3): return [(1, ks, t) for ks in range(28) for t in (0, 1, 2, 'g' if t3 else 3)]

def issue_read(e, st, n, step):
    cfg = st.cfg
    ps, ks, t = step
    ep = st.ep_of(ps, ks)
    if ep != st.epoch:
        if st.pre_barrier: st.pre_barrier(e, ep)
        for d in st.q: assert st.dep(d) > ep, ('DMA not issued in time', d, ep)
        e.wait(vm=[('ep', ep)])
        e.I('s_barrier')
        st.on_epoch(ep)
        if cfg.fine and ep > 0: stamp(e, cfg, 43 + ep)
        if st.post_barrier: st.post_barrier(e, ep)
    if ps == 2 and ks % 4 < 2:
        q = 2 * (ks % 4) + (t == 'v')
        e.D(f'ds_read_b128 {ar(4*(4*ep+q))}, v{vAX[q]} offset:{XB + (ep % 3) * 16384}', ('x', 4 * ep + q))
    fr = aFR + 4 * (n % 8)
    if t == 'g':
        e.D(f'ds_read_b128 {ar(fr)}, v{vAG} offset:{ks * 32}', ('w', n)); return
    if t in ('k', 'v'):
        reg = vAK if t == 'k' else vAV
        off = ks * 2048
    else:
        a = st.fblk[(ps, ks // 2)]
        reg = vAF[a >> 16][t]; off = (a & 0xffff) + (ks & 1) * 2048
    e.D(f'ds_read_b64_tr_b16 {ar(fr,2)}, v{reg} offset:{off}', ('w', n))
    e.D(f'ds_read_b64_tr_b16 {ar(fr+2,2)}, v{reg} offset:{off+512}', ('w', n))

def issue_mfma(e, st, n, step):
    ps, ks, t = step
    fr = ar(aFR + 4 * (n % 8))
    e.wait(lg=[('w', n), ('w', n | 1), ('x', ks)])
    if ps == 2 and ks % 4 == 2: st.x_done = ks // 4
    x = ar(4 * ks)
    if t == 'k': e.I(f'v_mfma_f32_32x32x16_bf16 {vr(aK,16)}, {x}, {fr}, ' + ('0' if ks == 0 else vr(aK, 16)))
    elif t == 'v': e.I(f'v_mfma_f32_32x32x16_bf16 {vr(aV,16)}, {x}, {fr}, ' + ('0' if ks == 0 else vr(aV, 16)))
    else:
        acc = vr((aA if ps == 0 else aB) + 16 * (3 if t == 'g' else t), 16)
        e.I(f'v_mfma_f32_32x32x16_bf16 {acc}, {fr}, {x}, ' + ('0' if ks == 0 else acc))

def run_steps(e, st, steps, lo, hi, fillers=None, fill=0):
    cfg = st.cfg
    def gates():
        while fillers and fillers[0][0] == 'g' and fillers[0][1](): fillers.pop(0)
    for n in range(lo, hi):
        issue_mfma(e, st, n, steps[n])
        t0 = e.last_mfma
        tail = 4 if n & 1 else 0
        gates()
        idle = e.clk - e.last_vm
        did = False
        if fillers and fillers[0][0] == 'm' and idle >= cfg.sgap: fillers.pop(0)[1](e); did = True
        elif idle >= (cfg.dgap if st.epoch < 6 else cfg.dgap2) and st.demand(e): did = True
        elif idle >= cfg.gap and st.mem(e): did = True
        if n + cfg.LA < len(steps): issue_read(e, st, n + cfg.LA, steps[n + cfg.LA])
        gates()
        k = 0
        while fillers and fillers[0][0] == 'd' and (k == 0 or e.clk - t0 + tail + 4 * fillers[0][2] <= fill):
            fillers.pop(0)[1](e); k += 1
        if not did and not k: st.preread(e)
        while fillers and fillers[0][0] == 'i' and e.clk - t0 + tail + 4 * fillers[0][2] <= fill:
            fillers.pop(0)[1](e)
        if st.a_ok and steps[n][0] == 1: st.h_ok = min(13, steps[n][1] // 2 - 1)

def run_valu(e, st, fillers):
    for f in fillers:
        if f[0] == 'g': assert f[1](); continue
        f[1](e)
        if e.clk - e.last_vm >= st.cfg.vgap: st.mem(e)
    fillers.clear()

def fI(text, cost=1): return ('i', lambda e: e.I(text), cost)
def fF(fn, cost=1): return ('i', fn, cost)
def fM(fn): return ('m', fn, 3)
def fD(fn, cost=1): return ('d', fn, cost)

def phi_fill(acc, n, tmp):
    L = []
    for r0 in range(0, n, 4):
        for i in range(4): L.append(fI(f'v_mul_f32 v{tmp+i}, s{sInit}, v{acc+r0+i}'))
        for i in range(4):
            L.append(fI(f'v_exp_f32_e64 v{tmp+i}, v{tmp+i} clamp', 2))
            L.append(fI(f'v_max_f32 v{acc+r0+i}, s{sEPS}, v{acc+r0+i}'))
        for i in range(4): L.append(fI(f'v_add_f32 v{acc+r0+i}, v{acc+r0+i}, v{tmp+i}'))
    return L

def kv_fill(st, cover1=(), cover2=()):
    pk, pv, tmp = vT, vT + 8, vT + 16
    L = phi_fill(aK, 16, tmp)
    for i in range(8): L.append(fI(f'v_cvt_pk_bf16_f32 v{pv+i}, v{aV+2*i}, v{aV+2*i+1}'))
    for i in range(8): L.append(fI(f'v_cndmask_b32_e64 v{pv+i}, v{pv+i}, v{vONES}, s[{sPadM}:{sPadM+1}]'))
    for i in range(8): L.append(fI(f'v_cvt_pk_bf16_f32 v{pk+i}, v{aK+2*i}, v{aK+2*i+1}'))
    L.append(fI(f'v_mfma_f32_32x32x16_bf16 {vr(aV,16)}, {vr(pk)}, {vr(pv)}, 0', 2))
    L.append(fI(f'v_mfma_f32_32x32x16_bf16 {vr(aV,16)}, {vr(pk+4)}, {vr(pv+4)}, {vr(aV,16)}', 2))
    L += list(cover1)
    for q in range(4):
        L.append(fD(lambda e, q=q: e.D(f'ds_write_b128 v{vScW}, {vr(aV+4*q)} offset:{q*1024}', 'scw'), 2))
    def mark(e): st.scw_ep = st.epoch
    L.append(fF(mark, 0))
    L2 = [('g', lambda: st.scw_ep is not None and st.epoch > st.scw_ep)]
    for p in range(4):
        for i in (0, 2):
            o = p * 16 + i
            L2.append(fD(lambda e, p=p, i=i, o=o: e.D(f'ds_read2st64_b32 {vr(aK+4*p+i,2)}, v{vScR} offset0:{o} offset1:{o+1}', 'scr')))
    L2 += list(cover2)
    def done(e): e.wait(lg=['scr']); st.scr_ep = st.epoch
    L2.append(fF(done, 1))
    for i in range(4): L2.append(fI(f'v_add_f32 v{aK+i}, v{aK+i}, v{aK+4+i}'))
    for i in range(4): L2.append(fI(f'v_add_f32 v{aK+8+i}, v{aK+8+i}, v{aK+12+i}'))
    for i in range(4): L2.append(fI(f'v_add_f32 v{aK+i}, v{aK+i}, v{aK+8+i}'))
    for i in range(4):
        L2.append(fM(lambda e, i=i: st.pub(e, f'buffer_atomic_add_f32 v{aK+i}, v{vL4}, {srd(sWS)}, s{sSoKV} offen offset:{i*256}', 'K')))
    return L, L2

def f_fill(st, acc, i, ps):
    L = []
    for r in range(8): L.append(fI(f'v_max_f32 v{acc+r}, 0, v{acc+r}'))
    for r in range(8): L.append(fI(f'v_mul_f32 v{acc+r}, v{acc+r}, v{acc+8+r}'))
    for r in range(4): L.append(fI(f'v_cvt_pk_bf16_f32 v{acc+8+r}, v{acc+2*r}, v{acc+2*r+1}'))
    def st_(e):
        e.I(f's_mov_b32 s{sSo}, {(i >> 1) * 147456 + ps * 28672}')
        st.pub(e, f'buffer_store_dwordx4 {vr(acc+8)}, v{vHst}, {srd(sWS)}, s{sSo} offen offset:{(i & 1) * 2048} {st.cfg.st_flag}', 'AB'[ps])
    L.append(fM(st_))
    return L

OOL = []
def spin_check(e, cfg, name, loads, regs, pre='', above=0):
    def test():
        t = [f'v_min_u32 v{regs[0]}, v{regs[0]}, v{r}' for r in regs[1:]]
        return t + [f'v_cmp_lt_u32 vcc, {above}, v{regs[0]}']
    for t in test(): e.I(t)
    e.I('s_cmp_eq_u64 vcc, -1')
    e.I(f's_cbranch_scc0 L_spin_{name}')
    e.label(f'L_ok_{name}')
    OOL.append(f'L_spin_{name}:\n s_mov_b32 s{sT0}, 0\nL_spin2_{name}:\n s_sleep {cfg.psleep}\n{pre}'
               + ''.join(f' {l}\n' for l in loads)
               + f' s_add_u32 s{sT0}, s{sT0}, 1\n s_waitcnt vmcnt(0)\n' + ''.join(f' {t}\n' for t in test())
               + f' s_nop 1\n s_cmp_eq_u64 vcc, -1\n s_cbranch_scc1 L_ok_{name}\n s_cmp_lt_u32 s{sT0}, {cfg.spin}\n'
               + f' s_cbranch_scc1 L_spin2_{name}\n s_branch L_ok_{name}\n')
def poll_txt(kind):
    return f'buffer_load_dword v{vPoll}, v{vPO if kind == 3 else vPA}, {srd(sWS)}, s{sPoll} offen sc1'
def poll_issue(e, kind): e.V(poll_txt(kind), ('poll', kind))
def poll_check(e, cfg, kind):
    e.wait(vm=[('poll', kind)])
    spin_check(e, cfg, f'p{kind}', [poll_txt(kind)], [vPoll], above=1 if kind == 2 else 0)

def prologue1(e, cfg, code_bytes):
    t = [vT + 2 + i for i in range(10)]
    e.many(f'''
    s_cmp_ge_u32 s2, 256
    s_cbranch_scc1 L_end
    s_load_dwordx16 s[4:19], s[0:1], 0
    s_load_dwordx4 s[20:23], s[0:1], 64
    s_load_dwordx2 s[24:25], s[0:1], 80
    s_getpc_b64 s[{sCODE}:{sCODE+1}]
    s_mov_b32 s{sCODE+2}, {code_bytes}
    s_mov_b32 s{sCODE+3}, 0x20000
    s_lshr_b32 s3, s2, 3
    s_mul_i32 s3, s3, 9
    v_min_u32 v{vT}, 8, v0
    v_add_lshl_u32 v{vT}, v{vT}, s3, 7
    ''')
    e.V(f'buffer_load_dword v{vT+1}, v{vT}, {srd(sCODE)}, 0 offen', 'code')
    e.many(f'''
    v_and_b32 v{vL}, 63, v0
    v_lshrrev_b32 v{t[0]}, 6, v0
    v_lshlrev_b32 v{vL16}, 4, v{vL}
    v_readfirstlane_b32 s{sW}, v{t[0]}
    v_lshlrev_b32 v{vL4}, 2, v{vL}
    s_lshr_b32 s{sT0}, s2, 3
    s_and_b32 s{sT1}, s{sT0}, 7
    s_lshr_b32 s{sT2}, s{sT0}, 3
    s_and_b32 s{sRB}, s2, 4
    s_lshl_b32 s{sRB}, s{sRB}, 1
    s_add_u32 s{sRB}, s{sRB}, s{sT1}
    s_and_b32 s{sHEAD}, s2, 3
    s_lshr_b32 s{sQH}, s{sHEAD}, 1
    s_lshl_b32 s{sHEAD}, s{sHEAD}, 2
    s_add_u32 s{sHEAD}, s{sHEAD}, s{sT2}
    s_xor_b32 s{sT3}, s{sT1}, s2
    s_and_b32 s{sT3}, s{sT3}, 1
    s_and_b32 s{sC}, s2, 1
    s_lshl_b32 s{sC}, s{sC}, 2
    s_add_u32 s{sC}, s{sC}, s{sT2}
    s_lshr_b32 s{sT1}, s{sT1}, 1
    s_add_u32 s{sT1}, s{sT1}, 24
    s_cmp_eq_u32 s{sT2}, 3
    s_cselect_b32 s{sT3}, s{sT3}, 0
    s_cselect_b32 s{sC}, 3, s{sC}
    s_cselect_b32 s{sT0}, s{sT1}, s{sT0}
    s_mul_i32 s{sT1}, s{sQH}, 7
    s_add_u32 s{sC}, s{sC}, s{sT1}
    s_and_b32 s{sRT}, s2, 7
    s_lshl_b32 s{sRT}, s{sRT}, 2
    s_and_b32 s{sT1}, s{sT0}, 3
    s_add_u32 s{sRT}, s{sRT}, s{sT1}
    s_lshr_b32 s{sCT}, s{sT0}, 2
    s_lshl_b32 s{sM1K}, s{sW}, 10
    s_lshl_b32 s{sM2K}, s{sW}, 11
    s_lshl_b32 s{sM4K}, s{sW}, 12
    v_lshrrev_b32 v{t[0]}, 3, v{vL}
    v_and_b32 v{t[1]}, 7, v{vL}
    v_bfe_u32 v{t[2]}, v{vL}, 4, 1
    v_lshlrev_b32 v{t[2]}, 2, v{t[2]}
    v_xor_b32 v{t[2]}, v{t[2]}, v{t[1]}
    s_lshl_b32 s{sT0}, s{sW}, 3
    v_add_u32 v{t[3]}, s{sT0}, v{t[0]}
    ; x
    s_lshl_b32 s{sT0}, s{sRB}, 2
    s_add_u32 s{sT0}, s{sT0}, s{sW}
    s_mul_i32 s{sT0}, s{sT0}, {32*896}
    v_xor_b32 v{t[4]}, v{t[1]}, v{t[0]}
    v_lshlrev_b32 v{t[4]}, 4, v{t[4]}
    v_mul_u32_u24 v{vDX[0]}, 896, v{t[0]}
    v_add3_u32 v{vDX[0]}, v{vDX[0]}, v{t[4]}, s{sT0}
    v_add_u32 v{vDX[1]}, 7168, v{vDX[0]}
    v_add_u32 v{vDX[2]}, {2*7168}, v{vDX[0]}
    v_add_u32 v{vDX[3]}, {3*7168}, v{vDX[0]}
    ; kv window
    s_mul_i32 s{sT0}, s{sHEAD}, 56
    s_and_b32 s{sT0}, s{sT0}, -16
    s_add_u32 s{sT0}, s{sT0}, 896
    v_lshrrev_b32 v{t[4]}, 2, v{t[2]}
    v_mul_u32_u24 v{t[4]}, 832, v{t[4]}
    v_lshl_add_u32 v{t[4]}, v{t[2]}, 4, v{t[4]}
    v_mul_u32_u24 v{vD2}, 2688, v{t[3]}
    v_add3_u32 v{vD2}, v{vD2}, v{t[4]}, s{sT0}
    ; I0 / I1
    s_lshl_b32 s{sT0}, s{sC}, 8
    s_mul_i32 s{sT1}, s{sQH}, 448
    s_add_u32 s{sT2}, s{sT1}, 128
    s_cmp_eq_u32 s{sT3}, 1
    s_cselect_b32 s{sT2}, s{sT2}, s{sT0}
    s_cselect_b32 s{sT1}, s{sT1}, s{sT0}
    s_movk_i32 s{sT0}, 3584
    s_cselect_b32 s{sT0}, 2688, s{sT0}
    s_movk_i32 s{sPB}, 128
    s_cselect_b32 s{sPB}, 256, s{sPB}
    s_lshl_b32 s{sStepF}, s{sT0}, 5
    v_mul_u32_u24 v{t[3]}, s{sT0}, v{t[3]}
    v_lshl_add_u32 v{vD0}, v{t[2]}, 4, v{t[3]}
    v_xor_b32 v{t[4]}, 2, v{t[2]}
    v_lshl_add_u32 v{vD1}, v{t[4]}, 4, v{t[3]}
    v_add_u32 v{vD0}, s{sT1}, v{vD0}
    v_add_u32 v{vD1}, s{sT2}, v{vD1}
    ''')
    if cfg.rot:
        e.many(f'''
        s_bfe_u32 s{sT0}, s2, 0x30003
        s_lshr_b32 s{sT1}, s2, 6
        s_lshl_b32 s{sT1}, s{sT1}, 1
        s_add_u32 s{sT0}, s{sT0}, s{sT1}
        s_and_b32 s{sT1}, s2, 3
        s_add_u32 s{sT0}, s{sT0}, s{sT1}
        s_mul_i32 s{sT1}, s{sT0}, 37
        s_lshr_b32 s{sT1}, s{sT1}, 8
        s_mul_i32 s{sT1}, s{sT1}, 7
        s_sub_u32 s{sT0}, s{sT0}, s{sT1}
        s_lshl_b32 s{sKx}, s{sT0}, 7
        s_mul_i32 s{sKkv}, s{sT0}, {64 * 2688}
        s_mul_i32 s{sRot0F}, s{sT0}, s{sStepF}
        s_lshl_b32 s{sRot0F}, s{sRot0F}, 1
        s_mul_i32 s{sEndF}, s{sStepF}, 14
        v_add_u32 v{vDG}, s{sKx}, v{vL16}
        v_subrev_u32 v{t[4]}, 896, v{vDG}
        v_min_u32 v{vDG}, v{vDG}, v{t[4]}
        ''')
    else:
        e.many(f's_mov_b32 s{sKkv}, 0\ns_mov_b32 s{sRot0F}, 0\nv_mov_b32 v{vDG}, v{vL16}')
    e.many(f'''
    s_mov_b32 s{sX+2}, {2048*896}
    s_mov_b32 s{sX+3}, 0x20000
    s_mov_b32 s{sQKV+2}, {448*2688}
    s_mov_b32 s{sQKV+3}, 0x20000
    s_mov_b32 s{sI0+3}, 0x20000
    s_mov_b32 s{sI1+3}, 0x20000
    s_cmp_eq_u32 s{sT3}, 1
    s_mov_b32 s{sI0+2}, {448*3584}
    s_cselect_b32 s{sI0+2}, {448*2688}, s{sI0+2}
    s_mov_b32 s{sI1+2}, s{sI0+2}
    s_waitcnt lgkmcnt(0)
    s_mov_b32 s{sX}, s4
    s_mov_b32 s{sX+1}, s5
    s_mov_b32 s{sQKV}, s6
    s_mov_b32 s{sQKV+1}, s7
    s_cselect_b32 s{sI0}, s6, s12
    s_cselect_b32 s{sI0+1}, s7, s13
    s_cselect_b32 s{sI1}, s6, s14
    s_cselect_b32 s{sI1+1}, s7, s15
    ''')

def touch_setup(e, rnd):
    t = [vT + 2 + i for i in range(10)]
    a, b, c, sh, n1, n2, u = 4, 5, sT0, sT1, sT2, sSo, sSoF
    sel = sW if rnd == 1 else sGrp
    def mv(p): return f's_mov_b32 s{sTC}, s{p}\ns_mov_b32 s{sTC+1}, s{p+1}\n'
    def par(size, A, B, shv, n2v): return f's_mov_b32 s{sTC+2}, {size}\ns_movk_i32 s{a}, {A}\ns_movk_i32 s{b}, {B}\ns_movk_i32 s{sh}, {shv}\ns_movk_i32 s{n2}, {n2v}\n'
    if rnd == 1:
        xs = f"""s_and_b32 s{u}, s2, 7
        s_lshl_b32 s{u}, s{u}, 5
        s_lshr_b32 s{c}, s2, 3
        s_add_u32 s{u}, s{u}, s{c}
        s_lshl_b32 s{u}, s{u}, 1
        s_add_u32 s{u}, s{u}, s{sW}
        s_mul_i32 s{c}, s{u}, {28*128}
        s_movk_i32 s{n1}, 28
        """ + mv(sX) + par(2048 * 896, 0, 128, 6, 1)
        kv = f"""s_bfe_u32 s{u}, s2, 0x10002
        s_lshl_b32 s{u}, s{u}, 5
        s_lshr_b32 s{c}, s2, 3
        s_add_u32 s{u}, s{u}, s{c}
        s_mul_i32 s{c}, s{u}, {7*2688}
        s_and_b32 s{u}, s2, 3
        s_lshl_b32 s{u}, s{u}, 8
        s_add_u32 s{c}, s{c}, s{u}
        s_mul_i32 s{u}, s{sW}, 896
        s_add_u32 s{c}, s{c}, s{u}
        s_sub_u32 s{c}, s{c}, 896
        s_movk_i32 s{n1}, 2
        """ + mv(6) + par(448 * 2688, 2688, 128, 1, 7)
        e.many(f's_cmp_lt_u32 s{sW}, 2\ns_cbranch_scc0 L_ts1_0\n' + xs + 's_branch L_tx1\nL_ts1_0:\n' + kv)
    else:
        ff = f"""s_lshl_b32 s{u}, s{sRB}, 1
        s_lshr_b32 s{c}, s{sW}, 1
        s_add_u32 s{u}, s{u}, s{c}
        s_mul_i32 s{c}, s{u}, {14*3584}
        s_and_b32 s{u}, s2, 3
        s_mul_i32 s{u}, s{u}, 7
        s_add_u32 s{u}, s{u}, 1
        s_lshr_b32 s{u}, s{u}, 1
        s_lshl_b32 s{u}, s{u}, 8
        s_add_u32 s{c}, s{c}, s{u}
        s_lshl_b32 s{u}, s{sGrp}, 6
        s_add_u32 s{c}, s{c}, s{u}
        s_and_b32 s{u}, s2, 1
        s_sub_u32 s{n1}, 4, s{u}
        s_bitcmp1_b32 s{sW}, 0
        s_cselect_b32 s{sTC}, s14, s12
        s_cselect_b32 s{sTC+1}, s15, s13
        """ + par(448 * 3584, 3584, 256, 2, 14)
        wd = f"""s_lshl_b32 s{u}, s{sZi}, 2
        s_add_u32 s{u}, s{u}, s{sW}
        s_mul_i32 s{c}, s{u}, {49*128}
        s_movk_i32 s{n1}, 49
        """ + mv(16) + par(1792 * 896, 0, 128, 6, 1)
        pre = f"""s_lshl_b32 s{u}, s{sZi}, 1
        s_and_b32 s{c}, s{sW}, 1
        s_add_u32 s{u}, s{u}, s{c}
        """
        qq = f's_mul_i32 s{c}, s{u}, {4*2688}\ns_movk_i32 s{n1}, 7\n' + mv(6) + par(448 * 2688, 2688, 128, 3, 4)
        wo = f's_mul_i32 s{c}, s{u}, {25*128}\ns_movk_i32 s{n1}, 25\n' + mv(8) + par(448 * 896, 0, 128, 6, 1)
        e.many(f's_bitcmp0_b32 s{sGrp}, 0\ns_cbranch_scc0 L_ts2_0\n' + ff + 's_branch L_tx2\nL_ts2_0:\n'
               + f's_cmp_eq_u32 s{sGrp}, 1\ns_cbranch_scc0 L_ts2_1\n' + wd + 's_branch L_tx2\nL_ts2_1:\n' + pre
               + f's_cmp_lt_u32 s{sW}, 2\ns_cbranch_scc0 L_ts2_2\n' + qq + 's_branch L_tx2\nL_ts2_2:\n' + wo)
    e.label(f'L_tx{rnd}')
    e.many(f'''
    s_mov_b32 s{sTC+3}, 0x20000
    v_lshrrev_b32 v{t[0]}, s{sh}, v{vL}
    v_bfe_u32 v{t[1]}, v{vL}, 0, s{sh}
    v_mul_u32_u24 v{vTch}, s{a}, v{t[0]}
    v_mad_u32_u24 v{vTch}, v{t[1]}, s{b}, v{vTch}
    v_add_u32 v{vTch}, s{c}, v{vTch}
    v_cmp_gt_u32 vcc, s{n1}, v{t[1]}
    v_mov_b32 v{t[2]}, 0x7fffff00
    v_cndmask_b32 v{vTch}, v{t[2]}, v{vTch}, vcc
    v_cmp_gt_u32 vcc, s{n2}, v{t[0]}
    v_cndmask_b32 v{vTch}, v{t[2]}, v{vTch}, vcc
    ''')

def prologue1b(e, cfg):
    t = [vT + 2 + i for i in range(10)]
    mk_srd(e, sGW, 18, 896)
    e.many(f'''
    s_lshl_b32 s{sSoKV}, s{sHEAD}, 12
    s_add_u32 s{sSoKV}, s{sSoKV}, s{sM1K}
    s_add_u32 s{sSoKV}, s{sSoKV}, {Z_OFF}
    v_mov_b32 v{vT+12}, 0
    v_mov_b32 v{vT+13}, 0
    v_mov_b32 v{vT+14}, 0
    v_mov_b32 v{vT+15}, 0
    s_lshl_b32 s{sT0}, s{sZi}, 12
    s_add_u32 s{sT0}, s{sT0}, s{sM1K}
    s_add_u32 s{sT0}, s{sT0}, {Z_OFF}
    s_cmp_eq_u32 s{sGrp}, 3
    s_cselect_b32 s{sT0}, s{sT0}, 0x7fff0000
    ''')
    e.V(f'buffer_store_dwordx4 {vr(vT+12)}, v{vL16}, {srd(sWS)}, s{sT0} offen sc1', 'zero')
    e.many(f'''
    v_lshrrev_b32 v{t[1]}, 5, v{vL}
    v_bfe_u32 v{t[2]}, v{vL}, 2, 2
    v_lshl_add_u32 v{t[0]}, v{t[1]}, 3, v{t[2]}
    v_lshlrev_b32 v{t[0]}, 7, v{t[0]}
    v_and_b32 v{t[2]}, 3, v{vL}
    v_lshl_add_u32 v{t[0]}, v{t[2]}, 3, v{t[0]}
    v_bfe_u32 v{t[2]}, v{vL}, 3, 1
    v_lshl_add_u32 v{t[0]}, v{t[2]}, 6, v{t[0]}
    v_bfe_u32 v{t[2]}, v{vL}, 4, 1
    v_lshl_add_u32 v{t[0]}, v{t[2]}, 5, v{t[0]}
    v_add_u32 v{vAK}, {KVB}, v{t[0]}
    v_xor_b32 v{vAV}, 64, v{vAK}
    s_cmp_eq_u32 s{sT3}, 1
    s_cselect_b32 s{sT0}, 0, 4096
    v_mad_u32_u24 v{vAF[0][0]}, v{t[2]}, s{sT0}, v{t[0]}
    s_cselect_b32 s{sT0}, 64, 32
    s_cselect_b32 s{sT1}, {4096+32}, 64
    s_movk_i32 s{sT2}, 96
    s_cselect_b32 s{sT2}, {4096+96}, s{sT2}
    v_xor_b32 v{vAF[0][1]}, s{sT0}, v{vAF[0][0]}
    v_xor_b32 v{vAF[0][2]}, s{sT1}, v{vAF[0][0]}
    v_xor_b32 v{vAF[0][3]}, s{sT2}, v{vAF[0][0]}
    ''')
    for w in (1, 2):
        for q in range(4): e.I(f'v_add_u32 v{vAF[w][q]}, {65536*w}, v{vAF[0][q]}')
    e.many(f'''
    v_and_b32 v{t[2]}, 7, v{vL}
    v_xor_b32 v{t[2]}, v{t[2]}, v{t[1]}
    v_and_b32 v{t[3]}, 31, v{vL}
    v_lshlrev_b32 v{t[4]}, 7, v{t[3]}
    v_lshl_add_u32 v{t[4]}, v{t[2]}, 4, v{t[4]}
    v_add_u32 v{vAX[0]}, s{sM4K}, v{t[4]}
    v_xor_b32 v{vAX[1]}, 32, v{vAX[0]}
    v_xor_b32 v{vAX[2]}, 64, v{vAX[0]}
    v_xor_b32 v{vAX[3]}, 96, v{vAX[0]}
    ''')

def prologue1c(cfg):
    t = [vT + 2 + i for i in range(10)]
    txt = f'''
    v_lshrrev_b32 v{t[1]}, 5, v{vL}
    v_lshlrev_b32 v{vAG}, 4, v{t[1]}
    v_add_u32 v{vAG}, {GW_LDS}, v{vAG}
    v_and_b32 v{vFl}, 124, v{vL4}
    s_and_b32 s{sT0}, s{sHEAD}, 1
    s_xor_b32 s{sT0}, s{sT0}, 1
    s_mul_i32 s{sT0}, s{sT0}, 28
    s_lshl_b32 s{sPadM}, 15, s{sT0}
    s_mov_b32 s{sPadM+1}, s{sPadM}
    s_mov_b32 s{sLoM}, -1
    s_mov_b32 s{sLoM+1}, 0
    s_mov_b32 s{sHiM}, 0
    s_mov_b32 s{sHiM+1}, -1
    s_mov_b32 s{sEPS}, {EPS:#x}
    s_mov_b32 s{sInit}, {LOG2E:#x}
    s_add_u32 s{sT0}, s{sM4K}, {KVB}
    v_add_u32 v{vScW}, s{sT0}, v{vL16}
    s_add_u32 s{sT0}, s{sM1K}, {KVB}
    v_add_u32 v{vScR}, s{sT0}, v{vL4}
    s_lshr_b32 s{sT0}, s{sW}, 1
    s_lshl_b32 s{sT1}, s{sRB}, 1
    s_add_u32 s{sT0}, s{sT0}, s{sT1}
    s_mul_i32 s{sT0}, s{sT0}, 144
    s_mul_i32 s{sT1}, s{sQH}, 72
    s_add_u32 s{sT1}, s{sT1}, 28
    s_and_b32 s{sT2}, s{sC}, 1
    s_mul_i32 s{sT2}, s{sT2}, 35
    s_add_u32 s{sT2}, s{sT2}, s{sC}
    s_sub_u32 s{sT1}, s{sT1}, s{sT2}
    s_mul_i32 s{sT1}, s{sT1}, s{sT3}
    s_add_u32 s{sT1}, s{sT1}, s{sT2}
    s_add_u32 s{sT0}, s{sT0}, s{sT1}
    s_lshl_b32 s{sT0}, s{sT0}, 1
    s_and_b32 s{sT1}, s{sW}, 1
    s_add_u32 s{sT0}, s{sT0}, s{sT1}
    s_lshl_b32 s{sT0}, s{sT0}, 10
    v_add_u32 v{vHst}, s{sT0}, v{vL16}
    s_sub_u32 s{sT0}, s{sQH}, s{sC}
    s_add_u32 s{sT0}, s{sT0}, 14
    s_mul_i32 s{sT0}, s{sT0}, s{sT3}
    s_add_u32 s{sT0}, s{sT0}, s{sC}
    s_lshl_b32 s{sT1}, s{sRB}, 4
    s_add_u32 s{sT0}, s{sT0}, s{sT1}
    s_lshl_b32 s{sT0}, s{sT0}, 2
    s_add_u32 s{sT0}, s{sT0}, s{sW}
    s_lshl_b32 s{sT0}, s{sT0}, 7
    s_add_u32 s{sSigR}, s{sT0}, {FR_OFF}
    s_lshl_b32 s{sT0}, s{sHEAD}, 4
    s_add_u32 s{sT0}, s{sT0}, s{sRB}
    s_lshl_b32 s{sT0}, s{sT0}, 7
    s_add_u32 s{sSigK}, s{sT0}, {FK_OFF}
    v_mov_b32 v{vOne}, 1
    s_mov_b32 s{sWD}, s16
    s_mov_b32 s{sWD+1}, s17
    s_xor_b32 s{sT0}, s{sT3}, 1
    s_mul_i32 s{sWD+2}, s{sT0}, {1792*896}
    s_mov_b32 s{sWD+3}, 0x20000
    s_mov_b32 s{sWO}, s8
    s_mov_b32 s{sWO+1}, s9
    s_mov_b32 s{sWO+2}, {448*896}
    s_mov_b32 s{sWO+3}, 0x20000
    v_lshrrev_b32 v{t[0]}, 3, v{vL}
    v_and_b32 v{t[3]}, 7, v{vL}
    v_bfe_u32 v{t[2]}, v{vL}, 4, 1
    v_lshlrev_b32 v{t[2]}, 2, v{t[2]}
    v_xor_b32 v{t[2]}, v{t[2]}, v{t[3]}
    v_mul_u32_u24 v{t[0]}, 896, v{t[0]}
    v_lshl_add_u32 v{t[0]}, v{t[2]}, 4, v{t[0]}
    s_and_b32 s{sT1}, s{sW}, 1
    s_lshl_b32 s{sT1}, s{sT1}, 2
    s_lshr_b32 s{sT2}, s{sW}, 1
    s_add_u32 s{sT1}, s{sT1}, s{sT2}
    s_mul_i32 s{sT1}, s{sT1}, {32*896}
    s_mul_i32 s{sT2}, s{sW}, {112*896}
    s_sub_u32 s{sDW2}, s{sT2}, s{sT1}
    s_lshl_b32 s{sT0}, s{sCT}, 7
    s_add_u32 s{sT1}, s{sT1}, s{sT0}
    v_add_u32 v{vDW0}, s{sT1}, v{t[0]}
    v_add_u32 v{vDW1}, 7168, v{vDW0}
    s_lshl_b32 s{sT0}, s{sRT}, 2
    s_add_u32 s{sT0}, s{sT0}, s{sW}
    s_mul_i32 s{sT0}, s{sT0}, 72
    s_lshr_b32 s{sT1}, s{sW}, 1
    s_add_u32 s{sT0}, s{sT0}, s{sT1}
    s_lshl_b32 s{sT0}, s{sT0}, 10
    v_add_u32 v{vH0}, s{sT0}, v{vL16}
    v_xor_b32 v{vH1}, 1024, v{vH0}
    v_lshlrev_b32 v{t[2]}, 9, v{t[1]}
    v_sub_u32 v{t[0]}, v{vAK}, v{t[2]}
    v_subrev_u32 v{t[0]}, {KVB}, v{t[0]}
    s_and_b32 s{sT0}, s{sW}, 1
    s_lshl_b32 s{sT0}, s{sT0}, 6
    v_xor_b32 v{t[0]}, s{sT0}, v{t[0]}
    v_add_u32 v{vA2[0][0]}, s{sM2K}, v{t[0]}
    v_xor_b32 v{vA2[0][1]}, 64, v{vA2[0][0]}
    v_add_u32 v{vA2[1][0]}, 0x10000, v{vA2[0][0]}
    v_add_u32 v{vA2[1][1]}, 0x10000, v{vA2[0][1]}
    v_add_u32 v{vA2[2][0]}, 0x20000, v{vA2[0][0]}
    v_add_u32 v{vA2[2][1]}, 0x20000, v{vA2[0][1]}
    s_lshl_b32 s{sT1}, s{sRT}, 1
    s_lshr_b32 s{sT2}, s{sW}, 1
    s_add_u32 s{sT1}, s{sT1}, s{sT2}
    s_lshl_b32 s{sT1}, s{sT1}, 5
    v_and_b32 v{t[3]}, 31, v{vL}
    v_add_u32 v{t[3]}, s{sT1}, v{t[3]}
    v_lshlrev_b32 v{vG0}, 2, v{t[3]}
    v_add_u32 v{vG0}, {G_OFF}, v{vG0}
    v_xor_b32 v{vG1}, 128, v{vG0}
    v_mul_u32_u24 v{vOut}, 896, v{t[3]}
    v_lshl_add_u32 v{vOut}, v{t[1]}, 4, v{vOut}
    s_lshl_b32 s{sT1}, s{sCT}, 7
    s_add_u32 s{sT1}, s{sT1}, s{sT0}
    v_add_u32 v{vOut}, s{sT1}, v{vOut}
    v_add_u32 v{vWr}, s{sM2K}, v{vL16}
    v_xor_b32 v{vRd[0]}, 2048, v{vWr}
    v_xor_b32 v{vRd[1]}, 4096, v{vWr}
    v_xor_b32 v{vRd[2]}, 6144, v{vWr}
    s_lshr_b32 s{sT0}, s{sRT}, 1
    s_lshl_b32 s{sT0}, s{sT0}, 13
    s_and_b32 s{sT1}, s{sRT}, 1
    s_lshl_b32 s{sT1}, s{sT1}, 8
    s_add_u32 s{sT0}, s{sT0}, s{sT1}
    s_add_u32 s{sPoll}, s{sT0}, {FR_OFF}
    v_and_b32 v{t[2]}, 1, v{vL}
    v_lshlrev_b32 v{t[2]}, 7, v{t[2]}
    v_lshrrev_b32 v{t[3]}, 1, v{vL}
    v_min_u32 v{t[3]}, 6, v{t[3]}
    v_lshl_add_u32 v{vPA}, v{t[3]}, 10, v{t[2]}
    s_and_b32 s{sT0}, s{sW}, 1
    s_lshl_b32 s{sT0}, s{sT0}, 9
    v_add_u32 v{vPA}, s{sT0}, v{vPA}
    s_lshr_b32 s{sT0}, s{sW}, 1
    s_add_u32 s{sT0}, s{sT0}, 14
    s_lshl_b32 s{sT0}, s{sT0}, 9
    v_add_u32 v{vPO}, s{sT0}, v{t[2]}
    '''
    for a, b in ((sT0, sU0), (sT1, sU1), (sT2, sU2)): txt = re.sub(rf'\bs{a}\b', f's{b}', txt)
    L = [fI(l.strip()) for l in txt.strip().split('\n')]
    return L

def k_hooks(st, cfg):
    def pre(e, ep):
        e.wait(lg=['scw'])
        if st.cnt.get('K', 0) == 4:
            if st.k_ep is None: st.k_ep = ep
            if ep >= st.k_ep + cfg.sigK - 1: e.wait(vm=['K'])
    def post(e, ep): st.try_signal(e, 'K', 4)
    return pre, post

def phase2(e, st, cfg):
    ACC, QM = aA, cfg.QM
    T0 = 36 - QM
    wreg = st.wreg
    if st.rd_part: st.preread(e)
    def reads(sq):
        if sq < st.rd_next: return
        while (sq, 1) in st.qw: assert st.w2(e), ('no LDS block for W2', sq)
        e.wait(vm=[('W', sq)])
        st.wread(e, sq)
        if sq < 14: st.rd_next = sq + 1
    def need_h(sq):
        while (sq, 1) in st.qh: assert st.h(e), ('H not allowed yet', sq)
    def mf(x, sq):
        acc = vr(ACC + 16 * x, 16)
        e.I(f'v_mfma_f32_32x32x16_bf16 {acc}, {sub(wreg(sq),4*(x&1),4)}, {ar(hreg(sq)+4*(x>>1))}, ' + ('0' if sq == 0 else acc))
    def scale(x): return [f'v_mul_f32 v{ACC+16*x+r}, v{ACC+16*x+r}, v{vG0 + (x >> 1)}' for r in range(16)]
    red = lambda x, q: ((x - 1) * 2 + (q >> 1)) * 8192 + (q & 1) * 1024
    reads(0)
    extra = list(range(T0 + 1, 36))
    for t in range(T0):
        if cfg.fine and t < (21 if cfg.fine2 else 28): stamp(e, cfg, 16 + t)
        st.try_signal(e, 'B', 4, force=t >= cfg.sigB)
        if t == 14 - cfg.LHB - cfg.pollB: poll_issue(e, 2)
        if t == 28 - cfg.LH - cfg.pollO: poll_issue(e, 3)
        if t == 14 - cfg.LHB:
            need_h(13)
            while st.w2(e): pass
            print(f'  B check: W2 ops {72-len(st.qw)}', file=sys.stderr)
            stamp(e, cfg, 6); poll_check(e, cfg, 2); stamp(e, cfg, 7); st.h_ok = 27
            hmax = 27
            assert cfg.burst // 2 <= t
            for _ in range(cfg.burst): st.h(e)
            st.lead = 1
        if t == 28 - cfg.LH:
            st.h_ok = 27; need_h(27); stamp(e, cfg, 8); poll_check(e, cfg, 3); stamp(e, cfg, 9); hmax = 35
            e.V(f'buffer_load_dword v{vG0}, v{vG0}, {srd(sWS)}, 0 offen sc1', 'g')
            e.V(f'buffer_load_dword v{vG1}, v{vG1}, {srd(sWS)}, 0 offen sc1', 'g')
        if t >= 14 - cfg.LHB: st.h_ok = 35 if hmax == 35 else min(hmax, t + cfg.LH)
        if t >= 14 - cfg.LHB: st.wcap = max(cfg.wcap + int((t - 13 + cfg.LHB) * cfg.wrate), t + 7)
        assert st.h_ok < 14 or min(st.h_ok, 27) - 14 < t
        rd = [t + 1] if t + 1 < 36 else []
        if extra and t >= T0 - QM + 1: rd.append(extra.pop(0))
        need_h(t)
        pre = []
        if t == 28:
            e.wait(vm=['g'])
            for s in scale(1): e.I(s)
            pre = [scale(2), scale(3), scale(0), []]
        e.wait(vm=[('H', t)], lg=[('w2', t)])
        k = cfg.opseq
        for i, x in enumerate((1, 2, 3, 0)):
            mf(x, t)
            if rd and i in (0, 2): reads(rd.pop(0))
            if k > 0 and st.mem(e): k -= 1
            if k > 3 - i and st.mem(e): k -= 1
            if i in (1, 2):
                st.preread(e)
                if i == 2 and st.rd_part: st.preread(e)
            if pre:
                for s in pre[i]: e.I(s)
    assert not extra and {'A', 'B', 'K'} <= st.signalled
    st.h_ok = 35
    need_h(35)
    assert not st.qw and not st.qh
    stamp(e, cfg, 10)
    e.wait(lg_all=True)
    if T0 == 28:
        e.wait(vm=['g'])
        for s in scale(1): e.I(s)
    order = (1, 2, 3, 0)
    wr_op = lambda px, q: (lambda e: e.D(f'ds_write_b128 v{vWr}, {vr(ACC+16*px+4*q)} offset:{red(px,q)}', ('rw', px)))
    rd_op = lambda x, q: (lambda e: e.D(f'ds_read_b128 {vr(ACC+16*x+4*q)}, v{vRd[x-1]} offset:{red(x,q)}', ('rr', x)))
    padd = lambda d, a: [f'v_pk_add_f32 {vr(ACC+16*d+r,2)}, {vr(ACC+16*d+r,2)}, {vr(ACC+16*a+r,2)}' for r in range(0, 16, 2)]
    seqs = list(range(T0, 36))
    def ts(i):
        if cfg.fine2:
            e.I(('s_memrealtime' if cfg.rt else 's_memtime') + f' s[{40+2*i}:{41+2*i}]') if False else None
            stamp(e, cfg, 37 + i)
    for i, x in enumerate(order):
        ts(i)
        side = [fI(s)[1] for s in scale(order[i + 1])] if T0 == 28 and i < 3 else []
        wr = [wr_op(order[i - 1], q) for q in range(4)] if i > 0 else []
        for j, sq in enumerate(seqs):
            e.wait(vm=[('H', sq)])
            mf(x, sq)
            if i == 3 and j == 0:
                e.wait(lg=[('rw', 2)]); e.I('s_barrier')
                for xx in (1, 2):
                    for q in range(4): rd_op(xx, q)(e)
            k = -(-len(side) // (len(seqs) - j))
            for f in side[:k]: f(e)
            side = side[k:]
            if j >= 1:
                for f in wr[:2]: f(e)
                wr = wr[2:]
        for f in wr: f(e)
    ts(4)
    e.wait(lg=[('rr', 2)])
    for s in padd(1, 2): e.I(s)
    e.wait(lg=[('rw', 3)]); e.I('s_barrier')
    ts(5)
    for q in range(4): rd_op(3, q)(e)
    for s in padd(0, 1): e.I(s)
    e.wait(lg=[('rr', 3)])
    for s in padd(0, 3): e.I(s)
    ts(6)
    O = aK
    for i in range(8): e.I(f'v_cvt_pk_bf16_f32 v{O+i}, v{ACC+2*i}, v{ACC+2*i+1}')
    for b in (0, 4):
        e.I(f'v_permlane32_swap_b32 v{O+b}, v{O+b+2}'); e.I(f'v_permlane32_swap_b32 v{O+b+1}, v{O+b+3}')
    e.V(f'buffer_store_dwordx4 {vr(O)}, v{vOut}, {srd(sOUT)}, 0 offen {cfg.out_flag}', 'out')
    e.V(f'buffer_store_dwordx4 {vr(O+4)}, v{vOut}, {srd(sOUT)}, 0 offen offset:32 {cfg.out_flag}', 'out')
    stamp(e, cfg, 11)
    if cfg.stamps: e.wait(vm_all=True); stamp(e, cfg, 12)

def t3_tail(e, st, cfg, steps, nfork, nA):
    st.t3 = True
    P = aA
    G, G1, Z, vK, vKw, vKp = 60, 61, 62, 63, 85, 86
    def q_fill(acc, t):
        L = phi_fill(acc, 16, vT + 20)
        for i in range(8): L.append(fI(f'v_cvt_pk_bf16_f32 v{P+8*t+i}, v{acc+2*i}, v{acc+2*i+1}'))
        return L
    setup = [fI(l.strip()) for l in f"""v_lshlrev_b32 v{vK}, 5, v{vFl}
    s_lshl_b32 s{sU1}, s{sQH}, 2
    s_add_u32 s{sU1}, s{sU1}, s{sW}
    s_lshl_b32 s{sPoll}, s{sU1}, 12
    s_add_u32 s{sPoll}, s{sPoll}, {FK_OFF}
    s_lshl_b32 s{sU1}, s{sU1}, 13
    s_add_u32 s{sU1}, s{sU1}, {Z_OFF}
    s_add_u32 s{sU2}, s{sU1}, 4096
    v_mov_b32 v{Z}, 0
    v_add_u32 v{vKw}, s{sM4K}, v{vL16}
    s_lshl_b32 s{sU0}, s{sRB}, 2
    s_add_u32 s{sU0}, s{sU0}, s{sW}
    s_lshl_b32 s{sU0}, s{sU0}, 7
    s_add_u32 s{sU0}, s{sU0}, {G_OFF}""".split('\n')]
    kload = f'buffer_load_dword v{vKp}, v{vK}, {srd(sWS)}, s{sPoll} offen sc1'
    kpre, kpost = k_hooks(st, cfg)
    R, Q, KF = aK, 64, 112
    fs = lambda i: stamp(e, cfg, 16 + i) if cfg.fine else None
    state = {}
    def pre3(e, ep): kpre(e, ep); e.wait(lg=['kvw'])
    def post3(e, ep):
        kpost(e, ep)
        if ep == cfg.pK: e.V(kload, 'pk')
        if ep == cfg.pK + 1:
            stamp(e, cfg, 5); e.wait(vm=['pk']); spin_check(e, cfg, 'kv', [kload], [vKp]); stamp(e, cfg, 6)
            state['k'] = ep
    st.pre_barrier = pre3; st.post_barrier = post3
    run_steps(e, st, steps, nfork, nA + 2, setup, cfg.fill3)
    ld = [('g', lambda: 'k' in state)]
    for h in range(2):
        for q in range(4):
            ld.append(fM(lambda e, h=h, q=q: e.V(f'buffer_load_dwordx4 {vr(R+16*h+4*q)}, v{vL16}, {srd(sWS)}, s{sU1 if h == 0 else sU2} offen offset:{q*1024} sc1', ('kvl', h))))
    cv = []
    for h in range(2):
        cv.append(fF(lambda e, h=h: e.wait(vm=[('kvl', h)])))
        for i in range(8): cv.append(fI(f'v_cvt_pk_bf16_f32 v{Q+8*h+i}, v{R+16*h+2*i}, v{R+16*h+2*i+1}'))
        pads = (6, 7) if h == 0 else (0, 1); m = sHiM if h == 0 else sLoM
        for i in pads: cv.append(fI(f'v_cndmask_b32_e64 v{Q+8*h+i}, v{Q+8*h+i}, v{Z}, s[{m}:{m+1}]'))
        for j in range(2): cv.append(fD(lambda e, h=h, j=j: e.D(f'ds_write_b128 v{vKw}, {vr(Q+8*h+4*j)} offset:{KVB+(2*h+j)*1024}', 'kvw'), 2))
    qs = setup + sum((q_fill(aA + 16 * t, t) for t in range(4)), [])
    nk = nA + 16 * (cfg.pK + 1 - 14) - cfg.LA + 1
    run_steps(e, st, steps, nA + 2, nk, qs, cfg.fill3)
    fill = ld + qs[:cfg.t3c] + cv + qs[cfg.t3c:]
    run_steps(e, st, steps, nk, len(steps), fill, cfg.fill3)
    print(f'  T3 left-over fillers {len(fill)}', file=sys.stderr)
    stamp(e, cfg, 4)
    assert 'K' in st.signalled
    run_valu(e, st, fill)
    e.wait(lg=['kvw']); e.I('s_barrier')
    fs(0)
    for jj in range(8):
        for j in range(2): e.D(f'ds_read_b128 {ar(KF+8*jj+4*j)}, v{vL16} offset:{KVB+(2*jj+j)*1024}', ('kf', jj))
    lg = aB + 48
    rest = q_fill(aB, 4)
    gops = [f'v_mul_f32 v{G}, 0xbfb8aa3b, v{lg}', f'v_exp_f32 v{G}, v{G}', f'v_add_f32 v{G}, 1.0, v{G}', f'v_rcp_f32 v{G}, v{G}', f'v_sub_f32 v{G1}, 1.0, v{G}']
    for i, g in enumerate(gops): rest.insert(2 + 3 * i, fI(g))
    rest.insert(20, fM(lambda e: st.pub(e, f'buffer_store_dword v{G1}, v{vFl}, {srd(sWS)}, s{sU0} offen sc1', 'O')))
    q5 = q_fill(aB + 16, 5); q6 = q_fill(aB + 32, 6)
    N = [aK, aV, aB + 48, aB]
    def num(jj):
        u0 = (7 * jj) // 2; n = N[jj % 4]
        e.wait(lg=[('kf', jj)])
        e.I(f'v_mfma_f32_32x32x16_bf16 {vr(n,16)}, {ar(KF+8*jj)}, {vr(P+2*u0)}, 0')
        e.I(f'v_mfma_f32_32x32x16_bf16 {vr(n,16)}, {ar(KF+8*jj+4)}, {vr(P+2*u0+4)}, {vr(n,16)}')
    def factor(jj):
        n = N[jj % 4]; odd = jj & 1; D = vT + 8 + 4 * (jj & 1)
        dr = n + (0 if odd else 12); m = sLoM if odd else sHiM
        d = D if odd else D + 1
        return [f'v_add_f32 v{D}, s{sEPS}, v{dr}', f'v_add_f32 v{D+1}, s{sEPS}, v{dr}', None, None,
                f'v_permlane32_swap_b32 v{D}, v{D+1}', None, f'v_rcp_f32 v{D+2}, v{d}', None,
                f'v_mul_f32 v{D}, v{D+2}, v{G}', None, f'v_cndmask_b32_e64 v{D+2}, v{D}, v{Z}, s[{m}:{m+1}]']
    k = len(rest) // 3
    num(0); run_valu(e, st, rest[:k]); num(1); run_valu(e, st, rest[k:2*k]); num(2); run_valu(e, st, rest[2*k:])
    for s in factor(0):
        if s: e.I(s)
    for jj in range(8):
        n = N[jj % 4]; odd = jj & 1; D = vT + 8 + 4 * (jj & 1)
        fs(4 + jj)
        if jj == 2: run_valu(e, st, q5)
        if jj == 3: run_valu(e, st, q6)
        if jj + 3 < 8: num(jj + 3)
        nxt = factor(jj + 1) if jj + 1 < 8 else []
        padr = range(0, 4) if odd else range(12, 16)
        O = 64 + 8 * (jj & 1)
        body = [f'v_pk_mul_f32 {vr(n+r,2)}, {vr(n+r,2)}, {vr(D+2 if r in padr else D,2)} op_sel_hi:[1,0]' for r in range(0, 16, 2)]
        body += [f'v_cvt_pk_bf16_f32 v{O+i}, v{n+2*i}, v{n+2*i+1}' for i in range(8)]
        for s in body:
            e.I(s)
            if nxt:
                s2 = nxt.pop(0)
                if s2: e.I(s2)
        e.I(f's_mov_b32 s{sSo}, {(jj >> 2) * 73728 + (jj & 3) * 4096}')
        for j in range(2):
            st.pub(e, f'buffer_store_dwordx4 {vr(O+4*j)}, v{vHst}, {srd(sWS)}, s{sSo} offen offset:{j*2048} {cfg.st_flag}', 'O')
    stamp(e, cfg, 7)
    st.try_signal(e, 'O', 17, force=True)
    stamp(e, cfg, 8)
    stamp_out(e, cfg)

def gen_all(cfg, code_bytes):
    OOL.clear()
    e = Em()
    if cfg.stamps:
        e.I('v_mov_b32 v35, 0'); stamp(e, cfg, 0)
        if cfg.rt: e.many('s_memtime s[100:101]\ns_waitcnt lgkmcnt(0)\nv_writelane_b32 v35, s100, 14')
    prologue1(e, cfg, code_bytes)
    st = St(cfg)
    n0 = 0
    while n0 < 6 and st.mem(e): n0 += 1
    for b, lo, size in ((sWS, 24, (STAMP_OFF + (1 << 20) if cfg.stamps else WS_USED)), (sDBG, 22, 256), (sOUT, 20, 2048 * 896)): mk_srd(e, b, lo, size)
    e.many(f"""
    s_lshl_b32 s{sT0}, s{sHEAD}, 1
    s_lshr_b32 s{sGrp}, 0xd8d863e4, s{sT0}
    s_and_b32 s{sGrp}, s{sGrp}, 3
    s_and_b32 s{sZi}, s2, 63
    """)
    if cfg.touch >= 1:
        if cfg.touch != 3:
            touch_setup(e, 1)
            e.V(f'buffer_load_dword v{vPoll}, v{vTch}, {srd(sTC)}, 0 offen', 'tch')
        if cfg.touch >= 2: touch_setup(e, 2)
    prologue1b(e, cfg)
    late = prologue1c(cfg)
    e.I(f'v_mov_b32 v{vONES}, 0x3f803f80')
    while n0 < cfg.n0 and st.mem(e): n0 += 1
    stamp(e, cfg, 1)
    dbg_ld = f'buffer_load_dword v{vDbg}, v{vL4}, {srd(sDBG)}, 0 offen sc1'
    kpre, kpost = k_hooks(st, cfg)
    tg = [int(x) for x in cfg.tg.split(',')]
    def post(e, ep):
        if ep == 0: stamp(e, cfg, 2)
        if ep == 1:
            assert 'zero' not in e.vm
            e.many(f"""
            s_xor_b32 s{sT0}, s{sGrp}, 3
            s_or_b32 s{sT0}, s{sT0}, s{sW}
            s_cbranch_scc1 L_noflag
            s_lshl_b32 s{sT0}, s{sZi}, 2
            s_mov_b64 exec, 1
            """)
            e.V(f'buffer_store_dword v{vONES}, off, {srd(sDBG)}, s{sT0} sc1', cond=True)
            e.I('s_mov_b64 exec, -1')
            e.label('L_noflag')
        if ep == cfg.zep: e.V(dbg_ld, 'dbg')
        if ep == cfg.zep + 2:
            assert st.cnt.get('K', 0) == 0
            e.wait(vm=['dbg']); spin_check(e, cfg, 'z', [dbg_ld], [vDbg])
        if ep == 12:
            e.I(f's_mov_b32 m0, {GW_LDS}')
            e.V(f'buffer_load_dwordx4 v{vDG}, {srd(sGW)}, 0 offen lds', ('ep', 14))
        if cfg.touch >= 2 and ep in tg:
            mask = sum(1 << g for g in range(4) if tg[g] == ep)
            e.I(f's_bitcmp1_b32 {mask}, s{sGrp}'); e.I(f's_cbranch_scc0 L_tch{ep}')
            e.V(f'buffer_load_dword v{vTch}, v{vTch}, {srd(sTC)}, 0 offen', cond=True)
            e.label(f'L_tch{ep}')
        kpost(e, ep)
    st.pre_barrier = kpre; st.post_barrier = post
    A = steps_K() + steps_A(); steps2 = A + steps_B(False); steps3 = A + steps_B(True)
    for n in range(cfg.LA): issue_read(e, st, n, A[n])
    run_steps(e, st, steps2, 0, 56, late, cfg.fillK)
    print(f'  end of pass K: fillers left {len(late)}', file=sys.stderr)
    run_valu(e, st, late)
    stamp(e, cfg, 13)
    st.qw = [(sq, p) for sq in range(36) for p in range(2)]
    st.qh = [(sq, p) for sq in range(36) for p in range(2)]
    run_steps(e, st, steps2, 56, 59)
    k1, k2 = kv_fill(st)
    fill = k1 + k2
    nfork = len(A) - (cfg.LA - 3)
    run_steps(e, st, steps2, 59, nfork, fill, cfg.fillA)
    assert not fill and max(st.w2blk) < 28
    if st.rd_part: st.preread(e)
    print(f'  end of pass A: W2 ops {72-len(st.qw)} pool {len(st.pool.free)} preread {st.rd_next}', file=sys.stderr)
    stamp(e, cfg, 3)
    e.I(f's_cmp_eq_u32 s{sT3}, 1')
    e.I('s_cbranch_scc1 L_t3')
    e3 = e.fork(); st3 = st.clone()
    def post2(e, ep):
        kpost(e, ep)
        st.try_signal(e, 'A', 4, force=ep >= cfg.sigA)
        if ep == cfg.pA: poll_issue(e, 1)
        if ep == cfg.pA + 1:
            poll_check(e, cfg, 1); st.a_ok = True
    st.post_barrier = post2
    run_steps(e, st, steps2, nfork, len(A) + 2)
    fill = sum((f_fill(st, aA + 16 * i, i, 0) for i in range(4)), [])
    run_steps(e, st, steps2, len(A) + 2, len(steps2), fill, cfg.fill)
    assert not fill
    print(f'  end of pass B: W2 ops {72-len(st.qw)} H ops {72-len(st.qh)} pool {len(st.pool.free)} preread {st.rd_next}', file=sys.stderr)
    stamp(e, cfg, 4)
    e.I('s_barrier'); st.on_epoch(21); post2(e, 21); st.on_epoch(22)
    assert st.a_ok and 'K' in st.signalled
    st.h_ok = 13
    run_valu(e, st, sum((f_fill(st, aB + 16 * i, i, 1) for i in range(4)), []))
    stamp(e, cfg, 5)
    print(f'  start of phase 2: W2 ops {72-len(st.qw)} H ops {72-len(st.qh)} pool {len(st.pool.free)}', file=sys.stderr)
    phase2(e, st, cfg)
    stamp_out(e, cfg)
    e.I('s_endpgm')
    e3.label('L_t3')
    t3_tail(e3, st3, cfg, steps3, nfork, len(A))
    e3.label('L_end')
    e3.I('s_endpgm')
    print(f'  nops T2 {e.nops} T3 {e3.nops}', file=sys.stderr)
    return e.text() + e3.text() + ''.join(OOL)

KD = '''.amdhsa_kernel {k}
  .amdhsa_next_free_vgpr 512
  .amdhsa_next_free_sgpr 102
  .amdhsa_accum_offset 256
  .amdhsa_group_segment_fixed_size 0
  .amdhsa_kernarg_size 88
  .amdhsa_user_sgpr_count 2
  .amdhsa_user_sgpr_kernarg_segment_ptr 1
  .amdhsa_system_sgpr_workgroup_id_x 1
  .amdhsa_float_denorm_mode_32 3
.end_amdhsa_kernel
'''
def build(cfg):
    k = NAME + '_kernel'
    body = gen_all(cfg, f'L_code_end-{k}-64')
    if cfg.skip:
        L = body.split('\n')
        if 'm' in cfg.skip: L = [l for l in L if not l.startswith((' v_mfma', ' ds_'))]
        if 'v' in cfg.skip: L = [l for l in L if not (l.startswith(' buffer_') and 'v35' not in l)]
        if 'p' in cfg.skip: L = [l for l in L if not l.startswith(' s_cbranch_scc0 L_spin')]
        if 's' in cfg.skip: L = [l for l in L if not (l.startswith((' buffer_store', ' buffer_atomic')) and 'v35' not in l)]
        if 'w' in cfg.skip: L = [l for l in L if not (l.startswith(' s_waitcnt vmcnt') and 'vmcnt(0)' not in l) and not l.startswith(' s_barrier')]
        if 'u' in cfg.skip: L = [l for l in L if not l.startswith((' v_max_f32', ' v_mul_f32', ' v_exp', ' v_cvt', ' v_add_f32', ' v_pk_', ' s_nop', ' v_cndmask_b32_e64'))]
        if 'k' in cfg.skip: L = [l for l in L if not l.startswith(f' buffer_load_dwordx4 v{vD2},')]
        body = '\n'.join(L)
    o = f'; {NAME}: generated by gen/gen4.py\n'
    o += f'; @launch grid=(256,1,1) block=(256,1,1) lds={LDS_BYTES}\n'
    o += '.amdgcn_target "amdgcn-amd-amdhsa--gfx950"\n.text\n'
    o += f'.globl {k}\n.p2align 8\n.type {k},@function\n{k}:\n{body}L_code_end:\n s_endpgm\n'
    o += '.section .rodata,"a"\n.p2align 6\n' + KD.format(k=k)
    return o

if __name__ == '__main__':
    cfg = Cfg(); out = None
    for a in sys.argv[1:]:
        if '=' in a:
            k, v = a.split('=', 1); cur = getattr(cfg, k)
            setattr(cfg, k, (v == '1') if isinstance(cur, bool) else type(cur)(v))
        else: out = a
    open(out or f'cdna_kernels/{NAME}.s', 'w').write(build(cfg))
```

```python
import sys
import gen4 as G
def addz(src, dst, A, B, M=10, pre=False):
    s = open(src).read()
    lines = s.split('\n')
    last = max(i for i, l in enumerate(lines) if '@launch' in l)
    if 'kernel=' not in lines[last]:
        lines[last] = lines[last].replace('@launch ', f'@launch kernel={G.NAME}_kernel ')
    lines.insert(last + 1, '; @launch kernel=z_kernel grid=(1,1,1) block=(64,1,1) lds=0')
    if pre: lines.insert(last, '; @launch kernel=y_kernel grid=(224,1,1) block=(256,1,1) lds=0')
    s = '\n'.join(lines)
    b = '''.globl z_kernel
.p2align 8
.type z_kernel,@function
z_kernel:
 s_memrealtime s[24:25]
 s_cmp_lg_u32 s2, 0
 s_cbranch_scc1 Lz_end
 s_load_dwordx2 s[4:5], s[0:1], 80
 v_lshlrev_b32 v1, 8, v0
 s_waitcnt lgkmcnt(0)
 s_mov_b32 s8, s4
 s_mov_b32 s9, s5
 s_mov_b32 s10, %d
 s_mov_b32 s11, 0x20000
''' % (G.STAMP_OFF + (1 << 20))
    for k, (base, n, idx, op) in enumerate((A, B)):
        if op == 'now':
            b += f' s_mov_b32 s{20+k}, s24\n'; continue
        for i in range(n):
            b += f' s_mov_b32 s12, {G.STAMP_OFF + base + i * 16384 + idx * 4}\n buffer_load_dword v{2+i}, v1, s[8:11], s12 offen\n'
        b += ' s_waitcnt vmcnt(0)\n'
        if op in ('avg', 'av3'):
            for i in range(n):
                b += f' s_mov_b32 s12, {G.STAMP_OFF + base + i * 16384 + 48}\n buffer_load_dword v{22+i}, v1, s[8:11], s12 offen\n'
            b += ' s_waitcnt vmcnt(0)\n v_mov_b32 v40, 0\n'
            for i in range(n):
                b += f' v_subrev_u32 v{2+i}, s20, v{2+i}\n v_cmp_{"ne" if op == "avg" else "eq"}_u32 vcc, 0, v{22+i}\n s_nop 1\n v_cndmask_b32 v{2+i}, 0, v{2+i}, vcc\n v_add_u32 v40, v40, v{2+i}\n'
            b += ' s_nop 1\n v_readlane_b32 s21, v40, 0\n'
            for l in range(1, 64): b += f' v_readlane_b32 s13, v40, {l}\n s_nop 1\n s_add_u32 s21, s21, s13\n'
            b += (' s_mul_i32 s21, s21, 1170\n s_lshr_b32 s21, s21, 20\n' if op == 'avg' else ' s_lshr_b32 s21, s21, 7\n') + ' s_add_u32 s21, s21, s20\n'
            continue
        for i in range(1, n): b += f' v_{op}_u32 v2, v2, v{2+i}\n'
        b += f' s_nop 1\n v_readlane_b32 s{20+k}, v2, 0\n'
        for l in range(1, 64): b += f' v_readlane_b32 s13, v2, {l}\n s_nop 1\n s_{op}_u32 s{20+k}, s{20+k}, s13\n'
    b += f''' s_sub_u32 s20, s21, s20
 s_min_u32 s20, s20, 10000
 s_mul_i32 s20, s20, {M}
 s_memrealtime s[14:15]
 s_waitcnt lgkmcnt(0)
Lz_spin:
 s_memrealtime s[16:17]
 s_waitcnt lgkmcnt(0)
 s_sub_u32 s16, s16, s14
 s_cmp_lt_u32 s16, s20
 s_cbranch_scc1 Lz_spin
Lz_end:
 s_endpgm
'''
    KD = '''.p2align 6
.amdhsa_kernel z_kernel
  .amdhsa_next_free_vgpr 64
  .amdhsa_next_free_sgpr 102
  .amdhsa_accum_offset 64
  .amdhsa_group_segment_fixed_size 0
  .amdhsa_kernarg_size 88
  .amdhsa_user_sgpr_count 2
  .amdhsa_user_sgpr_kernarg_segment_ptr 1
  .amdhsa_system_sgpr_workgroup_id_x 1
.end_amdhsa_kernel
'''
    if pre:
        b += '''.globl y_kernel
.p2align 8
.type y_kernel,@function
y_kernel:
 s_cmp_ge_u32 s2, 224
 s_cbranch_scc1 Ly_end
 s_load_dwordx2 s[4:5], s[0:1], 80
 v_lshlrev_b32 v1, 2, v0
 s_lshl_b32 s12, s2, 10
 s_add_u32 s12, s12, %d
 s_waitcnt lgkmcnt(0)
 s_mov_b32 s8, s4
 s_mov_b32 s9, s5
 s_mov_b32 s10, %d
 s_mov_b32 s11, 0x20000
 s_memrealtime s[24:25]
 s_waitcnt lgkmcnt(0)
 v_mov_b32 v2, s24
 buffer_store_dword v2, v1, s[8:11], s12 offen
Ly_end:
 s_endpgm
''' % (G.STAMP_OFF + (1 << 18), G.STAMP_OFF + (1 << 20))
        KD = KD + KD.replace('z_kernel', 'y_kernel')
    s = s.replace('.section .rodata,"a"\n', b + '.section .rodata,"a"\n') + KD
    open(dst, 'w').write(s)
if __name__ == '__main__':
    src = sys.argv[1]
    for i, spec in enumerate(sys.argv[2:]):
        P = []
        for t in spec.split('-'):
            k, idx, op = t.split(':')
            P.append((0 if k == '1' else 1 << 18, 16 if k == '1' else 14, int(idx), op))
        addz(src, f'z{i}.s', P[0], P[1], pre=any(p[0] for p in P))
```

```python
import sys, copy, re
from emit import Em

NAME = 'gated_mix__linear_attn_block__glu_gated_reglu__prompt'
H_BYTES = 32 * 4 * 36 * 2048
P_OFF = H_BYTES
CS = 32768 + 512
KV_OFF = P_OFF + 112 * CS
G_OFF = KV_OFF + 32 * 2048
FR_OFF = G_OFF + 8192
FK_OFF = FR_OFF + 131072
WS_USED = FK_OFF + 16384
NZ = 36
STAMP_OFF = 16 << 20
LOG2E = 0x3fb8aa3b
EPS = 0x358637bd
LDS_BYTES = 160 * 1024

class Cfg:
    LA = 5; WP = 2; LK = 2
    gap = 50; dgap = 20; dgap2 = 44; sgap = 20
    fillK = 48; fillA = 200; fillB = 38; fill3 = 38
    st_flag = 'sc1'; out_flag = ''
    rot = False; rot2 = False; hcap = 99; touch = 2; tg = '3,5,11,1'; tg3 = ''
    zep = 5; n1a = 0; n1b = 6; pre = 0; pre3 = 0
    sigP = 12; sigA = 18; nA = 8; dA = 16; TM = 8; fillT = 36; nB = 2; ageB = 4; ageP = 7; ageA = 9; nP = 40; dP = 14
    vgap = 999; opseq = 4
    LH = 5; LHB = 2; LHO = 7; pollB = 4; pollO = 5; sigB = 2; burst = 8
    pre_age = 10; NPRE = 18; wstart = 8
    pP = 10; t3c = 60; t3k = 70; pburst = 7; kvr = 1; kvage = 8; gap3 = 90; fill3b = 34
    sigwg = 'PAB'; psleep = 2; spin = 4000
    stamps = False; rt = False; fine = False; fine2 = False; skip = ''

sX, sQKV, sI0, sI1, sWS, sDBG, sWD, sWO, sOUT, sGW, sCODE = [28 + 4 * i for i in range(11)]
sW, sRB, sC, sRT, sCT, sQH, sGrp, sZi = range(72, 80)
sM1K, sM2K, sM4K, sSoF, sSoJ, sT0, sT1, sT2, sSo, sEPS, sL2E, sPhiC = range(80, 92)
sPadM, sHiM = 92, 96
sPhiB, sPoll = 98, 99
sRot = 94
sSoH, sSigR, sSoW, sDW2 = 26, 27, 10, 11
sU0, sU1, sU2 = 0, 1, 3
sTC = sCODE
def srd(b): return f's[{b}:{b+3}]'

vL, vL16, vL4, vD0, vD1, vJ0, vJ1, vHst, vPst, vAK, vAV, vONES, vDbg, vAG, vFv, vTch = range(1, 17)
vAX = [17, 18, 19, 20]
vAF = [[21 + 4 * w + t for t in range(4)] for w in range(3)]
vFl = 33
vT = 36
vDW0, vDW1, vH0, vH1, vG0, vG1, vOut, vWr, vPoll = range(60, 69)
vA2 = [[69, 70], [71, 72], [73, 74]]
vRd = [75, 76, 77]
vPA, vPO = 78, 79
vDX = [80, 81, 82, 83]
vPW = 84
aK, aV, aA, aB = 96, 112, 128, 192
aFR = 224
XB, JB, FB = 0, 48 * 1024, 104 * 1024
def hreg(sq): return 8 * sq if sq < 28 else 8 * (sq - 28)
def vr(b, n=4): return f'v[{b}:{b+n-1}]'
def ar(b, n=4): return f'a[{b}:{b+n-1}]'
def sub(r, o, n):
    k = r[0]; lo = int(r[2:r.index(':')]); return f'{k}[{lo+o}:{lo+o+n-1}]'
def srd_txt(b, lo, size): return f's_mov_b32 s{b}, s{lo}\ns_mov_b32 s{b+1}, s{lo+1}\ns_mov_b32 s{b+2}, {size}\ns_mov_b32 s{b+3}, 0x20000\n'
def log(*a): print('  ', *a, file=sys.stderr)

def stamp(e, cfg, i):
    if cfg.stamps:
        e.wait(lg_all=True)
        e.I(('s_memrealtime' if cfg.rt else 's_memtime') + ' s[100:101]'); e.I('s_waitcnt lgkmcnt(0)')
        e.I(f'v_writelane_b32 v35, s100, {i}')
def stamp_out(e, cfg):
    if not cfg.stamps: return
    if cfg.rt:
        e.many(f'''
        s_memtime s[100:101]
        v_readlane_b32 s{sT0}, v35, 14
        s_waitcnt lgkmcnt(0)
        s_sub_u32 s{sT0}, s100, s{sT0}
        s_lshr_b32 s{sT0}, s{sT0}, 4
        v_writelane_b32 v35, s{sT0}, 14
        s_memrealtime s[100:101]
        v_readlane_b32 s{sT0}, v35, 0
        s_waitcnt lgkmcnt(0)
        s_sub_u32 s{sT0}, s100, s{sT0}
        v_writelane_b32 v35, s{sT0}, 15
        ''')
    e.many(f's_lshl_b32 s{sT0}, s2, 2\ns_add_u32 s{sT0}, s{sT0}, s{sW}\ns_lshl_b32 s{sT0}, s{sT0}, 8\ns_add_u32 s{sT0}, s{sT0}, {STAMP_OFF}')
    e.V(f'buffer_store_dword v35, v{vL4}, {srd(sWS)}, s{sT0} offen', 'st')

class Pool:
    def __init__(self): self.free = []
    def add(self, addr): assert addr not in self.free; self.free.append(addr)
    def take(self, keep=0):
        if len(self.free) <= keep: return None
        return self.free.pop(0)

class St:
    def __init__(self, cfg, t3):
        self.cfg = cfg; self.t3 = t3
        self.pool = Pool(); self.wpool = Pool()
        for i in range(7): self.pool.add(FB + 8192 * i)
        self.fblk = {}; self.w2blk = {}
        q = []
        for s in range(7):
            q += [('x', s, j) for j in range(4)]
            if t3: q += [('f', 0, p, i) for p in (2 * s, 2 * s + 1) for i in (0, 1)]
            else: q += [('j', s, 0), ('j', s, 1)]
        for ps in ((1,) if t3 else (0, 1)):
            for p in range(14): q += [('f', ps, p, 0), ('f', ps, p, 1)]
        self.q = q; self.qw = []; self.qh = []
        self.e0 = {'K': 0, 0: 0 if t3 else 7, 1: 7 if t3 else 14}
        self.xpass = 0 if t3 else 'K'
        self.epoch = -1; self.h_ok = -1; self.a_ok = False
        self.cnt = {}; self.signalled = set(); self.x_issued = -1
        self.rd_done = []; self.rd_next = 0; self.rd_part = 0
        self.m0 = None
        self.pre_barrier = self.post_barrier = None
    def ep_of(self, ps, ks):
        if ps == 1 and not self.t3: ks = min(ks, 28 - self.cfg.TM)
        return self.e0[ps] + ks // 4
    def dep(self, d): return d[1] if d[0] in 'xj' else self.ep_of(d[1], 2 * d[2])
    def free_epoch(self, ps, pair):
        if ps == 1 and not self.t3 and 2 * pair >= 26 - self.cfg.TM: return 21
        return self.ep_of(ps, 2 * pair) + (2 if pair & 1 else 1)
    def demand(self, e):
        if not self.q or self.m0 == 'w': return False
        cfg = self.cfg; d = self.q[0]; tag = ('ep', self.dep(d))
        if self.m0 is None and self.dep(d) > max(self.epoch, 0) + cfg.LK: return False
        if d[0] == 'x':
            _, s, j = d
            if j == 0:
                if s >= 3 and (self.x_issued < 4 * s - 9 or ('x', 4 * s - 9) in e.lg): return False
                e.I(f's_add_u32 m0, s{sM4K}, {XB + (s % 3) * 16384}')
                if cfg.rot: e.many(f's_addk_i32 s{sSoH}, 128\ns_cmpk_eq_u32 s{sSoH}, 896\ns_cselect_b32 s{sSoH}, 0, s{sSoH}')
                elif s: e.I(f's_movk_i32 s{sSoH}, {s * 128}')
            e.V(f'buffer_load_dwordx4 v{vDX[j]}, {srd(sX)}, ' + (f's{sSoH}' if s else '0') + f' offen offset:{j * 1024} lds', tag)
            self.m0 = 'd' if j < 3 else None
        elif d[0] == 'j':
            _, s, j = d
            if j == 0:
                e.I(f's_add_u32 m0, s{sM2K}, {JB + s * 8192}')
                if cfg.rot: e.I(f's_mul_i32 s{sSoJ}, s{sSoH}, 1344')
                elif s: e.I(f's_mov_b32 s{sSoJ}, {s * 64 * 2688}')
            e.V(f'buffer_load_dwordx4 v{vJ0 + j}, {srd(sQKV)}, ' + (f's{sSoJ}' if s or cfg.rot else '0') + f' offen offset:{j * 1024} lds', tag)
            self.m0 = 'd' if j < 1 else None
        else:
            _, ps, p, img = d
            stride = 2688 if self.t3 else 3584
            so = p * 32 * stride + ps * (256 if self.t3 else 128)
            if img == 0:
                a = self.pool.take()
                if a is None: return False
                self.fblk[(ps, p)] = a
                e.I(f's_add_u32 m0, s{sM2K}, {a}')
                if cfg.rot:
                    po = so - p * 32 * stride
                    if p == 0:
                        e.I(f's_mul_i32 s{sSoF}, s{sRot}, {stride // 2}')
                        if po: e.I(f's_addk_i32 s{sSoF}, {po}')
                    else:
                        e.I(f's_add_u32 s{sSoF}, s{sSoF}, {32 * stride}')
                        if p % 2 == 0: e.many(f's_cmp_eq_u32 s{sSoF}, {448 * stride + po}\ns_cselect_b32 s{sSoF}, {po}, s{sSoF}')
                elif so: e.I(f's_mov_b32 s{sSoF}, {so}')
            e.V(f'buffer_load_dwordx4 v{vD0 + img}, {srd(sI0 + 4 * img)}, ' + (f's{sSoF}' if so or cfg.rot else '0') + f' offen offset:{img * 1024} lds', tag)
            self.m0 = 'd' if img < 1 else None
        self.q.pop(0)
        return True
    def w2(self, e):
        if not self.qw or self.epoch < self.cfg.wstart or self.m0 == 'd': return False
        sq, part = self.qw[0]
        if sq < 28:
            p, s2 = divmod(sq, 14); row = 256 * (s2 >> 1) + 16 * (s2 & 1) + 64 * p; sr = sWD
        else:
            row = 16 * (sq - 28); sr = sWO
        if part == 0:
            for s2 in [x for x in self.rd_done if ('w2', x) not in e.lg]:
                self.rd_done.remove(s2); self.wpool.add(self.w2blk[s2])
            left = sum(1 for d in self.q if d[0] == 'f' and d[3] == 0)
            a = self.wpool.take()
            if a is None: a = self.pool.take(keep=min(left, 2))
            if a is None: return False
            self.w2blk[sq] = a
            if sq == 28:
                e.I(f'v_add_u32 v{vDW0}, s{sDW2}, v{vDW0}'); e.I(f'v_add_u32 v{vDW1}, s{sDW2}, v{vDW1}')
            e.I(f's_add_u32 m0, s{sM2K}, {a}')
            if self.cfg.rot2: self.rot_step(e, sSoW, sq, 256 * 896, 16 * 896, 64 * 896, 16 * 896, 0)
            else: e.I(f's_mov_b32 s{sSoW}, {row * 896}')
        e.V(f'buffer_load_dwordx4 v{vDW0 + part}, {srd(sr)}, s{sSoW} offen offset:{part * 1024} lds', ('W', sq))
        self.m0 = 'w' if part == 0 else None
        self.qw.pop(0)
        return True
    def rot_step(self, e, r, sq, pair, odd, part, step, base3):
        if sq >= 28: unit, base, first, inc = step, base3, sq == 28, step
        else:
            unit, base, first, inc = pair, part * (sq // 14), sq % 14 == 0, pair - odd
            if sq & 1: e.I(f's_add_u32 s{r}, s{r}, {odd}'); return
        if first:
            e.I(f's_mul_i32 s{r}, s{sCT}, {unit}')
            if base: e.I(f's_add_u32 s{r}, s{r}, {base}')
        else: e.many(f's_add_u32 s{r}, s{r}, {inc}\ns_cmp_eq_u32 s{r}, {7 * unit + base}\ns_cselect_b32 s{r}, {base}, s{r}')
    def wreg(self, sq):
        if 14 <= sq < self.cfg.NPRE: return vr(aK + 8 * (sq - 14), 8)
        return ar(112 + 8 * sq, 8) if sq < 14 else (ar(aFR + 8 * (sq % 4), 8) if sq < 28 else vr(aB + 8 * (sq - 28), 8))
    def wread(self, e, sq, parts=(0, 1)):
        a = self.w2blk[sq]; f = self.wreg(sq)
        for n in parts:
            for j in range(2):
                e.D(f'ds_read_b64_tr_b16 {sub(f,4*n+2*j,2)}, v{vA2[a >> 16][n]} offset:{(a & 0xffff) + j * 1024}', ('w2', sq))
        if 1 in parts: self.rd_done.append(sq)
    def preread(self, e):
        sq = self.rd_next
        if sq >= self.cfg.NPRE or sq not in self.w2blk or (sq, 1) in self.qw: return False
        assert sq < 14 or self.cnt.get('P', 0) == 4
        if ('W', sq) in e.vm:
            if len(e.vm) - 1 - max(i for i, t in enumerate(e.vm) if t == ('W', sq)) < self.cfg.pre_age: return False
            e.wait(vm=[('W', sq)])
        self.wread(e, sq, (self.rd_part,))
        self.rd_part ^= 1
        if self.rd_part == 0: self.rd_next += 1
        return True
    def h(self, e):
        if not self.qh or self.qh[0][0] > self.h_ok: return False
        sq, b = self.qh.pop(0)
        off = (sq & 1) * 2048
        if self.cfg.rot2:
            if sq >= 28: off = 0
            if b == 0 and not off: self.rot_step(e, sSoH, sq, 4096, 0, 28672, 2048, 57344)
        elif b == 0 and sq % 2 == 0: e.I(f's_mov_b32 s{sSoH}, {sq * 2048}')
        e.V(f'buffer_load_dwordx4 {ar(hreg(sq)+4*b)}, v{vH0+b}, {srd(sWS)}, s{sSoH} offen offset:{off} sc1', ('H', sq))
        return True
    def mem(self, e):
        if self.demand(e): return True
        wn = self.qw[0][0] if self.qw else 99; hn = self.qh[0][0] if self.qh else 99
        order = (self.w2, self.h) if wn <= hn + 1 or self.m0 == 'w' else (self.h, self.w2)
        return order[0](e) or order[1](e)
    def on_epoch(self, ep):
        self.epoch = ep
        for (ps, p), a in self.fblk.items():
            if self.free_epoch(ps, p) == ep: self.pool.add(a)
        if self.t3: return
        if 6 <= ep <= 8:
            a = XB + ((ep - 2) % 3) * 16384; self.pool.add(a); self.pool.add(a + 8192)
        if 2 <= ep <= 8: self.pool.add(JB + 8192 * (ep - 2))
    def pub(self, e, text, tag):
        e.V(text, tag); self.cnt[tag] = self.cnt.get(tag, 0) + 1
    def try_signal(self, e, tag, n, force=False, age=None):
        if tag in self.signalled or self.cnt.get(tag, 0) < n: return
        if age is not None and tag in e.vm and len(e.vm) - 1 - max(i for i, t in enumerate(e.vm) if t == tag) >= age: force = True
        if force: e.wait(vm=[tag])
        if tag in e.vm: return
        assert 'z' in self.signalled
        if tag in self.cfg.sigwg:
            e.I('s_barrier'); e.I(f's_cmp_eq_u32 s{sW}, 0'); e.I(f's_cbranch_scc0 L_sig{tag}')
            e.V(f'buffer_store_dword v{ {"P": vFv, "A": vDbg}.get(tag, vONES)}, v{vFl}, {srd(sWS)}, s{sSigR} offen sc1', cond=True)
            e.label(f'L_sig{tag}')
            if tag == 'P': e.I(f'v_mov_b32 v{vDbg}, 2')
        elif tag == 'P': e.V(f'buffer_store_dword v{vFv}, v{vFl}, {srd(sWS)}, s{sSigR} offen sc1', 'sig'); e.I(f'v_mov_b32 v{vDbg}, 2')
        elif tag == 'A': e.V(f'buffer_store_dword v{vDbg}, v{vFl}, {srd(sWS)}, s{sSigR} offen sc1', 'sig')
        else: e.V(f'buffer_store_dword v{vONES}, v{vFl}, {srd(sWS)}, s{sSoW if tag == "K" else sSigR} offen sc1', 'sig')
        if self.cfg.fine2 and tag in 'PAB': stamp(e, self.cfg, 44 + 'PAB'.index(tag))
        self.signalled.add(tag)
        log(f'signal {tag} at epoch {self.epoch} mfma {e.n_mfma}')

def steps(ps, tiles): return [(ps, ks, t) for ks in range(28) for t in tiles]

def issue_read(e, st, S, n):
    cfg = st.cfg
    ps, ks, t = S[n]
    ep = st.ep_of(ps, ks)
    if ep != st.epoch:
        while st.q and st.dep(st.q[0]) <= ep: assert st.mem(e), ('DMA cannot be issued in time', st.q[0], ep)
        if st.pre_barrier: st.pre_barrier(e, ep)
        e.wait(vm=[('ep', ep)])
        e.I('s_barrier')
        st.on_epoch(ep); st.n_ep = n
        if cfg.fine and ep > 0: stamp(e, cfg, 43 + ep)
        if st.post_barrier: st.post_barrier(e, ep)
    if ps == st.xpass and n - st.n_ep < 4:
        q = n - st.n_ep
        e.D(f'ds_read_b128 {ar(4*(4*ep+q))}, v{vAX[q]} offset:{XB + (ep % 3) * 16384}', ('x', 4 * ep + q)); st.x_issued = 4 * ep + q
    fr = aFR + 4 * (n % 8)
    if t == 'g':
        e.D(f'ds_read_b128 {ar(fr)}, v{vAG} offset:{ks * 32}', ('w', n)); return
    if ps == 'K': reg = vAK + t; off = ks * 2048
    else:
        a = st.fblk[(ps, ks // 2)]
        reg = vAF[a >> 16][t]; off = (a & 0xffff) + (ks & 1) * 4096
    e.D(f'ds_read_b64_tr_b16 {ar(fr,2)}, v{reg} offset:{off}', ('w', n))
    e.D(f'ds_read_b64_tr_b16 {ar(fr+2,2)}, v{reg} offset:{off+512}', ('w', n))

def issue_mfma(e, st, S, n):
    ps, ks, t = S[n]
    fr = ar(aFR + 4 * (n % 8)); x = ar(4 * ks)
    e.wait(lg=[('w', n), ('w', n | (st.cfg.WP - 1)), ('x', ks)])
    if ps == 'K':
        acc = vr(aK + 16 * t, 16); a, b = x, fr
    else:
        acc = vr((aA, aB)[ps] + 16 * (3 if t == 'g' else t), 16); a, b = fr, x
    e.I(f'v_mfma_f32_32x32x16_bf16 {acc}, {a}, {b}, ' + ('0' if ks == 0 else acc))

def gap(e, st, fillers, fill, reads=None, tail=0, dg=None):
    cfg = st.cfg; t0 = e.last_mfma
    def gates():
        while fillers and fillers[0][0] == 'g' and fillers[0][1](): fillers.pop(0)
    gates()
    if not st.t3:
        st.try_signal(e, 'P', 4, age=cfg.ageP); st.try_signal(e, 'A', 4, age=cfg.ageA)
    idle = e.clk - e.last_vm; did = False
    if fillers and fillers[0][0] == 'm' and idle >= cfg.sgap: fillers.pop(0)[1](e); did = True
    elif idle >= dg and st.demand(e): did = True
    elif idle >= (cfg.gap3 if st.t3 else cfg.gap) and st.mem(e): did = True
    if reads: reads()
    gates(); k = 0
    while fillers and fillers[0][0] == 'd' and (k == 0 or e.clk - t0 + tail + 4 * fillers[0][2] <= fill):
        fillers.pop(0)[1](e); k += 1
    if not did and not k: st.preread(e)
    while fillers and fillers[0][0] == 'i' and e.clk - t0 + tail + 4 * fillers[0][2] <= fill:
        fillers.pop(0)[1](e)

def run_steps(e, st, S, lo, hi, fillers=None, fill=0, hook=None):
    cfg = st.cfg
    for n in range(lo, hi):
        issue_mfma(e, st, S, n)
        rd = (lambda: issue_read(e, st, S, n + cfg.LA)) if n + cfg.LA < len(S) else None
        gap(e, st, fillers, fill, rd, 4 if (n + 1) % cfg.WP == 0 else 0, cfg.dgap if st.epoch < 6 else cfg.dgap2)
        if hook: hook(n)
        if st.a_ok and S[n][0] == 1: st.h_ok = min(min(S[n][1], 28 - cfg.TM) // 2 - 1, cfg.hcap)

def run_valu(e, st, fillers):
    for f in fillers:
        if f[0] == 'g': assert f[1](); continue
        f[1](e)
        if e.clk - e.last_vm >= st.cfg.vgap: st.mem(e)
    fillers.clear()

def fI(text, cost=1): return ('i', lambda e: e.I(text), cost)
def fF(fn, cost=1): return ('i', fn, cost)
def fM(fn): return ('m', fn, 3)
def fD(fn, cost=1): return ('d', fn, cost)
def fT(txt):
    for a, b in ((sT0, sU0), (sT1, sU1), (sT2, sU2)): txt = re.sub(rf'\bs{a}\b', f's{b}', txt)
    return [fI(l.strip()) for l in txt.strip().split('\n') if l.strip()]

def phi_fill(acc, n, tmp, generic=False):
    L = []
    for r0 in range(0, n, 4):
        for i in range(4): L.append(fI(f'v_mul_f32 v{tmp+i}, s{sL2E}, v{acc+r0+i}'))
        for i in range(4):
            L.append(fI(f'v_exp_f32_e64 v{tmp+i}, v{tmp+i} clamp', 2))
            L.append(fI(f'v_max_f32 v{acc+r0+i}, s{sPhiC if generic else sEPS}, v{acc+r0+i}'))
        for i in range(4):
            L.append(fI(f'v_fmac_f32 v{acc+r0+i}, s{sPhiB}, v{tmp+i}' if generic else f'v_add_f32 v{acc+r0+i}, v{acc+r0+i}, v{tmp+i}'))
    return L

def p_fill(st):
    L = []
    for t in range(2):
        for j in range(2):
            acc = aK + 16 * t + 8 * j; pk = vT + 4 + 4 * j
            L += phi_fill(acc, 8, vT, True)
            L += [fI(f'v_cvt_pk_bf16_f32 v{pk+i}, v{acc+2*i}, v{acc+2*i+1}') for i in range(4)]
            def st_(e, t=t, j=j, pk=pk):
                if t and not j: e.I(f's_mov_b32 s{sSo}, {4 * CS}')
                st.pub(e, f'buffer_store_dwordx4 {vr(pk)}, v{vPst}, {srd(sWS)}, ' + (f's{sSo}' if t else '0') + f' offen offset:{j*256} {st.cfg.st_flag}', 'P')
            L.append(fM(st_))
    return L

def f_fill(st, acc, i, ps):
    L = []
    for r in range(8): L.append(fI(f'v_max_f32 v{acc+r}, 0, v{acc+r}'))
    for r in range(8): L.append(fI(f'v_mul_f32 v{acc+r}, v{acc+r}, v{acc+8+r}'))
    for r in range(4): L.append(fI(f'v_cvt_pk_bf16_f32 v{acc+8+r}, v{acc+2*r}, v{acc+2*r+1}'))
    if i % 2 == 0: L.append(fI(f's_mov_b32 s{sSo}, {(i >> 1) * 147456 + ps * 28672}'))
    L.append(fM(lambda e: st.pub(e, f'buffer_store_dwordx4 {vr(acc+8)}, v{vHst}, {srd(sWS)}, s{sSo} offen offset:{(i & 1) * 2048} {st.cfg.st_flag}', 'AB'[ps])))
    return L

OOL = []
def spin_check(e, cfg, name, load, reg, above=0):
    test = f'v_cmp_lt_u32 vcc, {above}, v{reg}'
    e.I(test); e.I('s_cmp_eq_u64 vcc, -1'); e.I(f's_cbranch_scc0 L_spin_{name}')
    e.label(f'L_ok_{name}')
    OOL.append(f'L_spin_{name}:\n s_mov_b32 s{sT0}, 0\nL_spin2_{name}:\n s_sleep {cfg.psleep}\n {load}\n'
               f' s_add_u32 s{sT0}, s{sT0}, 1\n s_waitcnt vmcnt(0)\n {test}\n s_nop 1\n s_cmp_eq_u64 vcc, -1\n'
               f' s_cbranch_scc1 L_ok_{name}\n s_cmp_lt_u32 s{sT0}, {cfg.spin}\n s_cbranch_scc1 L_spin2_{name}\n s_branch L_ok_{name}\n')
WG = ['']
def poll_txt(kind): return f'buffer_load_dword v{vPoll}, v{vPO if kind == "O" else vPW if kind in WG[0] else vPA}, {srd(sWS)}, s{sT2 if kind in WG[0] else sPoll} offen sc1'
def poll_issue(e, kind):
    if kind in WG[0]: e.I(f's_andn2_b32 s{sT2}, s{sPoll}, 256')
    e.V(poll_txt(kind), ('poll', kind))
def poll_check(e, cfg, kind):
    e.wait(vm=[('poll', kind)])
    spin_check(e, cfg, kind, poll_txt(kind), vPoll, above={'A': 1, 'B': 2}.get(kind, 0))

t_ = [vT + 12 + i for i in range(10)]
def entry(e, cfg, code_bytes):
    t = t_
    rot = f'''s_lshl1_add_u32 s{sT1}, s{sGrp}, s{sT1}
    s_and_b32 s{sT0}, s2, 3
    s_add_u32 s{sT1}, s{sT1}, s{sT0}
    s_mul_i32 s{sT0}, s{sT1}, 37
    s_lshr_b32 s{sT0}, s{sT0}, 8
    s_mul_i32 s{sT0}, s{sT0}, 7
    s_sub_u32 s{sT1}, s{sT1}, s{sT0}
    s_lshl_b32 s{sRot}, s{sT1}, 7
    s_mov_b32 s{sSoH}, s{sRot}''' if cfg.rot else ''
    e.many(f'''
    s_cmp_ge_u32 s2, 256
    s_cbranch_scc1 L_end
    s_load_dwordx16 s[4:19], s[0:1], 0
    s_load_dwordx4 s[20:23], s[0:1], 64
    s_load_dwordx2 s[24:25], s[0:1], 80
    s_getpc_b64 s[{sCODE}:{sCODE+1}]
    s_mov_b32 s{sCODE+2}, {code_bytes}
    s_mov_b32 s{sCODE+3}, 0x20000
    s_lshr_b32 s{sCT}, s2, 3
    s_mul_i32 s3, s{sCT}, 9
    v_min_u32 v{vT}, 8, v0
    v_add_lshl_u32 v{vT}, v{vT}, s3, 7
    ''')
    e.V(f'buffer_load_dword v{vT+1}, v{vT}, {srd(sCODE)}, 0 offen', 'code')
    e.many(f'''
    v_lshrrev_b32 v{t[3]}, 6, v0
    v_and_b32 v{vL}, 63, v0
    v_readfirstlane_b32 s{sW}, v{t[3]}
    v_lshrrev_b32 v{t[0]}, 3, v{vL}
    v_and_b32 v{t[1]}, 7, v0
    s_and_b32 s{sT1}, s{sCT}, 7
    s_lshr_b32 s{sGrp}, s2, 6
    s_and_b32 s{sRB}, s2, 4
    s_lshl1_add_u32 s{sRB}, s{sRB}, s{sT1}
    s_lshl2_add_u32 s{sT0}, s{sRB}, s{sW}
    s_mulk_i32 s{sT0}, {32*896}
    s_movk_i32 s{sT2}, 896
    v_xor_b32 v{t[4]}, v{t[1]}, v{t[0]}
    v_lshl_add_u32 v{t[4]}, v{t[4]}, 4, s{sT0}
    v_mad_u32_u24 v{vDX[0]}, v{t[0]}, s{sT2}, v{t[4]}
    s_movk_i32 s{sT0}, 6144
    v_add_u32 v{vDX[1]}, s{sT0}, v{vDX[0]}
    v_add_u32 v{vDX[2]}, s{sT0}, v{vDX[1]}
    v_add_u32 v{vDX[3]}, s{sT0}, v{vDX[2]}
    s_lshl_b32 s{sM2K}, s{sW}, 11
    s_lshl_b32 s{sM4K}, s{sW}, 12
    s_mov_b32 s{sX+2}, {2048*896}
    s_mov_b32 s{sX+3}, s{sCODE+3}
    s_mov_b32 s{sQKV+2}, {448*2688}
    s_mov_b32 s{sQKV+3}, s{sCODE+3}
    v_lshrrev_b32 v{t[2]}, 2, v0
    v_and_b32 v{t[2]}, 4, v{t[2]}
    v_xor_b32 v{t[2]}, v{t[2]}, v{t[1]}
    v_lshlrev_b32 v{t[2]}, 4, v{t[2]}
    s_lshr_b32 s{sQH}, s2, 1
    s_and_b32 s{sQH}, s{sQH}, 1
    s_xor_b32 s3, s{sT1}, s2
    s_and_b32 s3, s3, 1
    s_and_b32 s{sC}, s2, 1
    s_lshl2_add_u32 s{sC}, s{sC}, s{sGrp}
    s_cmp_eq_u32 s{sGrp}, 3
    s_cselect_b32 s3, s3, 0
    s_cselect_b32 s{sC}, 3, s{sC}
    s_mul_i32 s{sT0}, s{sQH}, 7
    s_add_u32 s{sC}, s{sC}, s{sT0}
    s_add_u32 s{sT0}, s{sC}, 7
    s_lshl_b32 s{sT0}, s{sT0}, 7
    s_movk_i32 s{sT2}, 2688
    v_lshl_add_u32 v{t[3]}, v{t[3]}, 4, v{t[0]}
    v_add_u32 v{t[4]}, s{sT0}, v{t[2]}
    v_mad_u32_u24 v{vJ0}, v{t[3]}, s{sT2}, v{t[4]}
    v_add_u32 v{vJ1}, {8*2688-1024}, v{vJ0}
    {rot}
    s_mov_b32 m0, s{sM4K}
    s_cmp_eq_u32 s3, 1
    {'s_memtime s[92:93]' if cfg.fine2 else ''}
    s_waitcnt lgkmcnt(0)
    {'s_memtime s[96:97]' if cfg.fine2 else ''}
    s_mov_b64 s[{sX}:{sX+1}], s[4:5]
    s_mov_b64 s[{sQKV}:{sQKV+1}], s[6:7]
    ''')
    for j in range(4): e.V(f'buffer_load_dwordx4 v{vDX[j]}, {srd(sX)}, ' + (f's{sRot}' if cfg.rot else '0') + f' offen offset:{j * 1024} lds', ('ep', 0))
    e.I('s_cbranch_scc1 L_t3')

def first_loads(e, st, cfg, n_stage):
    R = '3' if st.t3 else '2'
    t = t_
    del st.q[:4]
    if st.t3:
        e.many(f'''
        s_mul_i32 s{sT0}, s{sW}, {8*2688}
        s_mul_i32 s{sT1}, s{sQH}, 448
        s_add_u32 s{sT0}, s{sT0}, s{sT1}
        v_mul_u32_u24 v{t[3]}, 2688, v{t[0]}
        v_add3_u32 v{vD0}, v{t[3]}, v{t[2]}, s{sT0}
        v_xor_b32 v{t[4]}, 32, v{t[2]}
        v_add3_u32 v{vD1}, v{t[3]}, v{t[4]}, s{sT0}
        s_mov_b32 s{sI0+2}, {448*2688}
        s_mov_b32 s{sI0+3}, 0x20000
        s_mov_b32 s{sI1+2}, {448*2688+896}
        s_mov_b32 s{sI1+3}, 0x20000
        s_mov_b32 s{sI0}, s6
        s_mov_b32 s{sI0+1}, s7
        s_sub_u32 s{sI1}, s6, 896
        s_subb_u32 s{sI1+1}, s7, 0
        ''')
    for _ in range(n_stage - 4): assert st.mem(e)
    if cfg.fine2 and not st.t3:
        stamp(e, cfg, 49); e.I('v_writelane_b32 v35, s92, 47'); e.I('v_writelane_b32 v35, s96, 48')
    if cfg.touch in (1, 2):
        e.many(f'''
        s_and_b32 s{sT0}, s2, 7
        s_lshl_b32 s{sT0}, s{sT0}, 5
        s_add_u32 s{sT0}, s{sT0}, s{sCT}
        s_and_b32 s{sT1}, s{sW}, 1
        s_lshl1_add_u32 s{sT0}, s{sT0}, s{sT1}
        s_cmp_lt_u32 s{sW}, 2
        s_cselect_b32 s{sT1}, 28, 21
        s_cselect_b32 s{sTC+2}, s{sX+2}, s{sQKV+2}
        s_cselect_b32 s{sTC}, s4, s6
        s_cselect_b32 s{sTC+1}, s5, s7
        s_mul_i32 s{sT0}, s{sT0}, s{sT1}
        s_sub_u32 s{sT1}, s{sT1}, 1
        v_min_u32 v{vTch}, s{sT1}, v{vL}
        v_add_lshl_u32 v{vTch}, v{vTch}, s{sT0}, 7
        ''')
        e.V(f'buffer_load_dword v{vPoll}, v{vTch}, {srd(sTC)}, 0 offen', 'tch')
    e.many(f'''
    v_lshlrev_b32 v{vL16}, 4, v{vL}
    v_lshlrev_b32 v{vL4}, 2, v{vL}
    s_and_b32 s{sZi}, s2, 63
    s_lshl_b32 s{sM1K}, s{sW}, 10
    s_bfe_u32 s{sT1}, s2, 0x20004
    s_add_u32 s{sT1}, s{sT1}, 24
    s_cmp_eq_u32 s{sGrp}, 3
    s_cselect_b32 s{sCT}, s{sT1}, s{sCT}
    ''')
    e.many(srd_txt(sWS, 24, STAMP_OFF + (1 << 20) if cfg.stamps else WS_USED) + f'''
    v_mov_b32 v{vT+4}, 0
    v_mov_b32 v{vT+5}, 0
    v_mov_b32 v{vT+6}, 0
    v_mov_b32 v{vT+7}, 0
    s_lshl_b32 s{sT0}, s2, 12
    s_add_u32 s{sT0}, s{sT0}, s{sM1K}
    s_add_u32 s{sT0}, s{sT0}, {FR_OFF - 128 * 4096}
    s_sub_u32 s{sT1}, s2, 128
    s_cmp_lt_u32 s{sT1}, {NZ}
    s_cselect_b32 s{sT0}, s{sT0}, 0x7fff0000
    ''')
    e.V(f'buffer_store_dwordx4 {vr(vT+4)}, v{vL16}, {srd(sWS)}, s{sT0} offen sc1', 'zero')
    for _ in range(cfg.n1a): assert st.mem(e)
    e.many(f'''
    v_lshrrev_b32 v{t[6]}, 5, v{vL}
    v_bfe_u32 v{t[5]}, v{vL}, 2, 2
    v_lshlrev_b32 v{t[5]}, 7, v{t[5]}
    v_and_b32 v{t[4]}, 3, v{vL}
    v_lshl_add_u32 v{t[5]}, v{t[4]}, 3, v{t[5]}
    v_bfe_u32 v{t[4]}, v{vL}, 3, 1
    v_lshl_add_u32 v{t[5]}, v{t[4]}, 6, v{t[5]}
    v_bfe_u32 v{t[7]}, v{vL}, 4, 1
    v_lshl_add_u32 v{t[5]}, v{t[7]}, 5, v{t[5]}
    v_xor_b32 v{t[4]}, v{t[1]}, v{t[6]}
    v_and_b32 v{t[8]}, 31, v{vL}
    v_lshlrev_b32 v{t[3]}, 7, v{t[8]}
    v_lshl_add_u32 v{t[3]}, v{t[4]}, 4, v{t[3]}
    v_add_u32 v{vAX[0]}, s{sM4K}, v{t[3]}
    v_xor_b32 v{vAX[1]}, 32, v{vAX[0]}
    v_xor_b32 v{vAX[2]}, 64, v{vAX[0]}
    v_xor_b32 v{vAX[3]}, 96, v{vAX[0]}
    v_mov_b32 v{vONES}, 0x3f803f80
    ''' + srd_txt(sDBG, 22, 256))
    af = f'v_lshl_add_u32 v{vAF[0][0]}, v{t[6]}, 11, v{t[5]}\n'
    if not st.t3: af += f'v_lshl_add_u32 v{vAF[0][0]}, v{t[7]}, 10, v{vAF[0][0]}\n'
    for q, X in zip((1, 2, 3), (64, 1024 + 32, 1024 + 96) if st.t3 else (32, 64, 96)): af += f'v_xor_b32 v{vAF[0][q]}, {X}, v{vAF[0][0]}\n'
    for w in (1, 2):
        for q in range(4): af += f'v_add_u32 v{vAF[w][q]}, {65536*w}, v{vAF[0][q]}\n'
    if st.t3: e.many(af); af = ''
    else: e.many(f'v_lshl_add_u32 v{vAK}, v{t[6]}, 10, v{t[5]}\nv_add_u32 v{vAK}, {JB}, v{vAK}\nv_xor_b32 v{vAV}, 64, v{vAK}')
    if cfg.touch >= 2 and st.t3 and cfg.tg3:
        e.many(f'''
        s_lshl1_add_u32 s{sT0}, s{sRB}, s{sQH}
        s_lshl2_add_u32 s{sT0}, s{sT0}, s{sW}
        s_mul_i32 s{sT1}, s{sT0}, 49
        s_mul_i32 s{sT0}, s{sT0}, 25
        v_min_u32 v{t[3]}, 48, v{vL}
        v_add_u32 v{t[3]}, s{sT1}, v{t[3]}
        v_lshlrev_b32 v{vTch}, 8, v{t[3]}
        v_lshrrev_b32 v{t[4]}, 6, v{t[3]}
        v_mul_u32_u24 v{t[4]}, 147, v{t[4]}
        v_lshrrev_b32 v{t[4]}, 10, v{t[4]}
        v_mul_u32_u24 v{t[4]}, 448, v{t[4]}
        v_add_lshl_u32 v{vJ0}, v{t[4]}, v{t[3]}, 7
        v_min_u32 v{t[3]}, 24, v{vL}
        v_add_lshl_u32 v{vJ1}, v{t[3]}, s{sT0}, 7
        ''')
    elif cfg.touch >= 2 and min(int(x) for x in cfg.tg.split(',')) < 99: touch2_setup(e, R)
    return af

def touch2_setup(e, R):
    t = t_
    a, b, c, sh, n1, n2, u = 4, 5, sT0, sT1, sT2, sSo, sSoW
    def par(size, A, B, shv, n2v): return f's_mov_b32 s{sTC+2}, {size}\ns_movk_i32 s{a}, {A}\ns_movk_i32 s{b}, {B}\ns_movk_i32 s{sh}, {shv}\ns_movk_i32 s{n2}, {n2v}\n'
    ff = f'''s_lshl_b32 s{u}, s{sRB}, 1
    s_lshr_b32 s{c}, s{sW}, 1
    s_add_u32 s{u}, s{u}, s{c}
    s_mul_i32 s{c}, s{u}, {14*3584}
    s_and_b32 s{u}, s2, 3
    s_mul_i32 s{u}, s{u}, 7
    s_add_u32 s{u}, s{u}, 1
    s_lshr_b32 s{u}, s{u}, 1
    s_lshl_b32 s{u}, s{u}, 8
    s_add_u32 s{c}, s{c}, s{u}
    s_lshl_b32 s{u}, s{sGrp}, 6
    s_add_u32 s{c}, s{c}, s{u}
    s_and_b32 s{u}, s2, 1
    s_sub_u32 s{n1}, 3, s{u}
    s_bitcmp1_b32 s{sW}, 0
    s_cselect_b32 s{sTC}, s14, s12
    s_cselect_b32 s{sTC+1}, s15, s13
    ''' + par(448 * 3584, 3584, 256, 2, 13)
    lin = f'''s_lshl_b32 s{u}, s{sZi}, 2
    s_add_u32 s{u}, s{u}, s{sW}
    s_cmp_eq_u32 s{sGrp}, 1
    s_cselect_b32 s{n1}, 49, 13
    s_cselect_b32 s{sTC}, s16, s8
    s_cselect_b32 s{sTC+1}, s17, s9
    ''' + par(448 * 896, 0, 128, 6, 0) + f'''s_cselect_b32 s{sTC+2}, {1792*896}, s{sTC+2}
    s_mul_i32 s{c}, s{u}, s{n1}
    s_lshl_b32 s{c}, s{c}, 7
    s_sub_u32 s{n1}, s{n1}, 1
    '''
    if R == '3': e.many(lin)
    else: e.many(f's_bitcmp0_b32 s{sGrp}, 0\ns_cbranch_scc0 L_ts{R}\n' + ff + f's_branch L_tx{R}\nL_ts{R}:\n' + lin + f'L_tx{R}:')
    e.many(f'''
    v_lshrrev_b32 v{t[3]}, s{sh}, v{vL}
    v_bfe_u32 v{t[4]}, v{vL}, 0, s{sh}
    v_min_u32 v{t[3]}, s{n2}, v{t[3]}
    v_min_u32 v{t[4]}, s{n1}, v{t[4]}
    v_mul_u32_u24 v{vTch}, s{a}, v{t[3]}
    v_mad_u32_u24 v{vTch}, v{t[4]}, s{b}, v{vTch}
    v_add_u32 v{vTch}, s{c}, v{vTch}
    ''')

def common_post(st, cfg):
    R = '3' if st.t3 else '2'
    tg = [int(x) for x in cfg.tg.split(',')]
    dbg_ld = f'buffer_load_dword v{vDbg}, v{vT+23}, {srd(sDBG)}, 0 offen sc1'
    def post(e, ep):
        if ep == 0: stamp(e, cfg, 2)
        if ep == 1 and not st.t3:
            assert 'zero' not in e.vm
            e.many(f'''
            s_sub_u32 s{sT0}, s2, 128
            s_lshl_b32 s{sT1}, s{sW}, 8
            s_or_b32 s{sT0}, s{sT0}, s{sT1}
            s_cmp_lt_u32 s{sT0}, {NZ}
            s_cbranch_scc0 L_noflag
            s_lshl_b32 s{sT0}, s{sT0}, 2
            s_mov_b64 exec, 1
            ''')
            e.V(f'buffer_store_dword v{vONES}, off, {srd(sDBG)}, s{sT0} sc1', cond=True)
            e.I('s_mov_b64 exec, -1')
            e.label('L_noflag')
        if ep == cfg.zep:
            e.I(f'v_min_u32 v{vT+23}, {4 * NZ - 4}, v{vL4}'); e.V(dbg_ld, 'dbg')
        if ep == cfg.zep + 2:
            e.wait(vm=['dbg']); spin_check(e, cfg, 'z' + R, dbg_ld, vDbg); st.signalled.add('z')
        if cfg.touch >= 2:
            if st.t3 and cfg.tg3:
                for it in cfg.tg3.split(','):
                    if int(it[2:]) != ep: continue
                    ptr, size, reg, off = {'G': (12, 448 * 3584, vTch, 128), 'U': (14, 448 * 3584, vTch, 128), 'D': (16, 1792 * 896, vJ0, 57344), 'W': (8, 448 * 896, vJ1, 0)}[it[0]]
                    e.many(f's_mov_b64 s[{sTC}:{sTC+1}], s[{ptr}:{ptr+1}]\ns_mov_b32 s{sTC+2}, {size}\ns_mov_b32 s{sT0}, {off * (it[1] == "b")}')
                    e.V(f'buffer_load_dword v{vFv}, v{reg}, {srd(sTC)}, s{sT0} offen', 'tch')
            elif st.t3:
                if ep == tg[3]: e.V(f'buffer_load_dword v{vTch}, v{vTch}, {srd(sTC)}, 0 offen', 'tch')
            elif ep in tg:
                mask = sum(1 << g for g in range(4) if tg[g] == ep)
                e.I(f's_bitcmp1_b32 {mask}, s{sGrp}'); e.I(f's_cbranch_scc0 L_tch{ep}')
                e.V(f'buffer_load_dword v{vTch}, v{vTch}, {srd(sTC)}, 0 offen', cond=True)
                e.label(f'L_tch{ep}')
    return post

def late_common(t3):
    xs = f's_mul_i32 s{sT1}, s{sQH}, 72\ns_add_u32 s{sT1}, s{sT1}, 28\n' if t3 else f's_and_b32 s{sT1}, s{sC}, 1\ns_mul_i32 s{sT1}, s{sT1}, 35\ns_add_u32 s{sT1}, s{sT1}, s{sC}\n'
    pr = f's_add_u32 s{sT0}, s{sQH}, 14\n' if t3 else f's_mov_b32 s{sT0}, s{sC}\n'
    return f'''
    v_and_b32 v{vFl}, 124, v{vL4}
    s_mov_b32 s{sEPS}, {EPS:#x}
    s_mov_b32 s{sL2E}, {LOG2E:#x}
    s_lshr_b32 s{sT0}, s{sW}, 1
    s_lshl_b32 s{sT1}, s{sRB}, 1
    s_add_u32 s{sT0}, s{sT0}, s{sT1}
    s_mul_i32 s{sT0}, s{sT0}, 144
    {xs}s_add_u32 s{sT0}, s{sT0}, s{sT1}
    s_lshl_b32 s{sT0}, s{sT0}, 1
    s_and_b32 s{sT1}, s{sW}, 1
    s_add_u32 s{sT0}, s{sT0}, s{sT1}
    s_lshl_b32 s{sT0}, s{sT0}, 10
    v_add_u32 v{vHst}, s{sT0}, v{vL16}
    {pr}s_lshl_b32 s{sT1}, s{sRB}, 4
    s_add_u32 s{sT0}, s{sT0}, s{sT1}
    s_lshl_b32 s{sT0}, s{sT0}, 2
    s_add_u32 s{sT0}, s{sT0}, s{sW}
    s_lshl_b32 s{sT0}, s{sT0}, 7
    s_add_u32 s{sSigR}, s{sT0}, {FR_OFF}
    '''

def late_t2(af):
    t = t_
    early = f'''
    s_mul_i32 s{sT0}, s{sW}, {8*3584}
    s_lshl_b32 s{sT1}, s{sC}, 8
    s_add_u32 s{sT0}, s{sT0}, s{sT1}
    v_mul_u32_u24 v{t[3]}, 3584, v{t[0]}
    v_add3_u32 v{vD0}, v{t[3]}, v{t[2]}, s{sT0}
    v_xor_b32 v{vD1}, 32, v{vD0}
    ''' + srd_txt(sI0, 12, 448 * 3584) + f'''s_mov_b32 s{sI1+2}, {448*3584+1024}
    s_mov_b32 s{sI1+3}, 0x20000
    ''' + af
    pair = fF(lambda e: e.many(f's_sub_u32 s{sI1}, s14, 1024\ns_subb_u32 s{sI1+1}, s15, 0'), 2)
    rest = late_common(False) + f'''
    v_mov_b32 v{vFv}, 1
    s_xor_b32 s{sT0}, s{sQH}, 1
    s_mul_i32 s{sPhiB}, s{sT0}, 0x3f800000
    s_mul_i32 s{sT0}, s{sT0}, {EPS:#x}
    s_mul_i32 s{sT1}, s{sQH}, 0xff800000
    s_add_u32 s{sPhiC}, s{sT0}, s{sT1}
    s_lshl_b32 s{sT0}, s{sRB}, 2
    s_add_u32 s{sT0}, s{sT0}, s{sW}
    s_lshl_b32 s{sT0}, s{sT0}, 9
    s_mul_i32 s{sT1}, s{sC}, {8*CS}
    s_add_u32 s{sT0}, s{sT0}, s{sT1}
    s_add_u32 s{sT0}, s{sT0}, {P_OFF}
    v_and_b32 v{t[3]}, 3, v{t[0]}
    v_mul_u32_u24 v{vPst}, {CS}, v{t[3]}
    v_lshl_add_u32 v{vPst}, v{t[6]}, 7, v{vPst}
    v_lshl_add_u32 v{vPst}, v{t[1]}, 4, v{vPst}
    v_add_u32 v{vPst}, s{sT0}, v{vPst}
    s_and_b32 s{sRT}, s2, 7
    s_lshl_b32 s{sRT}, s{sRT}, 2
    s_and_b32 s{sT1}, s{sCT}, 3
    s_add_u32 s{sRT}, s{sRT}, s{sT1}
    s_lshr_b32 s{sCT}, s{sCT}, 2
    ''' + srd_txt(sWD, 16, 1792 * 896) + srd_txt(sWO, 8, 448 * 896) + srd_txt(sOUT, 20, 2048 * 896) + f'''
    s_and_b32 s{sT1}, s{sW}, 1
    s_lshl_b32 s{sT1}, s{sT1}, 2
    s_lshr_b32 s{sT2}, s{sW}, 1
    s_add_u32 s{sT1}, s{sT1}, s{sT2}
    s_mul_i32 s{sT1}, s{sT1}, {32*896}
    s_mul_i32 s{sT2}, s{sW}, {112*896}
    s_sub_u32 s{sDW2}, s{sT2}, s{sT1}
    s_lshl_b32 s{sT0}, s{sCT}, 7
    s_add_u32 s{sT1}, s{sT1}, s{sT0}
    v_mul_u32_u24 v{t[3]}, 896, v{t[0]}
    v_add3_u32 v{vDW0}, v{t[3]}, v{t[2]}, s{sT1}
    v_add_u32 v{vDW1}, 6144, v{vDW0}
    s_lshl_b32 s{sT0}, s{sRT}, 2
    s_add_u32 s{sT0}, s{sT0}, s{sW}
    s_mul_i32 s{sT0}, s{sT0}, 72
    s_lshr_b32 s{sT1}, s{sW}, 1
    s_add_u32 s{sT0}, s{sT0}, s{sT1}
    s_lshl_b32 s{sT0}, s{sT0}, 10
    v_add_u32 v{vH0}, s{sT0}, v{vL16}
    v_xor_b32 v{vH1}, 1024, v{vH0}
    v_lshl_add_u32 v{t[3]}, v{t[6]}, 9, v{t[5]}
    s_and_b32 s{sT0}, s{sW}, 1
    s_lshl_b32 s{sT0}, s{sT0}, 6
    v_xor_b32 v{t[3]}, s{sT0}, v{t[3]}
    v_add_u32 v{vA2[0][0]}, s{sM2K}, v{t[3]}
    v_xor_b32 v{vA2[0][1]}, 64, v{vA2[0][0]}
    v_add_u32 v{vA2[1][0]}, 0x10000, v{vA2[0][0]}
    v_add_u32 v{vA2[1][1]}, 0x10000, v{vA2[0][1]}
    v_add_u32 v{vA2[2][0]}, 0x20000, v{vA2[0][0]}
    v_add_u32 v{vA2[2][1]}, 0x20000, v{vA2[0][1]}
    s_lshl_b32 s{sT1}, s{sRT}, 1
    s_lshr_b32 s{sT2}, s{sW}, 1
    s_add_u32 s{sT1}, s{sT1}, s{sT2}
    s_lshl_b32 s{sT1}, s{sT1}, 5
    v_add_u32 v{t[3]}, s{sT1}, v{t[8]}
    v_lshlrev_b32 v{vG0}, 2, v{t[3]}
    v_add_u32 v{vG0}, {G_OFF}, v{vG0}
    v_lshlrev_b32 v{vG1}, 7, v{t[6]}
    v_xor_b32 v{vG0}, v{vG1}, v{vG0}
    v_mul_u32_u24 v{vOut}, 896, v{t[3]}
    v_lshl_add_u32 v{vOut}, v{t[6]}, 4, v{vOut}
    s_lshl_b32 s{sT1}, s{sCT}, 7
    s_add_u32 s{sT1}, s{sT1}, s{sT0}
    v_add_u32 v{vOut}, s{sT1}, v{vOut}
    v_add_u32 v{vWr}, s{sM2K}, v{vL16}
    v_xor_b32 v{vRd[0]}, 2048, v{vWr}
    v_xor_b32 v{vRd[1]}, 4096, v{vWr}
    v_xor_b32 v{vRd[2]}, 6144, v{vWr}
    s_lshr_b32 s{sT0}, s{sRT}, 1
    s_lshl_b32 s{sT0}, s{sT0}, 13
    s_and_b32 s{sT1}, s{sRT}, 1
    s_lshl_b32 s{sT1}, s{sT1}, 8
    s_add_u32 s{sT0}, s{sT0}, s{sT1}
    s_add_u32 s{sPoll}, s{sT0}, {FR_OFF}
    v_and_b32 v{t[4]}, 1, v{vL}
    v_lshlrev_b32 v{t[4]}, 7, v{t[4]}
    v_lshrrev_b32 v{t[3]}, 1, v{vL}
    v_min_u32 v{t[3]}, 6, v{t[3]}
    v_lshl_add_u32 v{vPA}, v{t[3]}, 10, v{t[4]}
    s_and_b32 s{sT0}, s{sW}, 1
    s_lshl_b32 s{sT0}, s{sT0}, 9
    v_add_u32 v{vPA}, s{sT0}, v{vPA}
    v_and_b32 v{vPW}, 0xffffff7f, v{vPA}
    s_lshr_b32 s{sT0}, s{sW}, 1
    s_add_u32 s{sT0}, s{sT0}, 14
    s_lshl_b32 s{sT0}, s{sT0}, 9
    v_add_u32 v{vPO}, s{sT0}, v{t[4]}
    '''
    return [pair] + fT(early), fT(rest)

def phase2(e, st, cfg):
    ACC = aA
    if st.rd_part: st.preread(e)
    def reads(sq):
        if sq < st.rd_next: return
        while (sq, 1) in st.qw: assert st.w2(e), ('no LDS block for W2', sq)
        e.wait(vm=[('W', sq)])
        st.wread(e, sq)
        if sq < cfg.NPRE: st.rd_next = sq + 1
    def need_h(sq):
        while (sq, 1) in st.qh: assert st.h(e), ('H not allowed yet', sq)
    def mf(x, sq):
        acc = vr(ACC + 16 * x, 16)
        e.I(f'v_mfma_f32_32x32x16_bf16 {acc}, {sub(st.wreg(sq),4*(x&1),4)}, {ar(hreg(sq)+4*(x>>1))}, ' + ('0' if sq == 0 else acc))
    def scale(x): return [f'v_mul_f32 v{ACC+16*x+r}, v{ACC+16*x+r}, v{vG0 + (x >> 1)}' for r in range(16)]
    red = lambda x, q: ((x - 1) * 2 + (q >> 1)) * 8192 + (q & 1) * 1024
    reads(0)
    extra = list(range(29, 35)); hmax = 13
    for t in range(28):
        if cfg.fine: stamp(e, cfg, 16 + t)
        st.try_signal(e, 'B', 4, force=t >= cfg.sigB)
        if t == 14 - cfg.LHB - cfg.pollB: poll_issue(e, 'B')
        if t == 28 - cfg.LHO - cfg.pollO: poll_issue(e, 'O')
        if t == 14 - cfg.LHB:
            need_h(13)
            while st.w2(e): pass
            log(f'B check: W2 ops {70-len(st.qw)}')
            stamp(e, cfg, 6); poll_check(e, cfg, 'B'); stamp(e, cfg, 7)
            st.h_ok = hmax = 27
            assert cfg.burst // 2 <= t
            for _ in range(cfg.burst): st.h(e)
        if t == 28 - cfg.LHO:
            stamp(e, cfg, 8); poll_check(e, cfg, 'O'); stamp(e, cfg, 9); hmax = 35
            e.V(f'buffer_load_dword v{vG0}, v{vG0}, {srd(sWS)}, 0 offen sc1', 'g')
        if t >= 14 - cfg.LHB: st.h_ok = 35 if hmax == 35 else min(hmax, t + cfg.LH)
        assert st.h_ok < 14 or min(st.h_ok, 27) - 14 < t
        rd = [t + 1]
        if t >= 22: rd.append(extra.pop(0))
        need_h(t)
        e.wait(vm=[('H', t)], lg=[('w2', t)])
        k = cfg.opseq
        for i, x in enumerate((1, 2, 3, 0)):
            mf(x, t)
            st.try_signal(e, 'B', 4, age=cfg.ageB)
            if k > 0 and st.mem(e): k -= 1
            if k > 3 - i and st.mem(e): k -= 1
            if rd and i in (0, 2): reads(rd.pop(0))
            if i in (1, 2):
                st.preread(e)
                if i == 2 and st.rd_part: st.preread(e)
            if t == 27 and i == 1: e.wait(vm=['g']); e.I(f'v_mov_b32 v{vG1}, v{vG0}')
            if t == 27 and i == 2: e.I(f'v_permlane32_swap_b32 v{vG0}, v{vG1}')
    assert not extra and {'P', 'A', 'B'} <= st.signalled
    need_h(34)
    assert not st.qw and not st.qh
    stamp(e, cfg, 10)
    qs = []
    def q(i):
        if cfg.fine2: e.I(('s_memrealtime' if cfg.rt else 's_memtime') + f' s[{12+2*i}:{13+2*i}]'); qs.append(i)
    e.wait(vm=['g'], lg_all=True)
    for s in scale(1): e.I(s)
    order = (1, 2, 3, 0)
    wr_op = lambda px, q: e.D(f'ds_write_b128 v{vWr}, {vr(ACC+16*px+4*q)} offset:{red(px,q)}', ('rw', px))
    rd_op = lambda x, q: e.D(f'ds_read_b128 {vr(ACC+16*x+4*q)}, v{vRd[x-1]} offset:{red(x,q)}', ('rr', x))
    add = lambda d, a: [f'v_add_f32 v{ACC+16*d+r}, v{ACC+16*d+r}, v{ACC+16*a+r}' for r in range(16)]
    padd = lambda d, a: [f'v_pk_add_f32 {vr(ACC+16*d+r,2)}, {vr(ACC+16*d+r,2)}, {vr(ACC+16*a+r,2)}' for r in range(0, 16, 2)]
    for i, x in enumerate(order):
        side = scale(order[i + 1]) if i < 3 else add(1, 2)
        q(i)
        wj = (2, 3, 5, 6) if i < 3 else (2, 3, 4, 5)
        for j, sq in enumerate(range(28, 35)):
            e.wait(vm=[('H', sq)])
            mf(x, sq)
            if i >= 2 and j == 1:
                e.wait(lg=[('rw', i - 1)]); e.I('s_barrier')
                for qq in range(4): rd_op(i - 1, qq)
            if i >= 1 and j in wj: wr_op(i, wj.index(j))
            if i == 3 and j == 3: e.wait(lg=[('rr', 2)])
            n = ((3, 3, 3, 3, 2, 2, 0), (6, 6, 0, 0, 4, 0, 0), (6, 0, 2, 2, 4, 2, 0), (0, 0, 0, 4, 4, 4, 4))[i][j]
            for s in side[:n]: e.I(s)
            side = side[n:]
        assert not side
    q(4)
    e.wait(lg=[('rw', 3)]); e.I('s_barrier')
    q(5)
    for qq in range(4): rd_op(3, qq)
    for s in padd(0, 1): e.I(s)
    e.wait(lg=[('rr', 3)])
    for s in padd(0, 3): e.I(s)
    q(6)
    O = aK
    for i in range(8): e.I(f'v_cvt_pk_bf16_f32 v{O+i}, v{ACC+2*i}, v{ACC+2*i+1}')
    for b in (0, 4):
        e.I(f'v_permlane32_swap_b32 v{O+b}, v{O+b+2}'); e.I(f'v_permlane32_swap_b32 v{O+b+1}, v{O+b+3}')
    e.V(f'buffer_store_dwordx4 {vr(O)}, v{vOut}, {srd(sOUT)}, 0 offen {cfg.out_flag}', 'out')
    e.V(f'buffer_store_dwordx4 {vr(O+4)}, v{vOut}, {srd(sOUT)}, 0 offen offset:32 {cfg.out_flag}', 'out')
    stamp(e, cfg, 11)
    for i in qs: e.I(f'v_writelane_b32 v35, s{12+2*i}, {16+i}')
    if cfg.stamps: e.wait(vm_all=True); stamp(e, cfg, 12)

def role_t2(e, cfg):
    st = St(cfg, False)
    af = first_loads(e, st, cfg, 6)
    early, late = late_t2(af)
    for _ in range(cfg.pre):
        if early or late: (early or late).pop(0)[1](e)
    for _ in range(cfg.n1b): assert st.mem(e)
    stamp(e, cfg, 1)
    cpost = common_post(st, cfg)
    def post(e, ep):
        cpost(e, ep)
        st.try_signal(e, 'P', 4, force=ep >= cfg.sigP)
        st.try_signal(e, 'A', 4, force=ep >= cfg.sigA)
    st.post_barrier = post
    S = steps('K', (0, 1)) + steps(0, (0, 1, 2, 3)) + steps(1, (0, 1, 2, 3))
    TM = cfg.TM; S[len(S) - 4 * TM:] = [(1, ks, t) for t in range(4) for ks in range(28 - TM, 28)]
    for n in range(cfg.LA): issue_read(e, st, S, n)
    nl = len(late); late = early + late
    run_steps(e, st, S, 0, 24, late, cfg.fillK)
    assert len(late) <= nl
    run_steps(e, st, S, 24, 56, late, cfg.fillK)
    log(f'end of pass K: fillers left {len(late)}')
    run_valu(e, st, late)
    stamp(e, cfg, 13)
    st.qw = [(sq, p) for sq in range(35) for p in range(2)]
    st.qh = [(sq, p) for sq in range(35) for p in range(2)]
    run_steps(e, st, S, 56, 58)
    fill = p_fill(st)
    run_steps(e, st, S, 58, 170, fill, cfg.fillA)
    assert not fill
    log(f'end of pass A: W2 ops {70-len(st.qw)} pool {len(st.pool.free)} preread {st.rd_next}')
    stamp(e, cfg, 3)
    fill = sum((f_fill(st, aA + 16 * i, i, 0) for i in range(4)), [])
    def hook(n):
        if n == len(S) - cfg.nA - cfg.dA: poll_issue(e, 'A')
        if n == len(S) - cfg.nA: poll_check(e, cfg, 'A'); st.a_ok = True
    n0 = len(S) - 3 * TM + 2
    run_steps(e, st, S, 170, n0, fill, cfg.fillB, hook)
    assert not fill
    for i in range(3):
        fill += f_fill(st, aB + 16 * i, i, 1)
        run_steps(e, st, S, n0 + i * TM, min(n0 + (i + 1) * TM, len(S)), fill, cfg.fillT, hook)
    log(f'end of pass B: W2 ops {70-len(st.qw)} H ops {70-len(st.qh)} pool {len(st.pool.free)} preread {st.rd_next} fillers {len(fill)}')
    stamp(e, cfg, 4)
    e.I('s_barrier'); st.on_epoch(21)
    assert st.a_ok and 'A' in st.signalled
    st.h_ok = 13
    for _ in range(cfg.nB): st.mem(e)
    run_valu(e, st, fill + f_fill(st, aB + 48, 3, 1))
    stamp(e, cfg, 5)
    phase2(e, st, cfg)
    stamp_out(e, cfg)
    e.I('s_endpgm')

def role_t3(e, cfg):
    st = St(cfg, True); st.rd_next = 99
    first_loads(e, st, cfg, 8)
    t = t_
    P = aA
    G, G1, Z, vPk, vPv, vPp, vKp, vSw, vSr, vKw = 60, 61, 62, 63, 84, 85, 86, 87, 88, 89
    ON = 92
    sKV, sGo, sKo, sXm, sRowM = sWD, sWD + 1, sWD + 2, sWD + 3, sWO
    vL8 = 90
    GW, SCR, XCH = JB, JB + 8192, JB + 24576
    setup = fT(late_common(True) + srd_txt(sGW, 18, 896) + f'''
    v_lshlrev_b32 v{vAG}, 4, v{t[6]}
    v_add_u32 v{vAG}, {GW}, v{vAG}
    s_and_b32 s{sT0}, s{sRB}, 1
    s_xor_b32 s{sT0}, s{sT0}, 1
    s_mul_i32 s{sT0}, s{sT0}, 28
    s_lshl_b32 s{sPadM}, 15, s{sT0}
    s_mov_b32 s{sPadM+1}, s{sPadM}
    s_mov_b32 s{sHiM}, 0
    s_mov_b32 s{sHiM+1}, -1
    v_mov_b32 v{Z}, 0
    v_mov_b32 v{ON}, v{vONES}
    v_mov_b32 v{ON+1}, v{vONES}
    v_mov_b32 v{ON+2}, v{vONES}
    v_mov_b32 v{ON+3}, v{vONES}
    s_lshl_b32 s{sT2}, s{sQH}, 2
    s_add_u32 s{sT2}, s{sT2}, s{sW}
    s_lshl_b32 s{sT0}, s{sT2}, 12
    s_mul_i32 s{sT1}, s{sRB}, 28
    s_and_b32 s{sT1}, s{sT1}, -8
    v_add_u32 v{t[3]}, s{sT1}, v{t[8]}
    v_lshrrev_b32 v{t[3]}, 3, v{t[3]}
    v_mul_u32_u24 v{vPk}, {CS}, v{t[3]}
    v_lshl_add_u32 v{vPk}, v{t[6]}, 7, v{vPk}
    v_lshl_add_u32 v{vPk}, v{t[1]}, 4, v{vPk}
    s_add_u32 s{sT0}, s{sT0}, {P_OFF}
    v_add_u32 v{vPk}, s{sT0}, v{vPk}
    v_add_u32 v{vPv}, {56*CS}, v{vPk}
    v_bfe_u32 v{t[3]}, v{vL}, 2, 1
    v_mul_u32_u24 v{t[3]}, 31, v{t[3]}
    v_add_u32 v{t[3]}, s{sT1}, v{t[3]}
    v_lshrrev_b32 v{t[3]}, 6, v{t[3]}
    v_bfe_u32 v{t[4]}, v{vL}, 3, 1
    v_mad_u32_u24 v{t[3]}, v{t[4]}, 7, v{t[3]}
    v_lshl_add_u32 v{t[3]}, v{t[7]}, 4, v{t[3]}
    v_and_b32 v{t[4]}, {0 if 'P' in cfg.sigwg else 3}, v{vL}
    v_lshl_add_u32 v{t[3]}, v{t[3]}, 2, v{t[4]}
    v_lshlrev_b32 v{vPp}, 7, v{t[3]}
    s_lshl_b32 s{sPoll}, s{sT2}, 14
    s_lshr_b32 s{sKV}, s{sPoll}, 1
    s_add_u32 s{sKV}, s{sKV}, {KV_OFF}
    s_add_u32 s{sPoll}, s{sPoll}, {FR_OFF}
    v_and_b32 v{vKp}, 15, v{vL}
    v_lshlrev_b32 v{vKp}, 7, v{vKp}
    s_lshl_b32 s{sT0}, s{sT2}, 11
    s_add_u32 s{sT0}, s{sT0}, {FK_OFF}
    v_add_u32 v{vKp}, s{sT0}, v{vKp}
    s_lshl_b32 s{sT0}, s{sRB}, 1
    s_add_u32 s{sT0}, s{sT0}, s{sQH}
    s_lshl_b32 s{sT0}, s{sT0}, 2
    s_add_u32 s{sT0}, s{sT0}, s{sW}
    s_lshl_b32 s{sKo}, s{sT0}, 9
    s_add_u32 s{sKo}, s{sKo}, {KV_OFF}
    s_lshl_b32 s{sT0}, s{sT0}, 7
    s_add_u32 s{sSoW}, s{sT0}, {FK_OFF}
    v_add_u32 v{vSw}, s{sM4K}, v{vL16}
    v_add_u32 v{vSw}, {SCR}, v{vSw}
    v_add_u32 v{vKw}, {XCH}, v{vL16}
    v_and_b32 v{t[3]}, 1, v{vL}
    v_lshrrev_b32 v{t[4]}, 1, v{vL}
    v_lshlrev_b32 v{t[4]}, 4, v{t[4]}
    v_lshl_add_u32 v{vSr}, v{t[3]}, 10, v{t[4]}
    s_lshr_b32 s{sT0}, s{sW}, 1
    s_lshl_b32 s{sT0}, s{sT0}, 11
    s_and_b32 s{sT1}, s{sW}, 1
    s_lshl_b32 s{sT1}, s{sT1}, 9
    s_add_u32 s{sT0}, s{sT0}, s{sT1}
    s_add_u32 s{sT0}, s{sT0}, {SCR}
    v_add_u32 v{vSr}, s{sT0}, v{vSr}
    v_lshlrev_b32 v{vL8}, 3, v{vL}
    s_and_b32 s{sT0}, s{sRB}, 1
    s_xor_b32 s{sT0}, s{sT0}, 1
    s_mul_i32 s{sT0}, s{sT0}, 7
    s_lshl_b32 s{sT1}, s{sW}, 1
    v_add_u32 v{t[3]}, s{sT1}, v{t[3]}
    v_cmp_eq_u32_e64 s[{sRowM}:{sRowM+1}], s{sT0}, v{t[3]}
    s_lshl_b32 s{sXm}, s{sW}, 13
    s_add_u32 s{sXm}, s{sXm}, {XCH}
    s_lshl_b32 s{sGo}, s{sRB}, 2
    s_add_u32 s{sGo}, s{sGo}, s{sW}
    s_lshl_b32 s{sGo}, s{sGo}, 7
    s_add_u32 s{sGo}, s{sGo}, {G_OFF}
    ''')
    for _ in range(cfg.pre3):
        if setup: setup.pop(0)[1](e)
    for _ in range(cfg.n1b): assert st.mem(e)
    stamp(e, cfg, 1)
    def q_fill(acc, tl):
        L = phi_fill(acc, 16, vT)
        for i in range(8): L.append(fI(f'v_cvt_pk_bf16_f32 v{P+8*tl+i}, v{acc+2*i}, v{acc+2*i+1}'))
        return L
    pload = f'buffer_load_dword v{vPoll}, v{vPp}, {srd(sWS)}, s{sPoll} offen sc1'
    kload = f'buffer_load_dword v{vPoll}, v{vKp}, {srd(sWS)}, 0 offen sc1'
    preg = lambda u, b: 112 + 8 * u + 4 * b if u < 14 else 8 * (u - 14) + 4 * b
    pq = [(u, b) for u in range(16) for b in range(2)]
    state = {'ok': -1}
    def p_op(e):
        if not pq or pq[0][0] > state['ok']: return False
        u, b = pq.pop(0)
        e.V(f'buffer_load_dwordx4 {ar(preg(u, b))}, v{vPv if b else vPk}, {srd(sWS)}, 0 offen offset:{u*256} sc1', ('P', u))
        return True
    st.h = p_op
    cpost = common_post(st, cfg)
    def post(e, ep):
        cpost(e, ep)
        if ep == 4:
            assert not setup
            while st.m0: st.mem(e)
            e.I(f's_mov_b32 m0, {GW}')
            if cfg.rot: e.many(f'v_add_u32 v{t[3]}, s{sRot}, v{vL16}\nv_subrev_u32 v{t[4]}, 896, v{t[3]}\nv_min_u32 v{t[3]}, v{t[3]}, v{t[4]}')
            e.V(f'buffer_load_dwordx4 v{t[3] if cfg.rot else vL16}, {srd(sGW)}, 0 offen lds', ('ep', 7))
    st.post_barrier = post
    S = steps(0, (0, 1, 2, 3)) + steps(1, (0, 1, 2, 'g'))
    for n in range(cfg.LA): issue_read(e, st, S, n)
    run_steps(e, st, S, 0, 114, setup, cfg.fill3)
    stamp(e, cfg, 3)
    fill = sum((q_fill(aA + 16 * tl, tl) for tl in range(4)), [])
    def kv_step(fl):
        u = state['u']; state['u'] += 1
        while (u, 1) in pq: p_op(e)
        e.wait(vm=[('P', u)])
        for b in range(2):
            acc = vr(aK + 16 * b, 16)
            e.I(f'v_mfma_f32_32x32x16_bf16 {acc}, {ar(preg(u,0))}, ' + (vr(ON) if b else ar(preg(u, 1))) + ', ' + ('0' if u == 0 else acc))
            gap(e, st, fill, fl, None, 0, cfg.dgap2)
    def hook(n):
        if n == 112 + cfg.nP: e.V(pload, 'pp')
        if n == 112 + cfg.nP + cfg.dP:
            assert 'z' in st.signalled
            stamp(e, cfg, 5); e.wait(vm=['pp']); spin_check(e, cfg, 'P', pload, vPoll); stamp(e, cfg, 6)
            state['ok'] = 15
            for _ in range(cfg.pburst): p_op(e)
        u = state['u']
        if u < 16 and n % cfg.kvr == cfg.kvr - 1 and (u, 1) not in pq and (not pq or 2 * u + 2 + cfg.kvage <= 32 - len(pq)): kv_step(cfg.fill3b)
    state['u'] = 0
    run_steps(e, st, S, 114, len(S), fill, cfg.fill3b, hook)
    log(f'T3 left-over fillers {len(fill)}, P loads left {len(pq)}, KV steps done {state["u"]}')
    stamp(e, cfg, 4)
    fs = lambda i: stamp(e, cfg, 16 + i) if cfg.fine else None
    lg = aB + 48
    q4 = q_fill(aB, 4)
    gops = [f'v_mul_f32 v{G}, 0xbfb8aa3b, v{lg}', f'v_exp_f32 v{G}, v{G}', f'v_add_f32 v{G}, 1.0, v{G}', f'v_rcp_f32 v{G}, v{G}', f'v_sub_f32 v{G1}, 1.0, v{G}']
    for i, g in enumerate(gops): q4.insert(12 + 3 * i, fI(g))
    fill += q4 + q_fill(aB + 16, 5) + q_fill(aB + 32, 6)
    def some(k):
        nonlocal fill
        run_valu(e, st, fill[:k]); del fill[:k]
    assert state['ok'] == 15
    while pq and 32 - len(pq) < 2 * state['u'] + cfg.kvage: p_op(e)
    cfg2 = copy.copy(cfg); cfg2.gap3 = 20; st.cfg = cfg2
    while state['u'] < 16: kv_step(cfg.t3c if pq else 36)
    fs(0)
    some(10)
    for q in range(4):
        for r in range(4 * q, 4 * q + 4): e.I(f'v_cndmask_b32_e64 v{aK+r}, v{aK+r}, v{aV+r}, s[{sPadM}:{sPadM+1}]')
        e.D(f'ds_write_b128 v{vSw}, {vr(aK+4*q)} offset:{q*1024}', 'scw')
    some(12)
    e.wait(lg=['scw']); e.I('s_barrier')
    for p in range(4): e.D(f'ds_read_b128 {vr(aV+4*p)}, v{vSr} offset:{p*4096}', 'scr')
    some(12)
    e.wait(lg=['scr'])
    for a, b in ((0, 4), (8, 12), (0, 8)):
        for r in (0, 2): e.I(f'v_pk_add_f32 {vr(aV+a+r,2)}, {vr(aV+a+r,2)}, {vr(aV+b+r,2)}')
    for i in range(2): e.I(f'v_cvt_pk_bf16_f32 v{aV+4+i}, v{aV+2*i}, v{aV+2*i+1}')
    for i in range(2): e.I(f'v_cndmask_b32_e64 v{aV+4+i}, v{aV+4+i}, v{Z}, s[{sRowM}:{sRowM+1}]')
    st.pub(e, f'buffer_store_dwordx2 {vr(aV+4,2)}, v{vL8}, {srd(sWS)}, s{sKo} offen sc1', 'K')
    fs(1)
    some(cfg.t3k)
    st.try_signal(e, 'K', 1, force=True)
    log(f'T3 fillers left at signal K: {len(fill)}')
    run_valu(e, st, fill)
    st.pub(e, f'buffer_store_dword v{G1}, v{vFl}, {srd(sWS)}, s{sGo} offen sc1', 'O')
    fs(2)
    e.V(kload, 'pk'); e.wait(vm=['pk']); spin_check(e, cfg, 'K', kload, vPoll)
    fs(3)
    KF = 0
    for i in range(2):
        e.I(f's_add_u32 m0, s{sXm}, {i * 4096}'); e.I(f's_add_u32 s{sSo}, s{sKV}, {i * 4096}')
        for q in range(4):
            e.V(f'buffer_load_dwordx4 v{vL16}, {srd(sWS)}, s{sSo} offen offset:{q*1024} sc1 lds', 'kvl')
    e.wait(vm=['kvl']); e.I('s_barrier')
    def kf_read(jj):
        for q in range(4): e.D(f'ds_read_b128 {ar(KF+16*jj+4*q)}, v{vKw} offset:{(4*jj+q)*1024}', ('kf', jj))
    for jj in range(4): kf_read(jj)
    N = [aB, aB + 16, aB + 32, aB + 48]
    def num(jj):
        u0 = (7 * jj) // 2; n = N[jj % 4]
        e.wait(lg=[('kf', jj)])
        return [f'v_mfma_f32_32x32x16_bf16 {vr(n,16)}, {ar(KF+16*jj+4*q)}, {vr(P+2*u0+4*(q&1))}, ' + (vr(n,16) if q else '0') for q in range(4)]
    def factor(jj):
        n = N[jj % 4]; odd = jj & 1; D = vT + 4 * (jj & 1)
        dr = n + (0 if odd else 12)
        d = D if odd else D + 1
        return [f'v_add_f32 v{D}, s{sEPS}, v{dr}', f'v_add_f32 v{D+1}, s{sEPS}, v{dr}', None, None,
                f'v_permlane32_swap_b32 v{D}, v{D+1}', None, f'v_rcp_f32 v{D+2}, v{d}', None,
                f'v_mul_f32 v{D}, v{D+2}, v{G}']
    for k, s in enumerate(num(0)):
        e.I(s); kf_read(4 + k)
    mq = num(1)
    e.I(mq.pop(0)); e.I(mq.pop(0))
    for s in factor(0):
        if s: e.I(s)
    pend = []
    for jj in range(8):
        n = N[jj % 4]; odd = jj & 1; D = vT + 4 * (jj & 1)
        fs(4 + jj)
        if jj + 2 < 8: mq += num(jj + 2)
        nxt = factor(jj + 1) if jj + 1 < 8 else []
        O = P + 2 * ((7 * jj) // 2); dst = [64 + i if odd and i < 2 else O + i for i in range(8)]
        body = [f'v_mul_f32 v{n+r}, v{n+r}, v{D}' for r in range(16)]
        body += [f'v_cvt_pk_bf16_f32 v{dst[i]}, v{n+2*i}, v{n+2*i+1}' for i in range(8)]
        if odd: body += [f'v_cndmask_b32_e64 v{O+i}, v{O+i}, v{64+i}, s[{sHiM}:{sHiM+1}]' for i in range(2)]
        for k, s in enumerate(body):
            if k in (0, 3, 11, 18):
                if mq and (k < 11 or jj + 2 < 8): e.I(mq.pop(0))
                if pend: pend.pop(0)()
            e.I(s)
            if nxt and k >= 14:
                s2 = nxt.pop(0)
                if s2: e.I(s2)
        assert not nxt and not pend
        def o_store(m):
            e.I(f's_mov_b32 s{sSo}, {(m // 7) * 73728 + (m % 7) * 2048}')
            st.pub(e, f'buffer_store_dwordx4 {vr(P+4*m)}, v{vHst}, {srd(sWS)}, s{sSo} offen {cfg.st_flag}', 'O')
        done = ((7 * jj) // 2 + 3 + odd) // 2
        pend = [lambda m=m: o_store(m) for m in range(state.get('m', 0), done)]; state['m'] = done
    for f in pend: f()
    assert not mq
    stamp(e, cfg, 7)
    st.try_signal(e, 'O', 15, force=True)
    stamp(e, cfg, 8)
    stamp_out(e, cfg)

def gen_all(cfg, code_bytes):
    OOL.clear(); WG[0] = cfg.sigwg
    assert FR_OFF % 512 == 0
    e = Em()
    if cfg.stamps:
        e.I('v_mov_b32 v35, 0'); stamp(e, cfg, 0)
        if cfg.rt: e.many('s_memtime s[100:101]\ns_waitcnt lgkmcnt(0)\nv_writelane_b32 v35, s100, 14')
    entry(e, cfg, code_bytes)
    e3 = e.fork()
    role_t2(e, cfg)
    e3.label('L_t3')
    role_t3(e3, cfg)
    e3.label('L_end')
    e3.I('s_endpgm')
    log(f'nops T2 {e.nops} T3 {e3.nops}')
    return e.text() + e3.text() + ''.join(OOL)

KD = '''.amdhsa_kernel {k}
  .amdhsa_next_free_vgpr 512
  .amdhsa_next_free_sgpr 102
  .amdhsa_accum_offset 256
  .amdhsa_group_segment_fixed_size 0
  .amdhsa_kernarg_size 88
  .amdhsa_user_sgpr_count 2
  .amdhsa_user_sgpr_kernarg_segment_ptr 1
  .amdhsa_system_sgpr_workgroup_id_x 1
  .amdhsa_float_denorm_mode_32 3
.end_amdhsa_kernel
'''
def build(cfg):
    k = NAME + '_kernel'
    body = gen_all(cfg, f'L_code_end-{k}-64')
    if cfg.skip:
        L = body.split('\n')
        if 'm' in cfg.skip: L = [l for l in L if not l.startswith((' v_mfma', ' ds_'))]
        if 'v' in cfg.skip: L = [l for l in L if not (l.startswith(' buffer_') and 'v35' not in l)]
        if 'p' in cfg.skip: L = [l for l in L if not l.startswith(' s_cbranch_scc0 L_spin')]
        if 's' in cfg.skip: L = [l for l in L if not (l.startswith((' buffer_store', ' buffer_atomic')) and 'v35' not in l)]
        if 'x' in cfg.skip or 'y' in cfg.skip:
            out = []; pend = None; cnt = 0; n = 0; par = {}; fresh = set(); t3 = False
            for l in L:
                if l.startswith('L_t3'): t3 = True
                m = re.match(r' v_mfma_f32_32x32x16_bf16 v\[(\d+):\d+\], (\S+), (\S+), (\S+)$', l)
                if pend and (m or cnt >= 2 or l.startswith((' s_barrier', 'L_', ' s_cbranch', ' s_waitcnt vm'))): out.append(pend); pend = None
                if m and not t3: n += 1
                if m and not t3 and (n <= 280 or 'y' in cfg.skip):
                    a = int(m.group(1))
                    if m.group(4) == '0': fresh |= {a, a + 8}
                    par[a] = par.get(a, 0) ^ 8; b = a + par[a]
                    z = b in fresh; fresh.discard(b)
                    f = lambda r: f' v_mfma_f32_16x16x32_bf16 v[{r}:{r+3}], {m.group(2)}, {m.group(3)}, ' + ('0' if z else f'v[{r}:{r+3}]')
                    out.append(f(b)); pend = f(b + 4); cnt = 0
                else:
                    out.append(l); cnt += 2 if l.startswith(' ds_read') else 1
            L = out
        body = '\n'.join(L)
    o = f'; {NAME}: generated by gen/gen5.py\n'
    o += f'; @launch grid=(256,1,1) block=(256,1,1) lds={LDS_BYTES}\n'
    o += '.amdgcn_target "amdgcn-amd-amdhsa--gfx950"\n.text\n'
    o += f'.globl {k}\n.p2align 8\n.type {k},@function\n{k}:\n{body}L_code_end:\n s_endpgm\n'
    o += '.section .rodata,"a"\n.p2align 6\n' + KD.format(k=k)
    return o

if __name__ == '__main__':
    cfg = Cfg(); out = None
    for a in sys.argv[1:]:
        if '=' in a:
            k, v = a.split('=', 1); cur = getattr(cfg, k)
            setattr(cfg, k, (v == '1') if isinstance(cur, bool) else type(cur)(v))
        else: out = a
    open(out or f'cdna_kernels/{NAME}.s', 'w').write(build(cfg))
```

```python
import re, copy

_REG = re.compile(r'^(-|abs\()?([vas])(?:\[(\d+):(\d+)\]|(\d+))\)?$')
TRANS = ('v_exp_f32', 'v_log_f32', 'v_rcp_f32', 'v_rsq_f32', 'v_sqrt_f32', 'v_sin_f32', 'v_cos_f32')

def regs_of(op):
    op = op.strip()
    if op in ('vcc', 'exec', 'm0', 'scc'):
        return {op}
    if op in ('vcc_lo', 'vcc_hi'): return {'vcc'}
    if op in ('exec_lo', 'exec_hi'): return {'exec'}
    m = _REG.match(op)
    if not m: return set()
    k = m.group(2)
    if m.group(5) is not None: return {k + m.group(5)}
    return {k + str(i) for i in range(int(m.group(3)), int(m.group(4)) + 1)}

class Ins:
    __slots__ = ('text', 'op', 'cls', 'w', 'r', 'a', 'b', 'c', 'passes', 'states', 'wide')
    def __init__(self, text):
        self.text = text
        t = text.split(';')[0].strip()
        parts = t.split(None, 1)
        op = self.op = parts[0]
        rest = parts[1] if len(parts) > 1 else ''
        ops = [o.strip() for o in rest.split(',')] if rest else []
        mods = ''
        if ops:
            l = ops[-1].split(None, 1)
            ops[-1] = l[0]; mods = l[1] if len(l) > 1 else ''
        ops = [o.split(None, 1)[0] if o else o for o in ops]
        R = [regs_of(o) for o in ops]
        allr = set().union(*R) if R else set()
        self.w = set(); self.r = set(); self.a = self.b = self.c = set(); self.passes = 0; self.states = 1; self.wide = False
        if op.startswith('v_mfma'):
            self.cls = 'mfma'; self.w = R[0]; self.a, self.b, self.c = R[1], R[2], R[3]
            self.r = R[1] | R[2] | R[3]
            self.passes = 8 if '32x32' in op else 4
        elif op.startswith('v_'):
            self.cls = 'valu'
            self.w = set(R[0]); self.r = set().union(*R[1:]) if len(R) > 1 else set()
            if op.startswith('v_permlane'): self.w = set(allr); self.r = set(allr)
            if op.startswith('v_fmac') or op.startswith('v_pk_fmac'): self.r |= R[0]
            if op.startswith('v_cndmask') and len(R) == 3: self.r |= {'vcc'}
            if op.startswith('v_cmpx'): self.w |= {'exec'}
        elif op.startswith('ds_'):
            self.cls = 'ds'
            if op.startswith('ds_read') or 'permute' in op or 'swizzle' in op:
                self.w = R[0]; self.r = set().union(*R[1:])
            else:
                self.r = allr
        elif op.startswith('buffer_') or op.startswith('global_'):
            self.cls = 'vmem'
            lds = ' lds' in (' ' + text.split(';')[0])
            if 'load' in op and not lds:
                self.w = R[0]; self.r = set().union(*R[1:])
            else:
                self.r = set(allr)
                if lds: self.r |= {'m0'}
                if 'atomic' in op and 'sc0' in mods: self.w = R[0]
                if 'store' in op and ('x4' in op or 'x3' in op):
                    self.wide = True; self.a = R[0] if op.startswith('buffer_') else R[1]
        elif op == 's_nop':
            self.cls = 'nop'; self.states = int(ops[0], 0) + 1
        elif op.startswith('s_'):
            self.cls = 'salu'
            if op.startswith(('s_cmp', 's_cmpk', 's_waitcnt', 's_barrier', 's_branch', 's_cbranch', 's_sleep', 's_setprio', 's_endpgm', 's_bitcmp')):
                self.r = allr
            else:
                self.w = set(R[0]) if R else set(); self.r = set().union(*R[1:]) if len(R) > 1 else set()
                if 'saveexec' in op: self.w |= {'exec'}
        else:
            raise ValueError('unknown instruction ' + text)

def need(p, c):
    n = 0
    isv = lambda s: {x for x in s if x[0] in 'va' and x != 'vcc'}
    iss = lambda s: {x for x in s if x[0] == 's' or x == 'vcc'}
    if p.cls == 'valu':
        pw = isv(p.w); ps = iss(p.w)
        if c.cls == 'mfma' and pw & c.r: n = max(n, 2)
        if c.cls == 'valu':
            if c.op.startswith('v_permlane') and pw & c.r: n = max(n, 2)
            if c.op.startswith(('v_readfirstlane', 'v_readlane')) and pw & c.r: n = max(n, 1)
            if 'dpp' in c.text or 'row_' in c.text or 'quad_perm' in c.text:
                if pw & c.r: n = max(n, 2)
            if p.op.startswith(TRANS) and pw & c.r: n = max(n, 1)
            if ps & c.r: n = max(n, 4 if c.op.startswith(('v_readlane', 'v_writelane')) else 2)
        if p.op.startswith(TRANS) and c.cls in ('vmem', 'ds') and pw & c.r: n = max(n, 1)
        if c.cls == 'vmem' and ps & c.r: n = max(n, 5)
        if c.cls == 'salu' and ps & c.r: n = max(n, 1)
        if 'exec' in p.w and c.cls == 'mfma': n = max(n, 4)
    elif p.cls == 'mfma':
        big = p.passes == 8
        if c.cls == 'mfma':
            if p.w & (c.a | c.b): n = max(n, 12 if big else 8)
            if p.w & c.c:
                if not (p.w == c.c and p.passes == c.passes): n = max(n, 10 if big else 6)
            elif p.w & c.w: n = max(n, 10 if big else 6) if p.w != c.w else n
        elif c.cls in ('valu', 'vmem', 'ds'):
            if p.w & (c.r | c.w): n = max(n, 12 if big else 8)
            if c.cls == 'valu' and p.c & c.w: n = max(n, 7 if big else 3)
    elif p.cls == 'salu':
        if 'm0' in p.w and 'm0' in c.r: n = max(n, 1)
    elif p.cls == 'vmem':
        if p.wide and p.a & c.w: n = max(n, 2)
    return n

class Em:
    def __init__(self):
        self.out = []; self.hist = []; self.vm = []; self.lg = []; self.nops = 0; self.n_mfma = 0
        self.n_vm = 0; self.prev_valu = False; self.clk = 0; self.last_mfma = -99; self.last_vm = -999
    def fork(self):
        e = Em(); e.hist = list(self.hist); e.vm = list(self.vm); e.lg = list(self.lg)
        e.clk = self.clk; e.last_mfma = self.last_mfma; e.last_vm = self.last_vm; return e
    def raw(self, s): self.out.append(s)
    def label(self, name): self.out.append(name + ':')
    def pad_needed(self, ins):
        d = 0; worst = 0
        for p in reversed(self.hist):
            worst = max(worst, need(p, ins) - d)
            d += p.states
            if d > 20: break
        return worst
    def I(self, text):
        ins = Ins(text)
        k = self.pad_needed(ins)
        if (k == 1 and len(self.hist) >= 2 and self.hist[-1].w == {'m0'} and 'm0' in ins.r
                and self.hist[-2].cls in ('mfma', 'valu', 'ds') and not (self.hist[-2].w & self.hist[-1].r)
                and self.out[-1] == ' ' + self.hist[-1].text and self.out[-2] == ' ' + self.hist[-2].text):
            self.out[-1], self.out[-2] = self.out[-2], self.out[-1]
            self.hist[-1], self.hist[-2] = self.hist[-2], self.hist[-1]
            k = self.pad_needed(ins)
        if k > 0:
            self.nops += k
            nop = Ins(f's_nop {k-1}'); self.out.append(' ' + nop.text); self.hist.append(nop)
        self.out.append(' ' + text); self.hist.append(ins)
        if len(self.hist) > 40: del self.hist[:-24]
        self.clk += 4 * max(k, 0)
        if ins.cls in ('ds', 'vmem') and self.prev_valu: self.clk += 8
        if ins.cls in ('valu', 'mfma', 'ds', 'vmem'): self.prev_valu = ins.cls == 'valu'
        if ins.cls == 'mfma':
            self.n_mfma += 1
            self.clk = max(self.clk, self.last_mfma + 4 * ins.passes); self.last_mfma = self.clk; self.clk += 8
        elif ins.op.startswith(TRANS) or ins.op.startswith('v_pk_'): self.clk += 8
        elif ins.op == 's_barrier': self.clk += 24
        elif ins.op.startswith('ds_write_b128'): self.clk += 16
        else: self.clk += 4 * ins.states
        if ins.cls == 'vmem': self.last_vm = self.clk
        return ins
    def many(self, block):
        for l in block.strip().split('\n'):
            l = l.strip()
            if not l or l.startswith(';'): continue
            if l.endswith(':'): self.label(l[:-1])
            else: self.I(l)
    def V(self, text, tag=None, cond=False):
        ins = self.I(text)
        if cond: ins.states = 0
        else: self.vm.append(tag); self.n_vm += 1
    def skippable(self, text):
        self.I(text).states = 0
    def D(self, text, tag=None):
        self.I(text); self.lg.append(tag)
    def _cnt(self, q, tags, cap):
        idx = -1
        for i, t in enumerate(q):
            if t in tags: idx = i
        if idx < 0: return None
        n = len(q) - 1 - idx
        n = min(n, cap)
        del q[:len(q) - n]
        return n
    def wait(self, vm=(), lg=(), vm_all=False, lg_all=False):
        a = b = None
        if vm_all: a = 0; self.vm = []
        elif vm: a = self._cnt(self.vm, set(vm), 62)
        if lg_all: b = 0; self.lg = []
        elif lg: b = self._cnt(self.lg, set(lg), 14)
        s = []
        if a is not None: s.append(f'vmcnt({a})')
        if b is not None: s.append(f'lgkmcnt({b})')
        if s: self.I('s_waitcnt ' + ' '.join(s))
    def text(self): return '\n'.join(self.out) + '\n'
```

```python
import sys, copy, re
from emit import Em

NAME = 'gated_mix__linear_attn_block__glu_gated_reglu__prompt'
H_BYTES = 32 * 4 * 36 * 2048
P_OFF = H_BYTES
CS = 32768 + 512
KV_OFF = P_OFF + 112 * CS
G_OFF = KV_OFF + 32 * 2048
FR_OFF = G_OFF + 8192
FK_OFF = FR_OFF + 131072
WS_USED = FK_OFF + 16384
NZ = 36
C_OF_LC = [0, 3, 4, 7, 10, 11, 12, 2, 6, 9, 13, 1, 5, 8]
LC_TAB = sum(lc << (4 * c) for lc, c in enumerate(C_OF_LC)); C_TAB = sum(c << (4 * lc) for lc, c in enumerate(C_OF_LC))
STAMP_OFF = 16 << 20
LOG2E = 0x3fb8aa3b
EPS = 0x358637bd
LDS_BYTES = 160 * 1024

class Cfg:
    LA = 5; WP = 2; LK = 2
    gap = 50; dgap = 20; dgap2 = 44; sgap = 20
    fillK = 48; fillA = 200; fillB = 38; fill3 = 38
    st_flag = 'sc1'; out_flag = ''
    tlb = False; rot = False; rot2 = False; hcap = 99; touch = 2; tg = '2,5,10,1'; tg3 = ''
    zep = 5; stP = ''; stA = ''; stB = ''; noA = False; noAp = 10; fake2 = False; LAK = 3; WPK = 2; LKK = 3; tw3 = 7; rc2 = ''; rc3 = ''; wflush = True; pairst = True; fakeout = 0; tb = 1; wj = '2345'; tbj = 0; opseqO = 3; early = 16; t3p = 200; t3q = 110; nK = 0; vskip = False; cutK = 130; vgapP = 64; LKP = 3; n10 = 0; zfl = 1; n1a = 0; n1b = 6; pre = 0; pre3 = 0
    sigP = 12; sigA = 18; nA = 8; dA = 16; TM = 8; fillT = 36; nB = 2; ageB = 4; ageP = 3; ageA = 9; nP = 24; dP = 14
    vgap = 999; opseq = 4
    LH = 5; LHB = 2; LHO = 5; pollB = 4; pollO = 4; sigB = 2; burst = 8
    pre_age = 10; NPRE = 18; wstart = 8
    pP = 10; t3c = 60; t3k = 70; pburst = 7; kvr = 1; kvage = 8; gap3 = 60; fill3b = 33
    sigwg = 'PAB'; psleep = 2; spin = 100000
    stamps = False; rt = False; fine = False; fine2 = False; skip = ''

sX, sQKV, sI0, sI1, sWS, sDBG, sWD, sWO, sOUT, sGW, sCODE = [28 + 4 * i for i in range(11)]
sW, sRB, sC, sRT, sCT, sQH, sGrp, sZi = range(72, 80)
sM1K, sM2K, sM4K, sSoF, sSoJ, sT0, sT1, sT2, sSo, sEPS, sL2E, sPhiC = range(80, 92)
sPadM, sHiM = 92, 96
sPhiB, sPoll = 98, 99
sRot, sLC = 94, 95
sStg = 96
sRC = sX
sSoH, sSigR, sSoW, sDW2 = 26, 27, 10, 11
sU0, sU1, sU2 = 0, 1, 3
sTC = sCODE
def srd(b): return f's[{b}:{b+3}]'

vL, vL16, vL4, vD0, vD1, vJ0, vJ1, vHst, vPst, vAK, vAV, vONES, vDbg, vAG, vFv, vTch = range(1, 17)
vAX = [17, 18, 19, 20]
vAF = [[21 + 4 * w + t for t in range(4)] for w in range(3)]
vFl = 33
vT = 36
vDW0, vDW1, vH0, vH1, vG0, vG1, vOut, vWr, vPoll = range(60, 69)
vA2 = [[69, 70], [71, 72], [73, 74]]
vRd = [75, 76, 77]
vPA, vPO = 78, 79
vDX = [80, 81, 82, 83]
vPW = 84
aK, aV, aA, aB = 96, 112, 128, 192
aFR = 224
XB, JB, FB = 0, 48 * 1024, 104 * 1024
def hreg(sq): return 8 * sq if sq < 28 else 8 * (sq - 28)
def vr(b, n=4): return f'v[{b}:{b+n-1}]'
def ar(b, n=4): return f'a[{b}:{b+n-1}]'
def sub(r, o, n):
    k = r[0]; lo = int(r[2:r.index(':')]); return f'{k}[{lo+o}:{lo+o+n-1}]'
def srd_txt(b, lo, size): return f's_mov_b32 s{b}, s{lo}\ns_mov_b32 s{b+1}, s{lo+1}\ns_mov_b32 s{b+2}, {size}\ns_mov_b32 s{b+3}, 0x20000\n'
def log(*a): print('  ', *a, file=sys.stderr)

def stamp(e, cfg, i):
    if cfg.stamps:
        e.wait(lg_all=True)
        e.I(('s_memrealtime' if cfg.rt else 's_memtime') + ' s[100:101]'); e.I('s_waitcnt lgkmcnt(0)')
        e.I(f'v_writelane_b32 v35, s100, {i}')
def stamp_out(e, cfg):
    if not cfg.stamps: return
    if cfg.rt:
        e.many(f'''
        s_memtime s[100:101]
        v_readlane_b32 s{sT0}, v35, 14
        s_waitcnt lgkmcnt(0)
        s_sub_u32 s{sT0}, s100, s{sT0}
        s_lshr_b32 s{sT0}, s{sT0}, 4
        v_writelane_b32 v35, s{sT0}, 14
        s_memrealtime s[100:101]
        v_readlane_b32 s{sT0}, v35, 0
        s_waitcnt lgkmcnt(0)
        s_sub_u32 s{sT0}, s100, s{sT0}
        v_writelane_b32 v35, s{sT0}, 15
        ''')
    e.many(f's_lshl_b32 s{sT0}, s2, 2\ns_add_u32 s{sT0}, s{sT0}, s{sW}\ns_lshl_b32 s{sT0}, s{sT0}, 8\ns_add_u32 s{sT0}, s{sT0}, {STAMP_OFF}')
    e.V(f'buffer_store_dword v35, v{vL4}, {srd(sWS)}, s{sT0} offen', 'st')

class Pool:
    def __init__(self): self.free = []
    def add(self, addr): assert addr not in self.free; self.free.append(addr)
    def take(self, keep=0):
        if len(self.free) <= keep: return None
        return self.free.pop(0)

class St:
    def __init__(self, cfg, t3):
        self.cfg = cfg; self.t3 = t3
        self.pool = Pool(); self.wpool = Pool()
        for i in range(7): self.pool.add(FB + 8192 * i)
        self.fblk = {}; self.w2blk = {}
        q = []
        for s in range(7):
            q += [('x', s, j) for j in range(4)]
            if t3: q += [('f', 0, p, i) for p in (2 * s, 2 * s + 1) for i in (0, 1)]
            else: q += [('j', s, 0), ('j', s, 1)]
        for ps in ((1,) if t3 else (0, 1)):
            for p in range(14): q += [('f', ps, p, 0), ('f', ps, p, 1)]
        self.q = q; self.qw = []; self.qh = []
        self.e0 = {'K': 0, 0: 0 if t3 else 7, 1: 7 if t3 else 14}
        self.xpass = 0 if t3 else 'K'
        self.epoch = -1; self.h_ok = -1; self.a_ok = False
        self.cnt = {}; self.signalled = set(); self.x_issued = -1
        self.rd_done = []; self.rd_next = 0; self.rd_part = 0
        self.m0 = None
        self.pre_barrier = self.post_barrier = None
        self.stags = []; self.so_h = -1
    def tick(self, e):
        for s in list(self.stags): s.tick(e)
    def arm(self, e, *a):
        s = Stag(self, *a); self.stags.append(s); s.tick(e)
    def ep_of(self, ps, ks):
        if ps == 1 and not self.t3: ks = min(ks, 28 - self.cfg.TM)
        return self.e0[ps] + ks // 4
    def dep(self, d): return d[1] if d[0] in 'xj' else self.ep_of(d[1], 2 * d[2])
    def free_epoch(self, ps, pair):
        if ps == 1 and not self.t3 and 2 * pair >= 26 - self.cfg.TM: return 21
        return self.ep_of(ps, 2 * pair) + (2 if pair & 1 else 1)
    def demand(self, e):
        if not self.q or self.m0 == 'w': return False
        cfg = self.cfg; d = self.q[0]; tag = ('ep', self.dep(d))
        if self.m0 is None and self.dep(d) > max(self.epoch, 0) + cfg.LK: return False
        if d[0] == 'x':
            _, s, j = d
            if j == 0:
                if s >= 3 and (self.x_issued < 4 * s - 9 or ('x', 4 * s - 9) in e.lg): return False
                e.I(f's_add_u32 m0, s{sM4K}, {XB + (s % 3) * 16384}')
                if cfg.rot: e.many(f's_addk_i32 s{sSoH}, 128\ns_cmpk_eq_u32 s{sSoH}, 896\ns_cselect_b32 s{sSoH}, 0, s{sSoH}')
                elif s: e.I(f's_movk_i32 s{sSoH}, {s * 128}')
            e.V(f'buffer_load_dwordx4 v{vDX[j]}, {srd(sX)}, ' + (f's{sSoH}' if s else '0') + f' offen offset:{j * 1024} lds', tag)
            self.m0 = 'd' if j < 3 else None
        elif d[0] == 'j':
            _, s, j = d
            if j == 0:
                e.I(f's_add_u32 m0, s{sM2K}, {JB + s * 8192}')
                if cfg.rot: e.I(f's_mul_i32 s{sSoJ}, s{sSoH}, 1344')
                elif s: e.I(f's_mov_b32 s{sSoJ}, {s * 64 * 2688}')
            e.V(f'buffer_load_dwordx4 v{vJ0 + j}, {srd(sQKV)}, ' + (f's{sSoJ}' if s or cfg.rot else '0') + f' offen offset:{j * 1024} lds', tag)
            self.m0 = 'd' if j < 1 else None
        else:
            _, ps, p, img = d
            stride = 2688 if self.t3 else 3584
            so = p * 32 * stride + ps * (256 if self.t3 else 128)
            if img == 0:
                a = self.pool.take()
                if a is None: return False
                self.fblk[(ps, p)] = a
                e.I(f's_add_u32 m0, s{sM2K}, {a}')
                if cfg.rot:
                    po = so - p * 32 * stride
                    if p == 0:
                        e.I(f's_mul_i32 s{sSoF}, s{sRot}, {stride // 2}')
                        if po: e.I(f's_addk_i32 s{sSoF}, {po}')
                    else:
                        e.I(f's_add_u32 s{sSoF}, s{sSoF}, {32 * stride}')
                        if p % 2 == 0: e.many(f's_cmp_eq_u32 s{sSoF}, {448 * stride + po}\ns_cselect_b32 s{sSoF}, {po}, s{sSoF}')
                elif so: e.I(f's_mov_b32 s{sSoF}, {so}')
            e.V(f'buffer_load_dwordx4 v{vD0 + img}, {srd(sI0 + 4 * img)}, ' + (f's{sSoF}' if so or cfg.rot else '0') + f' offen offset:{img * 1024} lds', tag)
            self.m0 = 'd' if img < 1 else None
        self.q.pop(0)
        return True
    def w2(self, e):
        if not self.qw or self.epoch < self.cfg.wstart or self.m0 == 'd': return False
        sq, part = self.qw[0]
        if sq < 28:
            p, s2 = divmod(sq, 14); row = 256 * (s2 >> 1) + 16 * (s2 & 1) + 64 * p; sr = sWD
        else:
            row = 16 * (sq - 28); sr = sWO
        if part == 0:
            for s2 in [x for x in self.rd_done if ('w2', x) not in e.lg]:
                self.rd_done.remove(s2); self.wpool.add(self.w2blk[s2])
            left = sum(1 for d in self.q if d[0] == 'f' and d[3] == 0)
            a = self.wpool.take()
            if a is None: a = self.pool.take(keep=min(left, 2))
            if a is None: return False
            self.w2blk[sq] = a
            if sq == 28:
                e.I(f'v_add_u32 v{vDW0}, s{sDW2}, v{vDW0}'); e.I(f'v_add_u32 v{vDW1}, s{sDW2}, v{vDW1}')
            e.I(f's_add_u32 m0, s{sM2K}, {a}')
            if self.cfg.rot2: self.rot_step(e, sSoW, sq, 256 * 896, 16 * 896, 64 * 896, 16 * 896, 0)
            else: e.I(f's_mov_b32 s{sSoW}, {row * 896}')
        e.V(f'buffer_load_dwordx4 v{vDW0 + part}, {srd(sr)}, s{sSoW} offen offset:{part * 1024} lds', ('W', sq))
        self.m0 = 'w' if part == 0 else None
        self.qw.pop(0)
        return True
    def rot_step(self, e, r, sq, pair, odd, part, step, base3):
        if sq >= 28: unit, base, first, inc = step, base3, sq == 28, step
        else:
            unit, base, first, inc = pair, part * (sq // 14), sq % 14 == 0, pair - odd
            if sq & 1: e.I(f's_add_u32 s{r}, s{r}, {odd}'); return
        if first:
            e.I(f's_mul_i32 s{r}, s{sCT}, {unit}')
            if base: e.I(f's_add_u32 s{r}, s{r}, {base}')
        else: e.many(f's_add_u32 s{r}, s{r}, {inc}\ns_cmp_eq_u32 s{r}, {7 * unit + base}\ns_cselect_b32 s{r}, {base}, s{r}')
    def wreg(self, sq):
        if 14 <= sq < self.cfg.NPRE: return vr(aK + 8 * (sq - 14), 8)
        return ar(112 + 8 * sq, 8) if sq < 14 else (ar(aFR + 8 * (sq % 4), 8) if sq < 28 else vr(aB + 8 * (sq - 28), 8))
    def wread(self, e, sq, parts=(0, 1)):
        a = self.w2blk[sq]; f = self.wreg(sq)
        for n in parts:
            for j in range(2):
                e.D(f'ds_read_b64_tr_b16 {sub(f,4*n+2*j,2)}, v{vA2[a >> 16][n]} offset:{(a & 0xffff) + j * 1024}', ('w2', sq))
        if 1 in parts: self.rd_done.append(sq)
    def preread(self, e):
        sq = self.rd_next
        if sq >= self.cfg.NPRE or sq not in self.w2blk or (sq, 1) in self.qw: return False
        assert sq < 14 or 'P' in self.signalled
        if ('W', sq) in e.vm:
            if len(e.vm) - 1 - max(i for i, t in enumerate(e.vm) if t == ('W', sq)) < self.cfg.pre_age: return False
            e.wait(vm=[('W', sq)])
        self.wread(e, sq, (self.rd_part,))
        self.rd_part ^= 1
        if self.rd_part == 0: self.rd_next += 1
        return True
    def h(self, e):
        if not self.qh or self.qh[0][0] > self.h_ok: return False
        sq, b = self.qh.pop(0)
        off = (sq & 1) * 2048
        if self.cfg.rot2:
            if sq >= 28: off = 0
            if b == 0 and not off: self.rot_step(e, sSoH, sq, 4096, 0, 28672, 2048, 57344)
        elif self.so_h != sq // 2: e.I(f's_mov_b32 s{sSoH}, {(sq & ~1) * 2048}'); self.so_h = sq // 2
        e.V(f'buffer_load_dwordx4 {ar(hreg(sq)+4*b)}, v{vH0+b}, {srd(sWS)}, s{sSoH} offen offset:{off} sc1', ('H', sq) if sq < 28 else ('H', sq, b))
        return True
    def mem(self, e):
        if self.demand(e): return True
        wn = self.qw[0][0] if self.qw else 99; hn = self.qh[0][0] if self.qh else 99
        order = (self.w2, self.h) if wn <= hn + 1 or self.m0 == 'w' else (self.h, self.w2)
        return order[0](e) or order[1](e)
    def on_epoch(self, ep):
        self.epoch = ep
        for (ps, p), a in self.fblk.items():
            if self.free_epoch(ps, p) == ep: self.pool.add(a)
        if self.t3: return
        if 6 <= ep <= 8:
            a = XB + ((ep - 2) % 3) * 16384; self.pool.add(a); self.pool.add(a + 8192)
        if 2 <= ep <= 8: self.pool.add(JB + 8192 * (ep - 2))
    def pub(self, e, text, tag):
        e.V(text, tag); self.cnt[tag] = self.cnt.get(tag, 0) + 1
    def try_signal(self, e, tag, n, force=False, age=None):
        if tag in self.signalled or self.cnt.get(tag, 0) < n: return
        if age is not None and tag in e.vm and len(e.vm) - 1 - max(i for i, t in enumerate(e.vm) if t == tag) >= age: force = True
        if force: e.wait(vm=[tag])
        if tag in e.vm: return
        assert 'z' in self.signalled
        if tag in self.cfg.sigwg:
            e.I('s_barrier'); e.I(f's_cmp_eq_u32 s{sW}, 0'); e.I(f's_cbranch_scc0 L_sig{tag}')
            e.V(f'buffer_store_dword v{ {"P": vFv, "A": vDbg}.get(tag, vONES)}, v{vFl}, {srd(sWS)}, s{sSigR} offen sc1', cond=True)
            e.label(f'L_sig{tag}')
            if tag == 'P': e.I(f'v_mov_b32 v{vDbg}, 2')
        elif tag == 'P': e.V(f'buffer_store_dword v{vFv}, v{vFl}, {srd(sWS)}, s{sSigR} offen sc1', 'sig'); e.I(f'v_mov_b32 v{vDbg}, 2')
        elif tag == 'A': e.V(f'buffer_store_dword v{vDbg}, v{vFl}, {srd(sWS)}, s{sSigR} offen sc1', 'sig')
        else: e.V(f'buffer_store_dword v{vONES}, v{vFl}, {srd(sWS)}, s{sSoW if tag == "K" else sSigR} offen sc1', 'sig')
        if self.cfg.fine2 and tag in 'PAB': stamp(e, self.cfg, 44 + 'PAB'.index(tag))
        self.signalled.add(tag)
        log(f'signal {tag} at epoch {self.epoch} mfma {e.n_mfma}')

class Stag:
    uid = 0
    def __init__(self, st, tag, lines, dm, ds, ng):
        self.st, self.tag, self.lines, self.dm, self.ds, self.ng = st, tag, lines, dm, ds, ng
        self.m = 0; self.at = {}; Stag.uid += 1; self.u = Stag.uid
    def sel(self, e, g, lab):
        if self.ng == 2: e.I(f's_bitcmp{g}_b32 s{sRB}, 0')
        else: e.I(f's_cmp_eq_u32 s{sStg}, {g}')
        e.I(f's_cbranch_scc0 {lab}')
    def tick(self, e):
        c0, l0 = e.clk, e.last_vm
        self.tick_(e)
        e.clk = min(e.clk, c0 + 16); e.last_vm = l0
    def tick_(self, e):
        st = self.st
        for g in range(self.ng):
            if self.tag and self.m == g * self.dm + self.ds:
                assert 'z' in st.signalled
                lab = f'L_sg{self.u}_{g}'; self.sel(e, g, lab)
                for l in (f's_waitcnt vmcnt({min(e.n_vm - self.at[g], 62)})', 's_barrier', f's_cmp_eq_u32 s{sW}, 0', f's_cbranch_scc0 {lab}'): e.skippable(l)
                e.V(f'buffer_store_dword v{ {"P": vFv, "A": vDbg}.get(self.tag, vONES)}, v{vFl}, {srd(sWS)}, s{sSigR} offen sc1', cond=True)
                e.label(lab)
                if g == self.ng - 1:
                    if self.tag == 'P': e.I(f'v_mov_b32 v{vDbg}, 2')
                    st.signalled.add(self.tag); log(f'signal {self.tag} (last group) at epoch {st.epoch} mfma {e.n_mfma}')
            if self.m == g * self.dm:
                lab = f'L_st{self.u}_{g}'; self.sel(e, g, lab)
                for l in self.lines:
                    if l.startswith('buffer_'): e.V(l, cond=True)
                    else: e.skippable(l)
                e.label(lab); self.at[g] = e.n_vm
        self.m += 1
        if self.m > (self.ng - 1) * self.dm + (self.ds if self.tag else 0): st.stags.remove(self)

def steps(ps, tiles): return [(ps, ks, t) for ks in range(28) for t in tiles]

def issue_read(e, st, S, n):
    cfg = st.cfg
    ps, ks, t = S[n]
    ep = st.ep_of(ps, ks)
    if ep != st.epoch:
        while st.q and st.dep(st.q[0]) <= ep: assert st.mem(e), ('DMA cannot be issued in time', st.q[0], ep)
        if st.pre_barrier: st.pre_barrier(e, ep)
        e.wait(vm=[('ep', ep)])
        e.I('s_barrier')
        st.on_epoch(ep); st.n_ep = n
        if cfg.fine and ep > 0: stamp(e, cfg, 43 + ep)
        if st.post_barrier: st.post_barrier(e, ep)
    if ps == st.xpass and n - st.n_ep < 4:
        q = n - st.n_ep
        e.D(f'ds_read_b128 {ar(4*(4*ep+q))}, v{vAX[q]} offset:{XB + (ep % 3) * 16384}', ('x', 4 * ep + q)); st.x_issued = 4 * ep + q
    fr = aFR + 4 * (n % 8)
    if t == 'g':
        e.D(f'ds_read_b128 {ar(fr)}, v{vAG} offset:{ks * 32}', ('w', n)); return
    if ps == 'K': reg = vAK + t; off = ks * 2048
    else:
        a = st.fblk[(ps, ks // 2)]
        reg = vAF[a >> 16][t]; off = (a & 0xffff) + (ks & 1) * 4096
    if cfg.fake2 and not st.t3 and n >= 16:
        if ps == 'K' and n - st.n_ep >= 4: e.D(f'ds_read_b128 {vr(aB)}, v{vAX[n & 3]} offset:{XB + (ep % 3) * 16384}', None)
        h = (n >> 3) & 1
        e.D(f'ds_read_b64_tr_b16 {ar(fr+2*h,2)}, v{reg} offset:{off+512*h}', ('w', n)); return
    e.D(f'ds_read_b64_tr_b16 {ar(fr,2)}, v{reg} offset:{off}', ('w', n))
    e.D(f'ds_read_b64_tr_b16 {ar(fr+2,2)}, v{reg} offset:{off+512}', ('w', n))

def issue_mfma(e, st, S, n):
    ps, ks, t = S[n]
    fr = ar(aFR + 4 * (n % 8)); x = ar(4 * ks)
    e.wait(lg=[('w', n), ('w', n | (st.cfg.WP - 1)), ('x', ks)])
    if ps == 'K':
        acc = vr(aK + 16 * t, 16); a, b = x, fr
    else:
        acc = vr((aA, aB)[ps] + 16 * (3 if t == 'g' else t), 16); a, b = fr, x
    e.I(f'v_mfma_f32_32x32x16_bf16 {acc}, {a}, {b}, ' + ('0' if ks == 0 else acc))

def gap(e, st, fillers, fill, reads=None, tail=0, dg=None):
    cfg = st.cfg; t0 = e.last_mfma
    def gates():
        while fillers and fillers[0][0] == 'g' and fillers[0][1](): fillers.pop(0)
    gates()
    st.tick(e)
    if not st.t3:
        st.try_signal(e, 'P', 4, age=cfg.ageP); st.try_signal(e, 'A', 4, age=cfg.ageA)
    idle = e.clk - e.last_vm; did = False
    if fillers and fillers[0][0] == 'm' and idle >= cfg.sgap: fillers.pop(0)[1](e); did = True
    elif idle >= dg and st.demand(e): did = True
    elif idle >= (cfg.gap3 if st.t3 else cfg.gap) and st.mem(e): did = True
    if reads: reads()
    gates(); k = 0
    while fillers and fillers[0][0] == 'd' and (k == 0 or e.clk - t0 + tail + 4 * fillers[0][2] <= fill):
        fillers.pop(0)[1](e); k += 1
    if not did and not k: st.preread(e)
    while fillers and fillers[0][0] == 'i' and e.clk - t0 + tail + 4 * fillers[0][2] <= fill:
        fillers.pop(0)[1](e)

def run_steps(e, st, S, lo, hi, fillers=None, fill=0, hook=None):
    cfg = st.cfg
    for n in range(lo, hi):
        issue_mfma(e, st, S, n)
        rd = (lambda: issue_read(e, st, S, n + cfg.LA)) if n + cfg.LA < len(S) else None
        gap(e, st, fillers, fill, rd, 4 if (n + 1) % cfg.WP == 0 else 0, cfg.dgap if st.epoch < 6 else cfg.dgap2)
        if hook: hook(n)
        if st.a_ok and S[n][0] == 1: st.h_ok = min(min(S[n][1], 28 - cfg.TM) // 2 - 1, cfg.hcap)

def run_valu(e, st, fillers):
    for f in fillers:
        if f[0] == 'g': assert f[1](); continue
        f[1](e)
        if e.clk - e.last_vm >= st.cfg.vgap: st.mem(e)
    fillers.clear()

def fI(text, cost=1): return ('i', lambda e: e.I(text), cost)
def fF(fn, cost=1): return ('i', fn, cost)
def fM(fn): return ('m', fn, 3)
def fD(fn, cost=1): return ('d', fn, cost)
def fT(txt):
    for a, b in ((sT0, sU0), (sT1, sU1), (sT2, sU2)): txt = re.sub(rf'\bs{a}\b', f's{b}', txt)
    return [fI(l.strip()) for l in txt.strip().split('\n') if l.strip()]

def phi_fill(acc, n, tmp, generic=False):
    L = []
    for r0 in range(0, n, 4):
        for i in range(4): L.append(fI(f'v_mul_f32 v{tmp+i}, s{sL2E}, v{acc+r0+i}'))
        for i in range(4):
            L.append(fI(f'v_exp_f32_e64 v{tmp+i}, v{tmp+i} clamp', 2))
            L.append(fI(f'v_max_f32 v{acc+r0+i}, s{sPhiC if generic else sEPS}, v{acc+r0+i}'))
        for i in range(4):
            L.append(fI(f'v_fmac_f32 v{acc+r0+i}, s{sPhiB}, v{tmp+i}' if generic else f'v_add_f32 v{acc+r0+i}, v{acc+r0+i}, v{tmp+i}'))
    return L

def p_fill(st):
    L = []
    for t in range(2):
        for j in range(2):
            acc = aK + 16 * t + 8 * j; pk = vT + 4 + 4 * j + (8 * t if st.cfg.stP else 0)
            if st.cfg.vskip:
                for h in range(2):
                    def blk(e, a=acc + 4 * h):
                        e.I(f's_cmp_ge_u32 s{sLC}, 7'); e.I(f's_cbranch_scc1 L_vs{a}')
                        for f in phi_fill(a, 4, vT): f[1](e); e.hist[-1].states = 0
                        e.label(f'L_vs{a}')
                    L.append(fF(blk, 22))
            else: L += phi_fill(acc, 8, vT, True)
            L += [fI(f'v_cvt_pk_bf16_f32 v{pk+i}, v{acc+2*i}, v{acc+2*i+1}') for i in range(4)]
            def st_(e, t=t, j=j, pk=pk):
                if t and not j: e.I(f's_mov_b32 s{sSo}, {4 * CS}')
                st.pub(e, f'buffer_store_dwordx4 {vr(pk)}, v{vPst}, {srd(sWS)}, ' + (f's{sSo}' if t else '0') + f' offen offset:{j*256} {st.cfg.st_flag}', 'P')
            if not st.cfg.stP: L.append(fM(st_))
    if st.cfg.stP:
        lines = [f's_mov_b32 s{sSo}, {4 * CS}'] + [f'buffer_store_dwordx4 {vr(vT+4+4*j+8*t)}, v{vPst}, {srd(sWS)}, ' + (f's{sSo}' if t else '0') + f' offen offset:{j*256} sc1' for t in range(2) for j in range(2)]
        L.append(fM(lambda e: st.arm(e, 'P', lines, *map(int, st.cfg.stP.split(',')))))
    return L

def h_lines(acc0, tiles, ps):
    L = []
    for i in tiles:
        if i % 2 == 0 or i == tiles[0]: L.append(f's_mov_b32 s{sSo}, {(i >> 1) * 147456 + ps * 28672}')
        L.append(f'buffer_store_dwordx4 {vr(acc0+16*i+8)}, v{vHst}, {srd(sWS)}, s{sSo} offen offset:{(i & 1) * 2048} sc1')
    return L

def f_fill(st, acc, i, ps):
    L = []
    for r in range(8): L.append(fI(f'v_max_f32 v{acc+r}, 0, v{acc+r}'))
    for r in range(8): L.append(fI(f'v_mul_f32 v{acc+r}, v{acc+r}, v{acc+8+r}'))
    for r in range(4): L.append(fI(f'v_cvt_pk_bf16_f32 v{acc+8+r}, v{acc+2*r}, v{acc+2*r+1}'))
    sg = (st.cfg.stA, st.cfg.stB)[ps]
    if sg:
        a = list(map(int, sg.split(','))); split = len(a) > 3 and a[3]
        if split and i == split - 1: L.append(fM(lambda e: st.arm(e, '', h_lines(acc - 16 * i, list(range(split)), ps), a[4], 0, a[2])))
        if i == 3: L.append(fM(lambda e: st.arm(e, 'AB'[ps], h_lines(acc - 48, list(range(split or 0, 4)), ps), *a[:3])))
        return L
    if i % 2 == 0: L.append(fI(f's_mov_b32 s{sSo}, {(i >> 1) * 147456 + ps * 28672}'))
    L.append(fM(lambda e: st.pub(e, f'buffer_store_dwordx4 {vr(acc+8)}, v{vHst}, {srd(sWS)}, s{sSo} offen offset:{(i & 1) * 2048} {st.cfg.st_flag}', 'AB'[ps])))
    return L

OOL = []
def spin_check(e, cfg, name, load, reg, above=0):
    test = f'v_cmp_lt_u32 vcc, {above}, v{reg}'
    e.I(test); e.I('s_cmp_eq_u64 vcc, -1'); e.I(f's_cbranch_scc0 L_spin_{name}')
    e.label(f'L_ok_{name}')
    OOL.append(f'L_spin_{name}:\n s_mov_b32 s{sT0}, 0\nL_spin2_{name}:\n s_sleep {cfg.psleep}\n {load}\n'
               f' s_add_u32 s{sT0}, s{sT0}, 1\n s_waitcnt vmcnt(0)\n {test}\n s_nop 1\n s_cmp_eq_u64 vcc, -1\n'
               f' s_cbranch_scc1 L_ok_{name}\n s_cmp_lt_u32 s{sT0}, {cfg.spin}\n s_cbranch_scc1 L_spin2_{name}\n s_branch L_ok_{name}\n')
WG = ['']
def poll_txt(kind): return f'buffer_load_dword v{vPoll}, v{vPO if kind == "O" else vPW if kind in WG[0] else vPA}, {srd(sWS)}, s{sT2 if kind in WG[0] else sPoll} offen sc1'
def poll_issue(e, kind):
    if kind in WG[0]: e.I(f's_andn2_b32 s{sT2}, s{sPoll}, 256')
    e.V(poll_txt(kind), ('poll', kind))
def poll_check(e, cfg, kind):
    e.wait(vm=[('poll', kind)])
    spin_check(e, cfg, kind, poll_txt(kind), vPoll, above={'A': 1, 'B': 2}.get(kind, 0))

t_ = [vT + 12 + i for i in range(10)]
def entry(e, cfg, code_bytes):
    t = t_
    rot = f'''s_lshl1_add_u32 s{sT1}, s{sGrp}, s{sT1}
    s_and_b32 s{sT0}, s2, 3
    s_add_u32 s{sT1}, s{sT1}, s{sT0}
    s_mul_i32 s{sT0}, s{sT1}, 37
    s_lshr_b32 s{sT0}, s{sT0}, 8
    s_mul_i32 s{sT0}, s{sT0}, 7
    s_sub_u32 s{sT1}, s{sT1}, s{sT0}
    s_lshl_b32 s{sRot}, s{sT1}, 7
    s_mov_b32 s{sSoH}, s{sRot}''' if cfg.rot else ''
    e.many(f'''
    s_cmp_ge_u32 s2, 256
    s_cbranch_scc1 L_end
    s_load_dwordx16 s[4:19], s[0:1], 0
    s_load_dwordx4 s[20:23], s[0:1], 64
    s_load_dwordx2 s[24:25], s[0:1], 80
    s_getpc_b64 s[{sCODE}:{sCODE+1}]
    s_mov_b32 s{sCODE+2}, {code_bytes}
    s_mov_b32 s{sCODE+3}, 0x20000
    s_lshr_b32 s{sCT}, s2, 3
    s_mul_i32 s3, s{sCT}, 9
    v_min_u32 v{vT}, 8, v0
    v_add_lshl_u32 v{vT}, v{vT}, s3, 7
    ''')
    e.V(f'buffer_load_dword v{vT+1}, v{vT}, {srd(sCODE)}, 0 offen', 'code')
    e.many(f'''
    v_lshrrev_b32 v{t[3]}, 6, v0
    v_and_b32 v{vL}, 63, v0
    v_readfirstlane_b32 s{sW}, v{t[3]}
    v_lshrrev_b32 v{t[0]}, 3, v{vL}
    v_and_b32 v{t[1]}, 7, v0
    s_and_b32 s{sT1}, s{sCT}, 7
    s_lshr_b32 s{sGrp}, s2, 6
    s_and_b32 s{sRB}, s2, 4
    s_lshl1_add_u32 s{sRB}, s{sRB}, s{sT1}
    s_lshl2_add_u32 s{sT0}, s{sRB}, s{sW}
    s_mulk_i32 s{sT0}, {32*896}
    s_movk_i32 s{sT2}, 896
    v_xor_b32 v{t[4]}, v{t[1]}, v{t[0]}
    v_lshl_add_u32 v{t[4]}, v{t[4]}, 4, s{sT0}
    v_mad_u32_u24 v{vDX[0]}, v{t[0]}, s{sT2}, v{t[4]}
    s_movk_i32 s{sT0}, 6144
    v_add_u32 v{vDX[1]}, s{sT0}, v{vDX[0]}
    v_add_u32 v{vDX[2]}, s{sT0}, v{vDX[1]}
    v_add_u32 v{vDX[3]}, s{sT0}, v{vDX[2]}
    s_lshl_b32 s{sM2K}, s{sW}, 11
    s_lshl_b32 s{sM4K}, s{sW}, 12
    s_mov_b32 s{sX+2}, {2048*896}
    s_mov_b32 s{sX+3}, s{sCODE+3}
    s_mov_b32 s{sQKV+2}, {448*2688}
    s_mov_b32 s{sQKV+3}, s{sCODE+3}
    v_lshrrev_b32 v{t[2]}, 2, v0
    v_and_b32 v{t[2]}, 4, v{t[2]}
    v_xor_b32 v{t[2]}, v{t[2]}, v{t[1]}
    v_lshlrev_b32 v{t[2]}, 4, v{t[2]}
    s_lshr_b32 s{sQH}, s2, 1
    s_and_b32 s{sQH}, s{sQH}, 1
    s_xor_b32 s3, s{sT1}, s2
    s_and_b32 s3, s3, 1
    s_and_b32 s{sC}, s2, 1
    s_lshl2_add_u32 s{sC}, s{sC}, s{sGrp}
    s_cmp_eq_u32 s{sGrp}, 3
    s_cselect_b32 s3, s3, 0
    s_cselect_b32 s{sC}, 3, s{sC}
    s_mul_i32 s{sT0}, s{sQH}, 7
    s_add_u32 s{sC}, s{sC}, s{sT0}
    s_mov_b32 s{sPadM}, {LC_TAB & 0xffffffff:#x}
    s_mov_b32 s{sPadM+1}, {LC_TAB >> 32:#x}
    s_lshl_b32 s{sT0}, s{sC}, 2
    s_lshr_b64 s[{sPadM}:{sPadM+1}], s[{sPadM}:{sPadM+1}], s{sT0}
    s_and_b32 s{sLC}, s{sPadM}, 15
    s_add_u32 s{sT0}, s{sLC}, 7
    s_lshl_b32 s{sT0}, s{sT0}, 7
    s_movk_i32 s{sT2}, 2688
    v_lshl_add_u32 v{t[3]}, v{t[3]}, 4, v{t[0]}
    v_add_u32 v{t[4]}, s{sT0}, v{t[2]}
    v_mad_u32_u24 v{vJ0}, v{t[3]}, s{sT2}, v{t[4]}
    v_add_u32 v{vJ1}, {8*2688-1024}, v{vJ0}
    {rot}
    s_mov_b32 m0, s{sM4K}
    s_cmp_eq_u32 s3, 1
    {'s_memtime s[92:93]' if cfg.fine2 else ''}
    s_waitcnt lgkmcnt(0)
    {'s_memtime s[96:97]' if cfg.fine2 else ''}
    s_mov_b64 s[{sX}:{sX+1}], s[4:5]
    s_mov_b64 s[{sQKV}:{sQKV+1}], s[6:7]
    ''')
    for j in range(4): e.V(f'buffer_load_dwordx4 v{vDX[j]}, {srd(sX)}, ' + (f's{sRot}' if cfg.rot else '0') + f' offen offset:{j * 1024} lds', ('ep', 0))
    e.I('s_cbranch_scc1 L_t3')

def first_loads(e, st, cfg, n_stage):
    R = '3' if st.t3 else '2'
    t = t_
    del st.q[:4]
    if st.t3:
        e.many(f'''
        s_mul_i32 s{sT0}, s{sW}, {8*2688}
        s_mul_i32 s{sT1}, s{sQH}, 448
        s_add_u32 s{sT0}, s{sT0}, s{sT1}
        v_mul_u32_u24 v{t[3]}, 2688, v{t[0]}
        v_add3_u32 v{vD0}, v{t[3]}, v{t[2]}, s{sT0}
        v_xor_b32 v{t[4]}, 32, v{t[2]}
        v_add3_u32 v{vD1}, v{t[3]}, v{t[4]}, s{sT0}
        s_mov_b32 s{sI0+2}, {448*2688}
        s_mov_b32 s{sI0+3}, 0x20000
        s_mov_b32 s{sI1+2}, {448*2688+896}
        s_mov_b32 s{sI1+3}, 0x20000
        s_mov_b32 s{sI0}, s6
        s_mov_b32 s{sI0+1}, s7
        s_sub_u32 s{sI1}, s6, 896
        s_subb_u32 s{sI1+1}, s7, 0
        ''')
    for _ in range(n_stage - 4): assert st.mem(e)
    if cfg.fine2 and not st.t3:
        stamp(e, cfg, 49); e.I('v_writelane_b32 v35, s92, 47'); e.I('v_writelane_b32 v35, s96, 48')
    if cfg.touch in (1, 2):
        e.many(f'''
        s_and_b32 s{sT0}, s2, 7
        s_lshl_b32 s{sT0}, s{sT0}, 5
        s_add_u32 s{sT0}, s{sT0}, s{sCT}
        s_and_b32 s{sT1}, s{sW}, 1
        s_lshl1_add_u32 s{sT0}, s{sT0}, s{sT1}
        s_cmp_lt_u32 s{sW}, 2
        s_cselect_b32 s{sT1}, 28, 21
        s_cselect_b32 s{sTC+2}, s{sX+2}, s{sQKV+2}
        s_cselect_b32 s{sTC}, s4, s6
        s_cselect_b32 s{sTC+1}, s5, s7
        s_mul_i32 s{sT0}, s{sT0}, s{sT1}
        s_sub_u32 s{sT1}, s{sT1}, 1
        v_min_u32 v{vTch}, s{sT1}, v{vL}
        v_add_lshl_u32 v{vTch}, v{vTch}, s{sT0}, 7
        ''')
        for _ in range(cfg.n10): assert st.mem(e)
        e.V(f'buffer_load_dword v{vPoll}, v{vTch}, {srd(sTC)}, 0 offen', 'tch')
    e.many(f'''
    v_lshlrev_b32 v{vL16}, 4, v{vL}
    v_lshlrev_b32 v{vL4}, 2, v{vL}
    s_and_b32 s{sZi}, s2, 63
    s_lshl_b32 s{sM1K}, s{sW}, 10
    s_bfe_u32 s{sT1}, s2, 0x20004
    s_add_u32 s{sT1}, s{sT1}, 24
    s_cmp_eq_u32 s{sGrp}, 3
    s_cselect_b32 s{sCT}, s{sT1}, s{sCT}
    ''')
    e.many(srd_txt(sWS, 24, STAMP_OFF + (1 << 20) if cfg.stamps else WS_USED) + f'''
    v_mov_b32 v{vT+4}, 0
    v_mov_b32 v{vT+5}, 0
    v_mov_b32 v{vT+6}, 0
    v_mov_b32 v{vT+7}, 0
    s_lshl_b32 s{sT0}, s2, 12
    s_add_u32 s{sT0}, s{sT0}, s{sM1K}
    s_add_u32 s{sT0}, s{sT0}, {FR_OFF - 128 * 4096}
    s_sub_u32 s{sT1}, s2, 128
    s_cmp_lt_u32 s{sT1}, {NZ}
    s_cselect_b32 s{sT0}, s{sT0}, 0x7fff0000
    ''')
    e.V(f'buffer_store_dwordx4 {vr(vT+4)}, v{vL16}, {srd(sWS)}, s{sT0} offen sc1', 'zero')
    if cfg.tlb:
        e.many(f'''
        s_lshr_b32 s{sT0}, s2, 3
        s_lshl2_add_u32 s{sT0}, s{sT0}, s{sW}
        s_mul_i32 s{sT1}, s{sT0}, 73728
        s_add_u32 s{sT1}, s{sT1}, {35 * 2048}
        s_min_u32 s{sT0}, s{sT0}, 111
        s_mul_i32 s{sT0}, s{sT0}, {CS}
        s_add_u32 s{sT0}, s{sT0}, {P_OFF + 32768}
        v_mov_b32 v{vT+8}, s{sT0}
        v_writelane_b32 v{vT+8}, s{sT1}, 0
        ''')
        e.V(f'buffer_load_dword v{vT+9}, v{vT+8}, {srd(sWS)}, 0 offen', 'tch')
    for _ in range(cfg.n1a): assert st.mem(e)
    e.many(f'''
    v_lshrrev_b32 v{t[6]}, 5, v{vL}
    v_bfe_u32 v{t[5]}, v{vL}, 2, 2
    v_lshlrev_b32 v{t[5]}, 7, v{t[5]}
    v_and_b32 v{t[4]}, 3, v{vL}
    v_lshl_add_u32 v{t[5]}, v{t[4]}, 3, v{t[5]}
    v_bfe_u32 v{t[4]}, v{vL}, 3, 1
    v_lshl_add_u32 v{t[5]}, v{t[4]}, 6, v{t[5]}
    v_bfe_u32 v{t[7]}, v{vL}, 4, 1
    v_lshl_add_u32 v{t[5]}, v{t[7]}, 5, v{t[5]}
    v_xor_b32 v{t[4]}, v{t[1]}, v{t[6]}
    v_and_b32 v{t[8]}, 31, v{vL}
    v_lshlrev_b32 v{t[3]}, 7, v{t[8]}
    v_lshl_add_u32 v{t[3]}, v{t[4]}, 4, v{t[3]}
    v_add_u32 v{vAX[0]}, s{sM4K}, v{t[3]}
    v_xor_b32 v{vAX[1]}, 32, v{vAX[0]}
    v_xor_b32 v{vAX[2]}, 64, v{vAX[0]}
    v_xor_b32 v{vAX[3]}, 96, v{vAX[0]}
    v_mov_b32 v{vONES}, 0x3f803f80
    ''' + srd_txt(sDBG, 22, 256))
    af = f'v_lshl_add_u32 v{vAF[0][0]}, v{t[6]}, 11, v{t[5]}\n'
    if not st.t3: af += f'v_lshl_add_u32 v{vAF[0][0]}, v{t[7]}, 10, v{vAF[0][0]}\n'
    for q, X in zip((1, 2, 3), (64, 1024 + 32, 1024 + 96) if st.t3 else (32, 64, 96)): af += f'v_xor_b32 v{vAF[0][q]}, {X}, v{vAF[0][0]}\n'
    for w in (1, 2):
        for q in range(4): af += f'v_add_u32 v{vAF[w][q]}, {65536*w}, v{vAF[0][q]}\n'
    if st.t3: e.many(af); af = ''
    else: e.many(f'v_lshl_add_u32 v{vAK}, v{t[6]}, 10, v{t[5]}\nv_add_u32 v{vAK}, {JB}, v{vAK}\nv_xor_b32 v{vAV}, 64, v{vAK}')
    if cfg.touch >= 2 and st.t3 and cfg.tg3:
        e.many(f'''
        s_lshl1_add_u32 s{sT0}, s{sRB}, s{sQH}
        s_lshl2_add_u32 s{sT0}, s{sT0}, s{sW}
        s_mul_i32 s{sT1}, s{sT0}, 49
        s_mul_i32 s{sT0}, s{sT0}, 25
        v_min_u32 v{t[3]}, 48, v{vL}
        v_add_u32 v{t[3]}, s{sT1}, v{t[3]}
        v_lshlrev_b32 v{vTch}, 8, v{t[3]}
        v_lshrrev_b32 v{t[4]}, 6, v{t[3]}
        v_mul_u32_u24 v{t[4]}, 147, v{t[4]}
        v_lshrrev_b32 v{t[4]}, 10, v{t[4]}
        v_mul_u32_u24 v{t[4]}, 448, v{t[4]}
        v_add_lshl_u32 v{vJ0}, v{t[4]}, v{t[3]}, 7
        v_min_u32 v{t[3]}, 24, v{vL}
        v_add_lshl_u32 v{vJ1}, v{t[3]}, s{sT0}, 7
        ''')
    elif cfg.touch >= 2 and min(int(x) for x in cfg.tg.split(',')) < 99: touch2_setup(e, R)
    return af

def touch2_setup(e, R):
    t = t_
    a, b, c, sh, n1, n2, u = 4, 5, sT0, sT1, sT2, sSo, sSoW
    def par(size, A, B, shv, n2v): return f's_mov_b32 s{sTC+2}, {size}\ns_movk_i32 s{a}, {A}\ns_movk_i32 s{b}, {B}\ns_movk_i32 s{sh}, {shv}\ns_movk_i32 s{n2}, {n2v}\n'
    ff = f'''s_lshl_b32 s{u}, s{sRB}, 1
    s_lshr_b32 s{c}, s{sW}, 1
    s_add_u32 s{u}, s{u}, s{c}
    s_mul_i32 s{c}, s{u}, {14*3584}
    s_and_b32 s{u}, s2, 3
    s_mul_i32 s{u}, s{u}, 7
    s_add_u32 s{u}, s{u}, 1
    s_lshr_b32 s{u}, s{u}, 1
    s_lshl_b32 s{u}, s{u}, 8
    s_add_u32 s{c}, s{c}, s{u}
    s_lshl_b32 s{u}, s{sGrp}, 6
    s_add_u32 s{c}, s{c}, s{u}
    s_and_b32 s{u}, s2, 1
    s_sub_u32 s{n1}, 3, s{u}
    s_bitcmp1_b32 s{sW}, 0
    s_cselect_b32 s{sTC}, s14, s12
    s_cselect_b32 s{sTC+1}, s15, s13
    ''' + par(448 * 3584, 3584, 256, 2, 13)
    lin = f'''s_lshl_b32 s{u}, s{sZi}, 2
    s_add_u32 s{u}, s{u}, s{sW}
    s_cmp_eq_u32 s{sGrp}, 1
    s_cselect_b32 s{n1}, 49, 13
    s_cselect_b32 s{sTC}, s16, s8
    s_cselect_b32 s{sTC+1}, s17, s9
    ''' + par(448 * 896, 0, 128, 6, 0) + f'''s_cselect_b32 s{sTC+2}, {1792*896}, s{sTC+2}
    s_mul_i32 s{c}, s{u}, s{n1}
    s_lshl_b32 s{c}, s{c}, 7
    s_sub_u32 s{n1}, s{n1}, 1
    '''
    if R == '3': e.many(lin)
    else: e.many(f's_bitcmp0_b32 s{sGrp}, 0\ns_cbranch_scc0 L_ts{R}\n' + ff + f's_branch L_tx{R}\nL_ts{R}:\n' + lin + f'L_tx{R}:')
    e.many(f'''
    v_lshrrev_b32 v{t[3]}, s{sh}, v{vL}
    v_bfe_u32 v{t[4]}, v{vL}, 0, s{sh}
    v_min_u32 v{t[3]}, s{n2}, v{t[3]}
    v_min_u32 v{t[4]}, s{n1}, v{t[4]}
    v_mul_u32_u24 v{vTch}, s{a}, v{t[3]}
    v_mad_u32_u24 v{vTch}, v{t[4]}, s{b}, v{vTch}
    v_add_u32 v{vTch}, s{c}, v{vTch}
    ''')

def common_post(st, cfg):
    R = '3' if st.t3 else '2'
    tg = [int(x) for x in cfg.tg.split(',')]
    dbg_ld = f'buffer_load_dword v{vDbg}, v{vT+23}, {srd(sDBG)}, 0 offen sc1'
    def post(e, ep):
        if ep == 0: stamp(e, cfg, 2)
        if ep == cfg.zfl and not st.t3:
            assert 'zero' not in e.vm
            e.many(f'''
            s_sub_u32 s{sT0}, s2, 128
            s_lshl_b32 s{sT1}, s{sW}, 8
            s_or_b32 s{sT0}, s{sT0}, s{sT1}
            s_cmp_lt_u32 s{sT0}, {NZ}
            s_cbranch_scc0 L_noflag
            ''')
            e.skippable(f's_lshl_b32 s{sT0}, s{sT0}, 2'); e.skippable('s_mov_b64 exec, 1')
            e.V(f'buffer_store_dword v{vONES}, off, {srd(sDBG)}, s{sT0} sc1', cond=True)
            e.skippable('s_mov_b64 exec, -1')
            e.label('L_noflag')
        if cfg.tlb and ep == 12 and not st.t3:
            e.I(f's_lshr_b32 s{sT0}, s2, 3'); e.I(f's_lshl_b32 s{sT0}, s{sT0}, 16')
            e.V(f'buffer_load_dword v{vT+22}, off, {srd(sOUT)}, s{sT0}', 'tch')
        if str(ep) in (cfg.rc3 if st.t3 else cfg.rc2).split(','):
            lab = f'L_rc{R}_{ep}'
            e.I(f's_getpc_b64 s[{sRC}:{sRC+1}]'); e.label(lab)
            e.many(f's_mov_b32 s{sRC+2}, L_code_end-{lab}\ns_mov_b32 s{sRC+3}, 0x20000')
            if st.t3:
                e.many(f'v_and_b32 v{vT+22}, 15, v{vL}\nv_lshlrev_b32 v{vT+22}, 7, v{vT+22}')
                e.V(f'buffer_load_dword v{vT+22}, v{vT+22}, {srd(sRC)}, s{sM2K} offen', 'tch')
            else:
                e.many(f's_and_b32 s{sT0}, s{sRT}, 3\ns_lshl2_add_u32 s{sT0}, s{sCT}, s{sT0}\ns_lshl2_add_u32 s{sT0}, s{sT0}, s{sW}\ns_lshl_b32 s{sT0}, s{sT0}, 7')
                e.V(f'buffer_load_dword v{vT+22}, off, {srd(sRC)}, s{sT0}', 'tch')
        if ep == cfg.zep:
            e.I(f'v_min_u32 v{vT+23}, {4 * NZ - 4}, v{vL4}'); e.V(dbg_ld, 'dbg')
        if ep == cfg.zep + 2:
            e.wait(vm=['dbg']); spin_check(e, cfg, 'z' + R, dbg_ld, vDbg); st.signalled.add('z')
        if cfg.touch >= 2:
            if st.t3 and cfg.tg3:
                for it in cfg.tg3.split(','):
                    if int(it[2:]) != ep: continue
                    ptr, size, reg, off = {'G': (12, 448 * 3584, vTch, 128), 'U': (14, 448 * 3584, vTch, 128), 'D': (16, 1792 * 896, vJ0, 57344), 'W': (8, 448 * 896, vJ1, 0)}[it[0]]
                    e.many(f's_mov_b64 s[{sTC}:{sTC+1}], s[{ptr}:{ptr+1}]\ns_mov_b32 s{sTC+2}, {size}\ns_mov_b32 s{sT0}, {off * (it[1] == "b")}')
                    e.V(f'buffer_load_dword v{vFv}, v{reg}, {srd(sTC)}, s{sT0} offen', 'tch')
            elif st.t3:
                if ep == (cfg.tw3 if cfg.tw3 >= 0 else tg[3]): e.V(f'buffer_load_dword v{vTch}, v{vTch}, {srd(sTC)}, 0 offen', 'tch')
            elif ep in tg:
                mask = sum(1 << g for g in range(4) if tg[g] == ep)
                e.I(f's_bitcmp1_b32 {mask}, s{sGrp}'); e.I(f's_cbranch_scc0 L_tch{ep}')
                e.V(f'buffer_load_dword v{vTch}, v{vTch}, {srd(sTC)}, 0 offen', cond=True)
                e.label(f'L_tch{ep}')
    return post

def late_common(t3):
    xs = f's_mul_i32 s{sT1}, s{sQH}, 72\ns_add_u32 s{sT1}, s{sT1}, 28\n' if t3 else f's_and_b32 s{sT1}, s{sC}, 1\ns_mul_i32 s{sT1}, s{sT1}, 35\ns_add_u32 s{sT1}, s{sT1}, s{sC}\n'
    pr = f's_add_u32 s{sT0}, s{sQH}, 14\n' if t3 else f's_mov_b32 s{sT0}, s{sC}\n'
    return f'''
    v_and_b32 v{vFl}, 124, v{vL4}
    s_mov_b32 s{sEPS}, {EPS:#x}
    s_mov_b32 s{sL2E}, {LOG2E:#x}
    s_lshr_b32 s{sT0}, s{sW}, 1
    s_lshl_b32 s{sT1}, s{sRB}, 1
    s_add_u32 s{sT0}, s{sT0}, s{sT1}
    s_mul_i32 s{sT0}, s{sT0}, 144
    {xs}s_add_u32 s{sT0}, s{sT0}, s{sT1}
    s_lshl_b32 s{sT0}, s{sT0}, 1
    s_and_b32 s{sT1}, s{sW}, 1
    s_add_u32 s{sT0}, s{sT0}, s{sT1}
    s_lshl_b32 s{sT0}, s{sT0}, 10
    v_add_u32 v{vHst}, s{sT0}, v{vL16}
    {pr}s_lshl_b32 s{sT1}, s{sRB}, 4
    s_add_u32 s{sT0}, s{sT0}, s{sT1}
    s_lshl_b32 s{sT0}, s{sT0}, 2
    s_add_u32 s{sT0}, s{sT0}, s{sW}
    s_lshl_b32 s{sT0}, s{sT0}, 7
    s_add_u32 s{sSigR}, s{sT0}, {FR_OFF}
    '''

def late_t2(af, pairst):
    PAIR0 = f'v_and_b32 v{t_[4]}, 1, v{t_[3]}\nv_and_b32 v{t_[3]}, -2, v{t_[3]}' if pairst else ''
    PAIR1 = f'v_lshl_add_u32 v{vOut}, v{t_[4]}, 4, v{vOut}' if pairst else ''
    t = t_
    early = f'''
    s_mul_i32 s{sT0}, s{sW}, {8*3584}
    s_lshl_b32 s{sT1}, s{sC}, 8
    s_add_u32 s{sT0}, s{sT0}, s{sT1}
    v_mul_u32_u24 v{t[3]}, 3584, v{t[0]}
    v_add3_u32 v{vD0}, v{t[3]}, v{t[2]}, s{sT0}
    v_xor_b32 v{vD1}, 32, v{vD0}
    ''' + srd_txt(sI0, 12, 448 * 3584) + f'''s_mov_b32 s{sI1+2}, {448*3584+1024}
    s_mov_b32 s{sI1+3}, 0x20000
    ''' + af
    pair = fF(lambda e: e.many(f's_sub_u32 s{sI1}, s14, 1024\ns_subb_u32 s{sI1+1}, s15, 0'), 2)
    rest = late_common(False) + f'''
    v_mov_b32 v{vFv}, 1
    s_and_b32 s{sStg}, s{sRB}, 3
    s_add_u32 s{sT1}, s{sLC}, 1
    s_lshr_b32 s{sT1}, s{sT1}, 3
    s_xor_b32 s{sT0}, s{sT1}, 1
    s_mul_i32 s{sPhiB}, s{sT0}, 0x3f800000
    s_mul_i32 s{sT0}, s{sT0}, {EPS:#x}
    s_mul_i32 s{sT1}, s{sT1}, 0xff800000
    s_add_u32 s{sPhiC}, s{sT0}, s{sT1}
    s_lshl_b32 s{sT0}, s{sRB}, 2
    s_add_u32 s{sT0}, s{sT0}, s{sW}
    s_lshl_b32 s{sT0}, s{sT0}, 9
    s_mul_i32 s{sT1}, s{sLC}, {8*CS}
    s_add_u32 s{sT0}, s{sT0}, s{sT1}
    s_add_u32 s{sT0}, s{sT0}, {P_OFF}
    v_and_b32 v{t[3]}, 3, v{t[0]}
    v_mul_u32_u24 v{vPst}, {CS}, v{t[3]}
    v_lshl_add_u32 v{vPst}, v{t[6]}, 7, v{vPst}
    v_lshl_add_u32 v{vPst}, v{t[1]}, 4, v{vPst}
    v_add_u32 v{vPst}, s{sT0}, v{vPst}
    s_and_b32 s{sRT}, s2, 7
    s_lshl_b32 s{sRT}, s{sRT}, 2
    s_and_b32 s{sT1}, s{sCT}, 3
    s_add_u32 s{sRT}, s{sRT}, s{sT1}
    s_lshr_b32 s{sCT}, s{sCT}, 2
    ''' + srd_txt(sWD, 16, 1792 * 896) + srd_txt(sWO, 8, 448 * 896) + srd_txt(sOUT, 20, 2048 * 896) + f'''
    s_and_b32 s{sT1}, s{sW}, 1
    s_lshl_b32 s{sT1}, s{sT1}, 2
    s_lshr_b32 s{sT2}, s{sW}, 1
    s_add_u32 s{sT1}, s{sT1}, s{sT2}
    s_mul_i32 s{sT1}, s{sT1}, {32*896}
    s_mul_i32 s{sT2}, s{sW}, {112*896}
    s_sub_u32 s{sDW2}, s{sT2}, s{sT1}
    s_lshl_b32 s{sT0}, s{sCT}, 7
    s_add_u32 s{sT1}, s{sT1}, s{sT0}
    v_mul_u32_u24 v{t[3]}, 896, v{t[0]}
    v_add3_u32 v{vDW0}, v{t[3]}, v{t[2]}, s{sT1}
    v_add_u32 v{vDW1}, 6144, v{vDW0}
    s_lshl_b32 s{sT0}, s{sRT}, 2
    s_add_u32 s{sT0}, s{sT0}, s{sW}
    s_mul_i32 s{sT0}, s{sT0}, 72
    s_lshr_b32 s{sT1}, s{sW}, 1
    s_add_u32 s{sT0}, s{sT0}, s{sT1}
    s_lshl_b32 s{sT0}, s{sT0}, 10
    v_add_u32 v{vH0}, s{sT0}, v{vL16}
    v_xor_b32 v{vH1}, 1024, v{vH0}
    v_lshl_add_u32 v{t[3]}, v{t[6]}, 9, v{t[5]}
    s_and_b32 s{sT0}, s{sW}, 1
    s_lshl_b32 s{sT0}, s{sT0}, 6
    v_xor_b32 v{t[3]}, s{sT0}, v{t[3]}
    v_add_u32 v{vA2[0][0]}, s{sM2K}, v{t[3]}
    v_xor_b32 v{vA2[0][1]}, 64, v{vA2[0][0]}
    v_add_u32 v{vA2[1][0]}, 0x10000, v{vA2[0][0]}
    v_add_u32 v{vA2[1][1]}, 0x10000, v{vA2[0][1]}
    v_add_u32 v{vA2[2][0]}, 0x20000, v{vA2[0][0]}
    v_add_u32 v{vA2[2][1]}, 0x20000, v{vA2[0][1]}
    s_lshl_b32 s{sT1}, s{sRT}, 1
    s_lshr_b32 s{sT2}, s{sW}, 1
    s_add_u32 s{sT1}, s{sT1}, s{sT2}
    s_lshl_b32 s{sT1}, s{sT1}, 5
    v_add_u32 v{t[3]}, s{sT1}, v{t[8]}
    v_lshlrev_b32 v{vG0}, 2, v{t[3]}
    v_add_u32 v{vG0}, {G_OFF}, v{vG0}
    v_lshlrev_b32 v{vG1}, 7, v{t[6]}
    v_xor_b32 v{vG0}, v{vG1}, v{vG0}
    {PAIR0}
    v_mul_u32_u24 v{vOut}, 896, v{t[3]}
    v_lshl_add_u32 v{vOut}, v{t[6]}, {5 if pairst else 4}, v{vOut}
    {PAIR1}
    s_lshl_b32 s{sT1}, s{sCT}, 7
    s_add_u32 s{sT1}, s{sT1}, s{sT0}
    v_add_u32 v{vOut}, s{sT1}, v{vOut}
    v_add_u32 v{vWr}, s{sM2K}, v{vL16}
    v_xor_b32 v{vRd[0]}, 2048, v{vWr}
    v_xor_b32 v{vRd[1]}, 4096, v{vWr}
    v_xor_b32 v{vRd[2]}, 6144, v{vWr}
    s_lshr_b32 s{sT0}, s{sRT}, 1
    s_lshl_b32 s{sT0}, s{sT0}, 13
    s_and_b32 s{sT1}, s{sRT}, 1
    s_lshl_b32 s{sT1}, s{sT1}, 8
    s_add_u32 s{sT0}, s{sT0}, s{sT1}
    s_add_u32 s{sPoll}, s{sT0}, {FR_OFF}
    v_and_b32 v{t[4]}, 1, v{vL}
    v_lshlrev_b32 v{t[4]}, 7, v{t[4]}
    v_lshrrev_b32 v{t[3]}, 1, v{vL}
    v_min_u32 v{t[3]}, 6, v{t[3]}
    v_lshl_add_u32 v{vPA}, v{t[3]}, 10, v{t[4]}
    s_and_b32 s{sT0}, s{sW}, 1
    s_lshl_b32 s{sT0}, s{sT0}, 9
    v_add_u32 v{vPA}, s{sT0}, v{vPA}
    v_and_b32 v{vPW}, 0xffffff7f, v{vPA}
    s_lshr_b32 s{sT0}, s{sW}, 1
    s_add_u32 s{sT0}, s{sT0}, 14
    s_lshl_b32 s{sT0}, s{sT0}, 9
    v_add_u32 v{vPO}, s{sT0}, v{t[4]}
    '''
    return [pair] + fT(early), fT(rest)

def phase2(e, st, cfg):
    ACC = aA
    if st.rd_part: st.preread(e)
    def reads(sq):
        if sq < st.rd_next: return
        while (sq, 1) in st.qw: assert st.w2(e), ('no LDS block for W2', sq)
        e.wait(vm=[('W', sq)])
        st.wread(e, sq)
        if sq < cfg.NPRE: st.rd_next = sq + 1
    def need_h(sq):
        while (sq, 1) in st.qh: assert st.h(e), ('H not allowed yet', sq)
    def mf(x, sq):
        acc = vr(ACC + 16 * x, 16)
        e.I(f'v_mfma_f32_32x32x16_bf16 {acc}, {sub(st.wreg(sq),4*(x&1),4)}, {ar(hreg(sq)+4*(x>>1))}, ' + ('0' if sq == 0 else acc))
    def scale(x): return [f'v_mul_f32 v{ACC+16*x+r}, v{ACC+16*x+r}, v{vG0 + (x >> 1)}' for r in range(16)]
    red = lambda x, q: ((x - 1) * 2 + (q >> 1)) * 8192 + (q & 1) * 1024
    hmax = 13; order = (2, 3, 1, 0)
    if cfg.noA:
        k = 0
        while st.qw:
            st.try_signal(e, 'B', 4, age=cfg.ageB)
            if len(st.qw) == cfg.noAp: st.try_signal(e, 'B', 4, force=True); poll_issue(e, 'B')
            if not st.w2(e):
                e.wait(lg_all=True)
                if not st.w2(e):
                    e.wait(vm=[('W', st.rd_next)]); assert st.preread(e) and st.preread(e); e.wait(lg_all=True); assert st.w2(e)
            if st.preread(e): st.preread(e)
        stamp(e, cfg, 6); poll_check(e, cfg, 'B'); stamp(e, cfg, 7)
        st.h_ok = hmax = 27
        for _ in range(cfg.burst): st.h(e)
    reads(0)
    extra = list(range(29, 35))
    for t in range(28):
        if cfg.fine: stamp(e, cfg, 16 + t)
        st.try_signal(e, 'B', 4, force=t >= cfg.sigB)
        if t == 14 - cfg.LHB - cfg.pollB and not cfg.noA: poll_issue(e, 'B')
        if t == 28 - cfg.LHO - cfg.pollO: poll_issue(e, 'O')
        if t == 14 - cfg.LHB and not cfg.noA:
            need_h(13)
            while (cfg.wflush or st.m0) and st.w2(e): pass
            log(f'B check: W2 ops {70-len(st.qw)}')
            stamp(e, cfg, 6); poll_check(e, cfg, 'B'); stamp(e, cfg, 7)
            st.h_ok = hmax = 27
            assert cfg.burst // 2 <= t
            for _ in range(cfg.burst): st.h(e)
        if t == 28 - cfg.LHO:
            stamp(e, cfg, 8); poll_check(e, cfg, 'O'); stamp(e, cfg, 9); hmax = 35
            e.V(f'buffer_load_dword v{vG0}, v{vG0}, {srd(sWS)}, 0 offen sc1', 'g')
        if t >= 14 - cfg.LHB or cfg.noA: st.h_ok = 35 if hmax == 35 else min(hmax, t + cfg.LH)
        assert st.h_ok < 14 or min(st.h_ok, 27) - 14 < t
        rd = [t + 1]
        if t >= 22: rd.append(extra.pop(0))
        need_h(t)
        e.wait(vm=[('H', t)], lg=[('w2', t)])
        k = cfg.opseq if hmax < 35 else cfg.opseqO
        if t == 27:
            side = scale(order[0])
            for i, x in enumerate(order[1:]):
                mf(x, t)
                st.mem(e)
                if i == 0: reads(rd.pop(0)); reads(rd.pop(0))
                else:
                    for s in side[:8]: e.I(s)
                    side = side[8:]
            break
        for i, x in enumerate(order):
            mf(x, t)
            if t == 26 and i == 3:
                need_h(27); e.wait(vm=[('H', 27)], lg=[('w2', 27)]); mf(order[0], 27)
            st.tick(e)
            st.try_signal(e, 'B', 4, age=cfg.ageB)
            if k > 0 and st.mem(e): k -= 1
            if k > 3 - i and st.mem(e): k -= 1
            if rd and i in (0, 2): reads(rd.pop(0))
            if i in (1, 2):
                st.preread(e)
                if i == 2 and st.rd_part: st.preread(e)
            if t == 26 and i == 1: e.wait(vm=['g']); e.I(f'v_mov_b32 v{vG1}, v{vG0}')
            if t == 26 and i == 2: e.I(f'v_permlane32_swap_b32 v{vG0}, v{vG1}')
    assert not extra and {'P', 'A', 'B'} <= st.signalled
    while len(st.qh) > (7 if cfg.tb == 1 else 0): assert st.h(e)
    assert not st.qw
    log(f'loads left for the tail: {len(st.qh)}')
    stamp(e, cfg, 10)
    qs = []
    def q(i):
        if cfg.fine2: e.I(('s_memrealtime' if cfg.rt else 's_memtime') + f' s[{12+2*i}:{13+2*i}]'); qs.append(i)
    e.wait(vm=['g'], lg_all=True)
    wr_op = lambda px, q: e.D(f'ds_write_b128 v{vWr}, {vr(ACC+16*px+4*q)} offset:{red(px,q)}', ('rw', px))
    rd_op = lambda x, q: e.D(f'ds_read_b128 {vr(ACC+16*x+4*q)}, v{vRd[x-1]} offset:{red(x,q)}', ('rr', x))
    add = lambda d, a: [f'v_add_f32 v{ACC+16*d+r}, v{ACC+16*d+r}, v{ACC+16*a+r}' for r in range(16)]
    padd = lambda d, a: [f'v_pk_add_f32 {vr(ACC+16*d+r,2)}, {vr(ACC+16*d+r,2)}, {vr(ACC+16*a+r,2)}' for r in range(0, 16, 2)]
    cfg_wj = [int(c) for c in cfg.wj]
    O = aK
    if cfg.fakeout:
        sh = cfg.fakeout
        e.many(f's_lshl2_add_u32 s{sT0}, s{sRT}, s{sW}\ns_mul_i32 s{sT0}, s{sT0}, {16*896}\ns_lshl_b32 s{sT1}, s{sCT}, 7\ns_add_u32 s{sT0}, s{sT0}, s{sT1}\nv_lshrrev_b32 v{vT}, {sh}, v{vL}\nv_and_b32 v{vT}, 15, v{vT}\nv_mul_u32_u24 v{vT}, 896, v{vT}\nv_and_b32 v{vT+1}, {(1<<sh)-1}, v{vL}\nv_lshl_add_u32 v{vT}, v{vT+1}, 4, v{vT}\nv_add_u32 v{vOut}, s{sT0}, v{vT}')
    def finish(h):
        for i in (2, 0, 3, 1): e.I(f'v_cvt_pk_bf16_f32 v{O+4*h+i}, v{ACC+8*h+2*i}, v{ACC+8*h+2*i+1}')
        e.I(f'v_permlane32_swap_b32 v{O+4*h}, v{O+4*h+2}'); e.I(f'v_permlane32_swap_b32 v{O+4*h+1}, v{O+4*h+3}')
        e.V(f'buffer_store_dwordx4 {vr(O+4*h)}, v{vOut}, {srd(sOUT)}, 0 offen offset:{32*h} {cfg.out_flag}', 'out')
    if cfg.tb in (1, 2):
        rdh = lambda x, h: [e.D(f'ds_read_b128 {vr(ACC+16*x+4*qq)}, v{vRd[x-1]} offset:{red(x,qq)}', ('rr', x, h)) for qq in (2 * h, 2 * h + 1)]
        for i, x in enumerate(order):
            side = scale(order[i + 1]) if i < 3 else []
            q(i)
            for j, sq in enumerate(range(28, 35)):
                assert (sq, x >> 1) not in st.qh
                e.wait(vm=[('H', sq, x >> 1)])
                mf(x, sq)
                st.h(e)
                if cfg.tb == 2 and i == 3 and j == 1:
                    e.wait(lg=[('rw', order[0])]); e.I('s_barrier')
                    rdh(order[0], 0); rdh(order[0], 1)
                if i >= 1 and j in cfg_wj: wr_op(order[i - 1], cfg_wj.index(j))
                n = (3, 3, 3, 3, 2, 2, 0)[j] if i == 0 else (6, 6, 2, 2, 0, 0, 0)[j]
                for s in side[:n]: e.I(s)
                side = side[n:]
        q(4)
        e.wait(lg=[('rw', order[2])]); e.I('s_barrier')
        q(5)
        rest = order[cfg.tb - 1:3]
        for h in range(2):
            for x in rest: rdh(x, h)
        if cfg.tb == 2:
            for s in padd(0, order[0]): e.I(s)
        if cfg.pairst: e.many('s_mov_b32 vcc_lo, 0x55555555\ns_mov_b32 vcc_hi, 0x55555555')
        for h in range(2):
            for x in rest:
                e.wait(lg=[('rr', x, h)])
                for s in padd(0, x)[4*h:4*h+4]: e.I(s)
            if h == 0: q(6)
            if not cfg.pairst: finish(h); continue
            for i in range(4):
                e.I(f'v_cvt_pk_bf16_f32 v{O+4*(i>>1)+2*h+(i&1)}, v{ACC+8*h+2*i}, v{ACC+8*h+2*i+1}')
        if cfg.pairst:
            for r in (0, 1, 4, 5): e.I(f'v_permlane32_swap_b32 v{O+r}, v{O+r+2}')
            dpp = 'quad_perm:[1,0,3,2] row_mask:0xf bank_mask:0xf'
            for r in range(4): e.I(f'v_cndmask_b32_dpp v{O+8+r}, v{O+4+r}, v{O+r}, vcc {dpp}')
            e.I('s_not_b64 vcc, vcc')
            e.V(f'buffer_store_dwordx4 {vr(O+8)}, v{vOut}, {srd(sOUT)}, 0 offen {cfg.out_flag}', 'out')
            for r in range(4): e.I(f'v_cndmask_b32_dpp v{O+12+r}, v{O+r}, v{O+4+r}, vcc {dpp}')
            e.V(f'buffer_store_dwordx4 {vr(O+12)}, v{vOut}, {srd(sOUT)}, 0 offen offset:896 {cfg.out_flag}', 'out')
    else:
        for i, x in enumerate(order):
            side = scale(order[i + 1]) if i < 3 else add(order[0], order[1])
            q(i)
            for j, sq in enumerate(range(28, 35)):
                e.wait(vm=[('H', sq, x >> 1)])
                mf(x, sq)
                if i >= 2 and j == cfg.tbj:
                    e.wait(lg=[('rw', order[i - 2])]); e.I('s_barrier')
                    for qq in range(4): rd_op(order[i - 2], qq)
                if i >= 1 and 2 <= j < 6: wr_op(order[i - 1], j - 2)
                if i == 3 and j == 3: e.wait(lg=[('rr', order[1])])
                n = ((3, 3, 3, 3, 2, 2, 0), (6, 6, 2, 2, 0, 0, 0), (6 * cfg.tbj, 6 - 6 * cfg.tbj, 3, 3, 2, 2, 0), (0, 0, 0, 4, 4, 4, 4))[i][j]
                for s in side[:n]: e.I(s)
                side = side[n:]
            assert not side
        q(4)
        x3 = order[2]
        e.wait(lg=[('rw', x3)]); e.I('s_barrier')
        q(5)
        O = aK
        for qq in range(4): e.D(f'ds_read_b128 {vr(ACC+16*x3+4*qq)}, v{vRd[x3-1]} offset:{red(x3,qq)}', ('rr3', qq >> 1))
        for s in padd(0, order[0]): e.I(s)
        for h in range(2):
            e.wait(lg=[('rr3', h)])
            for s in padd(0, x3)[4*h:4*h+4]: e.I(s)
            if h == 0: q(6)
            for i in (2, 0, 3, 1): e.I(f'v_cvt_pk_bf16_f32 v{O+4*h+i}, v{ACC+8*h+2*i}, v{ACC+8*h+2*i+1}')
            e.I(f'v_permlane32_swap_b32 v{O+4*h}, v{O+4*h+2}'); e.I(f'v_permlane32_swap_b32 v{O+4*h+1}, v{O+4*h+3}')
            e.V(f'buffer_store_dwordx4 {vr(O+4*h)}, v{vOut}, {srd(sOUT)}, 0 offen offset:{32*h} {cfg.out_flag}', 'out')
    stamp(e, cfg, 11)
    for i in qs: e.I(f'v_writelane_b32 v35, s{12+2*i}, {16+i}')
    if cfg.stamps: e.wait(vm_all=True); stamp(e, cfg, 12)

def role_t2(e, cfg):
    st = St(cfg, False)
    if cfg.noA: st.signalled.add('A')
    af = first_loads(e, st, cfg, 6)
    early, late = late_t2(af, cfg.pairst)
    for _ in range(cfg.pre):
        if early or late: (early or late).pop(0)[1](e)
    for _ in range(cfg.n1b): assert st.mem(e)
    stamp(e, cfg, 1)
    cpost = common_post(st, cfg)
    def post(e, ep):
        cpost(e, ep)
        st.try_signal(e, 'P', 4, force=ep >= cfg.sigP)
        st.try_signal(e, 'A', 4, force=ep >= cfg.sigA)
    st.post_barrier = post
    S = steps('K', (0, 1)) + steps(0, (0, 1, 2, 3)) + steps(1, (0, 1, 2, 3))
    TM = cfg.TM; S[len(S) - 4 * TM:] = [(1, ks, t) for t in range(4) for ks in range(28 - TM, 28)]
    ck = copy.copy(cfg)
    if cfg.cutK: ck.LA = cfg.LAK; ck.WP = cfg.WPK; ck.LK = cfg.LKK
    st.cfg = ck
    for n in range(ck.LA): issue_read(e, st, S, n)
    nl = len(late); late = early + late
    run_steps(e, st, S, 0, 24, late, cfg.fillK)
    assert len(late) <= nl
    run_steps(e, st, S[:56] if cfg.cutK else S, 24, 56, late, cfg.fillK)
    st.cfg = cfg
    log(f'end of pass K: fillers left {len(late)}')
    run_valu(e, st, late)
    stamp(e, cfg, 13)
    st.qw = [(sq, p) for sq in range(35) for p in range(2)]
    st.qh = [(sq, p) for sq in range(28) for p in range(2)] + [(sq, p) for p in (1, 0) for sq in range(28, 35)]
    assert not cfg.rot2
    fill = p_fill(st)
    if cfg.cutK:
        c2 = copy.copy(cfg); c2.vgap = cfg.vgapP; c2.LK = cfg.LKP; st.cfg = c2
        st.mem(e); st.mem(e)
        if cfg.vskip: e.I('s_nop 9')
        run_valu(e, st, fill[:cfg.cutK]); del fill[:cfg.cutK]
        st.cfg = cfg
        for n in range(56, 56 + cfg.LA): issue_read(e, st, S, n)
        run_valu(e, st, fill[:16]); del fill[:16]
        run_steps(e, st, S, 56, 170, fill, cfg.fillA)
    else:
        run_steps(e, st, S, 56, 58)
        run_steps(e, st, S, 58, 170, fill, cfg.fillA)
    assert not fill
    log(f'end of pass A: W2 ops {70-len(st.qw)} pool {len(st.pool.free)} preread {st.rd_next}')
    stamp(e, cfg, 3)
    fill = sum((f_fill(st, aA + 16 * i, i, 0) for i in range(4)), [])
    def hook(n):
        if cfg.noA: return
        if n == len(S) - cfg.nA - cfg.dA: poll_issue(e, 'A')
        if n == len(S) - cfg.nA: poll_check(e, cfg, 'A'); st.a_ok = True
    n0 = len(S) - 3 * TM + 2
    run_steps(e, st, S, 170, n0, fill, cfg.fillB, hook)
    assert not fill
    for i in range(3):
        fill += f_fill(st, aB + 16 * i, i, 1)
        run_steps(e, st, S, n0 + i * TM, min(n0 + (i + 1) * TM, len(S)), fill, cfg.fillT, hook)
    log(f'end of pass B: W2 ops {70-len(st.qw)} H ops {70-len(st.qh)} pool {len(st.pool.free)} preread {st.rd_next} fillers {len(fill)}')
    stamp(e, cfg, 4)
    e.I('s_barrier'); st.on_epoch(21)
    assert (st.a_ok or cfg.noA) and 'A' in st.signalled
    if not cfg.noA: st.h_ok = 13
    for _ in range(cfg.nB): st.mem(e)
    run_valu(e, st, fill + f_fill(st, aB + 48, 3, 1))
    stamp(e, cfg, 5)
    phase2(e, st, cfg)
    stamp_out(e, cfg)
    e.I('s_endpgm')

def role_t3(e, cfg):
    st = St(cfg, True); st.rd_next = 99
    first_loads(e, st, cfg, 8)
    t = t_
    P = aA
    G, G1, Z, vPk, vPv, vPp, vKp, vSw, vSr, vKw = 60, 61, 62, 63, 84, 85, 86, 87, 88, 89
    ON = 92
    sKV, sGo, sKo, sXm, sRowM = sWD, sWD + 1, sWD + 2, sWD + 3, sWO
    vL8 = 90
    GW, SCR, XCH = JB, JB + 8192, JB + 24576
    setup = fT(late_common(True) + srd_txt(sGW, 18, 896) + f'''
    v_lshlrev_b32 v{vAG}, 4, v{t[6]}
    v_add_u32 v{vAG}, {GW}, v{vAG}
    s_and_b32 s{sT0}, s{sRB}, 1
    s_xor_b32 s{sT0}, s{sT0}, 1
    s_mul_i32 s{sT0}, s{sT0}, 28
    s_lshl_b32 s{sPadM}, 15, s{sT0}
    s_mov_b32 s{sPadM+1}, s{sPadM}
    s_mov_b32 s{sHiM}, 0
    s_mov_b32 s{sHiM+1}, -1
    v_mov_b32 v{Z}, 0
    v_mov_b32 v{ON}, v{vONES}
    v_mov_b32 v{ON+1}, v{vONES}
    v_mov_b32 v{ON+2}, v{vONES}
    v_mov_b32 v{ON+3}, v{vONES}
    s_lshl_b32 s{sT2}, s{sQH}, 2
    s_add_u32 s{sT2}, s{sT2}, s{sW}
    s_lshl_b32 s{sT0}, s{sT2}, 12
    s_mul_i32 s{sT1}, s{sRB}, 28
    s_and_b32 s{sT1}, s{sT1}, -8
    v_add_u32 v{t[3]}, s{sT1}, v{t[8]}
    v_lshrrev_b32 v{t[3]}, 3, v{t[3]}
    v_mul_u32_u24 v{vPk}, {CS}, v{t[3]}
    v_lshl_add_u32 v{vPk}, v{t[6]}, 7, v{vPk}
    v_lshl_add_u32 v{vPk}, v{t[1]}, 4, v{vPk}
    s_add_u32 s{sT0}, s{sT0}, {P_OFF}
    v_add_u32 v{vPk}, s{sT0}, v{vPk}
    v_add_u32 v{vPv}, {56*CS}, v{vPk}
    v_bfe_u32 v{t[3]}, v{vL}, 2, 1
    v_mul_u32_u24 v{t[3]}, 31, v{t[3]}
    v_add_u32 v{t[3]}, s{sT1}, v{t[3]}
    v_lshrrev_b32 v{t[3]}, 6, v{t[3]}
    v_bfe_u32 v{t[4]}, v{vL}, 3, 1
    v_mad_u32_u24 v{t[3]}, v{t[4]}, 7, v{t[3]}
    v_lshlrev_b32 v{t[3]}, 2, v{t[3]}
    v_mov_b32 v{vT}, {C_TAB & 0xffffffff:#x}
    v_mov_b32 v{vT+1}, {C_TAB >> 32:#x}
    v_lshrrev_b64 v[{vT}:{vT+1}], v{t[3]}, v[{vT}:{vT+1}]
    v_and_b32 v{t[3]}, 15, v{vT}
    v_lshl_add_u32 v{t[3]}, v{t[7]}, 4, v{t[3]}
    v_and_b32 v{t[4]}, {0 if 'P' in cfg.sigwg else 3}, v{vL}
    v_lshl_add_u32 v{t[3]}, v{t[3]}, 2, v{t[4]}
    v_lshlrev_b32 v{vPp}, 7, v{t[3]}
    s_lshl_b32 s{sPoll}, s{sT2}, 14
    s_lshr_b32 s{sKV}, s{sPoll}, 1
    s_add_u32 s{sKV}, s{sKV}, {KV_OFF}
    s_add_u32 s{sPoll}, s{sPoll}, {FR_OFF}
    v_and_b32 v{vKp}, 15, v{vL}
    v_lshlrev_b32 v{vKp}, 7, v{vKp}
    s_lshl_b32 s{sT0}, s{sT2}, 11
    s_add_u32 s{sT0}, s{sT0}, {FK_OFF}
    v_add_u32 v{vKp}, s{sT0}, v{vKp}
    s_lshl_b32 s{sT0}, s{sRB}, 1
    s_add_u32 s{sT0}, s{sT0}, s{sQH}
    s_lshl_b32 s{sT0}, s{sT0}, 2
    s_add_u32 s{sT0}, s{sT0}, s{sW}
    s_lshl_b32 s{sKo}, s{sT0}, 9
    s_add_u32 s{sKo}, s{sKo}, {KV_OFF}
    s_lshl_b32 s{sT0}, s{sT0}, 7
    s_add_u32 s{sSoW}, s{sT0}, {FK_OFF}
    v_add_u32 v{vSw}, s{sM4K}, v{vL16}
    v_add_u32 v{vSw}, {SCR}, v{vSw}
    v_add_u32 v{vKw}, {XCH}, v{vL16}
    v_and_b32 v{t[3]}, 1, v{vL}
    v_lshrrev_b32 v{t[4]}, 1, v{vL}
    v_lshlrev_b32 v{t[4]}, 4, v{t[4]}
    v_lshl_add_u32 v{vSr}, v{t[3]}, 10, v{t[4]}
    s_lshr_b32 s{sT0}, s{sW}, 1
    s_lshl_b32 s{sT0}, s{sT0}, 11
    s_and_b32 s{sT1}, s{sW}, 1
    s_lshl_b32 s{sT1}, s{sT1}, 9
    s_add_u32 s{sT0}, s{sT0}, s{sT1}
    s_add_u32 s{sT0}, s{sT0}, {SCR}
    v_add_u32 v{vSr}, s{sT0}, v{vSr}
    v_lshlrev_b32 v{vL8}, 3, v{vL}
    s_and_b32 s{sT0}, s{sRB}, 1
    s_xor_b32 s{sT0}, s{sT0}, 1
    s_mul_i32 s{sT0}, s{sT0}, 7
    s_lshl_b32 s{sT1}, s{sW}, 1
    v_add_u32 v{t[3]}, s{sT1}, v{t[3]}
    v_cmp_eq_u32_e64 s[{sRowM}:{sRowM+1}], s{sT0}, v{t[3]}
    s_lshl_b32 s{sXm}, s{sW}, 13
    s_add_u32 s{sXm}, s{sXm}, {XCH}
    s_lshl_b32 s{sGo}, s{sRB}, 2
    s_add_u32 s{sGo}, s{sGo}, s{sW}
    s_lshl_b32 s{sGo}, s{sGo}, 7
    s_add_u32 s{sGo}, s{sGo}, {G_OFF}
    ''')
    for _ in range(cfg.pre3):
        if setup: setup.pop(0)[1](e)
    for _ in range(cfg.n1b): assert st.mem(e)
    stamp(e, cfg, 1)
    def q_fill(acc, tl):
        L = phi_fill(acc, 16, vT)
        for i in range(8): L.append(fI(f'v_cvt_pk_bf16_f32 v{P+8*tl+i}, v{acc+2*i}, v{acc+2*i+1}'))
        return L
    pload = f'buffer_load_dword v{vPoll}, v{vPp}, {srd(sWS)}, s{sPoll} offen sc1'
    kload = f'buffer_load_dword v{vPoll}, v{vKp}, {srd(sWS)}, 0 offen sc1'
    preg = lambda u, b: 112 + 8 * u + 4 * b if u < 14 else 8 * (u - 14) + 4 * b
    pq = [(u, b) for u in range(16) for b in range(2)]
    state = {'ok': -1}
    def p_op(e):
        if not pq or pq[0][0] > state['ok']: return False
        u, b = pq.pop(0)
        e.V(f'buffer_load_dwordx4 {ar(preg(u, b))}, v{vPv if b else vPk}, {srd(sWS)}, 0 offen offset:{u*256} sc1', ('P', u))
        return True
    st.h = p_op
    cpost = common_post(st, cfg)
    def post(e, ep):
        cpost(e, ep)
        if ep == 4:
            assert not setup
            while st.m0: st.mem(e)
            e.I(f's_mov_b32 m0, {GW}')
            if cfg.rot: e.many(f'v_add_u32 v{t[3]}, s{sRot}, v{vL16}\nv_subrev_u32 v{t[4]}, 896, v{t[3]}\nv_min_u32 v{t[3]}, v{t[3]}, v{t[4]}')
            e.V(f'buffer_load_dwordx4 v{t[3] if cfg.rot else vL16}, {srd(sGW)}, 0 offen lds', ('ep', 7))
    st.post_barrier = post
    S = steps(0, (0, 1, 2, 3)) + steps(1, (0, 1, 2, 'g'))
    for n in range(cfg.LA): issue_read(e, st, S, n)
    run_steps(e, st, S, 0, 114, setup, cfg.fill3)
    stamp(e, cfg, 3)
    fill = sum((q_fill(aA + 16 * tl, tl) for tl in range(4)), [])
    def kv_step(fl):
        u = state['u']; state['u'] += 1
        while (u, 1) in pq: p_op(e)
        e.wait(vm=[('P', u)])
        for b in range(2):
            acc = vr(aK + 16 * b, 16)
            e.I(f'v_mfma_f32_32x32x16_bf16 {acc}, {ar(preg(u,0))}, ' + (vr(ON) if b else ar(preg(u, 1))) + ', ' + ('0' if u == 0 else acc))
            gap(e, st, fill, fl, None, 0, cfg.dgap2)
    fs = lambda i: stamp(e, cfg, 16 + i) if cfg.fine else None
    def some(k):
        run_valu(e, st, fill[:k]); del fill[:k]
    def publish():
        state['pub'] = e.n_mfma
        fs(0)
        some(10)
        for q in range(4):
            for r in range(4 * q, 4 * q + 4): e.I(f'v_cndmask_b32_e64 v{aK+r}, v{aK+r}, v{aV+r}, s[{sPadM}:{sPadM+1}]')
            e.D(f'ds_write_b128 v{vSw}, {vr(aK+4*q)} offset:{q*1024}', 'scw')
        some(12)
        e.wait(lg=['scw']); e.I('s_barrier')
        for p in range(4): e.D(f'ds_read_b128 {vr(aV+4*p)}, v{vSr} offset:{p*4096}', 'scr')
        some(12)
        e.wait(lg=['scr'])
        for a, b in ((0, 4), (8, 12), (0, 8)):
            for r in (0, 2): e.I(f'v_pk_add_f32 {vr(aV+a+r,2)}, {vr(aV+a+r,2)}, {vr(aV+b+r,2)}')
        for i in range(2): e.I(f'v_cvt_pk_bf16_f32 v{aV+4+i}, v{aV+2*i}, v{aV+2*i+1}')
        for i in range(2): e.I(f'v_cndmask_b32_e64 v{aV+4+i}, v{aV+4+i}, v{Z}, s[{sRowM}:{sRowM+1}]')
        st.pub(e, f'buffer_store_dwordx2 {vr(aV+4,2)}, v{vL8}, {srd(sWS)}, s{sKo} offen sc1', 'K')
        fs(1)
    def hook(n):
        if state['u'] == 16 and cfg.early:
            if 'pub' not in state: publish(); log(f'T3 publishes KV at step {n - 112}')
            elif e.n_mfma >= state['pub'] + cfg.early: st.try_signal(e, 'K', 1, force=True)
        if n == len(S) - cfg.nK: assert 'K' in st.signalled; e.V(kload, 'pk'); state['pk'] = 1
        if n == 112 + cfg.nP: e.V(pload, 'pp')
        if n == 112 + cfg.nP + cfg.dP:
            assert 'z' in st.signalled
            stamp(e, cfg, 5); e.wait(vm=['pp']); spin_check(e, cfg, 'P', pload, vPoll); stamp(e, cfg, 6)
            state['ok'] = 15
            for _ in range(cfg.pburst): p_op(e)
        u = state['u']
        if u < 16 and n % cfg.kvr == cfg.kvr - 1 and (u, 1) not in pq and (not pq or 2 * u + 2 + cfg.kvage <= 32 - len(pq)): kv_step(cfg.fill3b)
    state['u'] = 0
    run_steps(e, st, S, 114, len(S), fill, cfg.fill3b, hook)
    log(f'T3 left-over fillers {len(fill)}, P loads left {len(pq)}, KV steps done {state["u"]}')
    stamp(e, cfg, 4)
    lg = aB + 48
    q4 = q_fill(aB, 4)
    gops = [f'v_mul_f32 v{G}, 0xbfb8aa3b, v{lg}', f'v_exp_f32 v{G}, v{G}', f'v_add_f32 v{G}, 1.0, v{G}', f'v_rcp_f32 v{G}, v{G}', f'v_sub_f32 v{G1}, 1.0, v{G}']
    for i, g in enumerate(gops): q4.insert(12 + 3 * i, fI(g))
    fill += q4 + q_fill(aB + 16, 5) + q_fill(aB + 32, 6)
    assert state['ok'] == 15
    while pq and 32 - len(pq) < 2 * state['u'] + cfg.kvage: p_op(e)
    cfg2 = copy.copy(cfg); cfg2.gap3 = 20; st.cfg = cfg2
    while state['u'] < 16: kv_step(cfg.t3c if pq else 36)
    if 'pub' not in state: publish()
    if 'K' not in st.signalled: some(cfg.t3k)
    st.try_signal(e, 'K', 1, force=True)
    log(f'T3 fillers left at signal K: {len(fill)}')
    some(max(len(fill) - cfg.t3p, 0))
    if 'pk' not in state: e.V(kload, 'pk')
    some(max(len(fill) - cfg.t3q, 0))
    fs(2)
    e.wait(vm=['pk']); spin_check(e, cfg, 'K', kload, vPoll)
    fs(3)
    KF = 0
    for i in range(2):
        e.I(f's_add_u32 m0, s{sXm}, {i * 4096}'); e.I(f's_add_u32 s{sSo}, s{sKV}, {i * 4096}')
        for q in range(4):
            e.V(f'buffer_load_dwordx4 v{vL16}, {srd(sWS)}, s{sSo} offen offset:{q*1024} sc1 lds', 'kvl')
    some(max(len(fill) - 24, 0))
    st.pub(e, f'buffer_store_dword v{G1}, v{vFl}, {srd(sWS)}, s{sGo} offen sc1', 'O')
    e.wait(vm=['kvl']); e.I('s_barrier')
    def kf_read(jj):
        for q in range(4): e.D(f'ds_read_b128 {ar(KF+16*jj+4*q)}, v{vKw} offset:{(4*jj+q)*1024}', ('kf', jj))
    for jj in range(4): kf_read(jj)
    some(24)
    N = [aB, aB + 16, aB + 32, aB + 48]
    def num(jj):
        u0 = (7 * jj) // 2; n = N[jj % 4]
        e.wait(lg=[('kf', jj)])
        return [f'v_mfma_f32_32x32x16_bf16 {vr(n,16)}, {ar(KF+16*jj+4*q)}, {vr(P+2*u0+4*(q&1))}, ' + (vr(n,16) if q else '0') for q in range(4)]
    def factor(jj):
        n = N[jj % 4]; odd = jj & 1; D = vT + 4 * (jj & 1)
        dr = n + (0 if odd else 12)
        d = D if odd else D + 1
        return [f'v_add_f32 v{D}, s{sEPS}, v{dr}', f'v_add_f32 v{D+1}, s{sEPS}, v{dr}', None, None,
                f'v_permlane32_swap_b32 v{D}, v{D+1}', None, f'v_rcp_f32 v{D+2}, v{d}', None,
                f'v_mul_f32 v{D}, v{D+2}, v{G}']
    for k, s in enumerate(num(0)):
        e.I(s); kf_read(4 + k)
    mq = num(1)
    e.I(mq.pop(0)); e.I(mq.pop(0))
    for s in factor(0):
        if s: e.I(s)
    pend = []
    for jj in range(8):
        n = N[jj % 4]; odd = jj & 1; D = vT + 4 * (jj & 1)
        fs(4 + jj)
        if jj + 2 < 8: mq += num(jj + 2)
        nxt = factor(jj + 1) if jj + 1 < 8 else []
        O = P + 2 * ((7 * jj) // 2); dst = [64 + i if odd and i < 2 else O + i for i in range(8)]
        body = [f'v_mul_f32 v{n+r}, v{n+r}, v{D}' for r in range(16)]
        body += [f'v_cvt_pk_bf16_f32 v{dst[i]}, v{n+2*i}, v{n+2*i+1}' for i in range(8)]
        if odd: body += [f'v_cndmask_b32_e64 v{O+i}, v{O+i}, v{64+i}, s[{sHiM}:{sHiM+1}]' for i in range(2)]
        for k, s in enumerate(body):
            if k in (0, 3, 11, 18):
                if mq and (k < 11 or jj + 2 < 8): e.I(mq.pop(0))
                if pend: pend.pop(0)()
            e.I(s)
            if nxt and k >= 14:
                s2 = nxt.pop(0)
                if s2: e.I(s2)
        assert not nxt and not pend
        def o_store(m):
            e.I(f's_mov_b32 s{sSo}, {(m // 7) * 73728 + (m % 7) * 2048}')
            st.pub(e, f'buffer_store_dwordx4 {vr(P+4*m)}, v{vHst}, {srd(sWS)}, s{sSo} offen {cfg.st_flag}', 'O')
        done = ((7 * jj) // 2 + 3 + odd) // 2
        pend = [lambda m=m: o_store(m) for m in range(state.get('m', 0), done)]; state['m'] = done
    for f in pend: f()
    assert not mq
    stamp(e, cfg, 7)
    st.try_signal(e, 'O', 15, force=True)
    stamp(e, cfg, 8)
    stamp_out(e, cfg)

def gen_all(cfg, code_bytes):
    Stag.uid = 0; OOL.clear(); WG[0] = cfg.sigwg
    assert FR_OFF % 512 == 0
    e = Em()
    if cfg.stamps:
        e.I('v_mov_b32 v35, 0'); stamp(e, cfg, 0)
        if cfg.rt: e.many('s_memtime s[100:101]\ns_waitcnt lgkmcnt(0)\nv_writelane_b32 v35, s100, 14')
    entry(e, cfg, code_bytes)
    e3 = e.fork()
    role_t2(e, cfg)
    e3.label('L_t3')
    role_t3(e3, cfg)
    e3.label('L_end')
    e3.I('s_endpgm')
    log(f'nops T2 {e.nops} T3 {e3.nops}')
    return e.text() + e3.text() + ''.join(OOL)

KD = '''.amdhsa_kernel {k}
  .amdhsa_next_free_vgpr 512
  .amdhsa_next_free_sgpr 102
  .amdhsa_accum_offset 256
  .amdhsa_group_segment_fixed_size 0
  .amdhsa_kernarg_size 88
  .amdhsa_user_sgpr_count 2
  .amdhsa_user_sgpr_kernarg_segment_ptr 1
  .amdhsa_system_sgpr_workgroup_id_x 1
  .amdhsa_float_denorm_mode_32 3
.end_amdhsa_kernel
'''
def build(cfg):
    k = NAME + '_kernel'
    body = gen_all(cfg, f'L_code_end-{k}-64')
    if cfg.skip:
        L = body.split('\n')
        if 'm' in cfg.skip: L = [l for l in L if not l.startswith((' v_mfma', ' ds_'))]
        if 'v' in cfg.skip: L = [l for l in L if not (l.startswith(' buffer_') and 'v35' not in l)]
        if 'p' in cfg.skip: L = [l for l in L if not l.startswith(' s_cbranch_scc0 L_spin')]
        if 's' in cfg.skip: L = [l for l in L if not (l.startswith((' buffer_store', ' buffer_atomic')) and 'v35' not in l)]
        if 'x' in cfg.skip or 'y' in cfg.skip:
            out = []; pend = None; cnt = 0; n = 0; par = {}; fresh = set(); t3 = False
            for l in L:
                if l.startswith('L_t3'): t3 = True
                m = re.match(r' v_mfma_f32_32x32x16_bf16 v\[(\d+):\d+\], (\S+), (\S+), (\S+)$', l)
                if pend and (m or cnt >= 2 or l.startswith((' s_barrier', 'L_', ' s_cbranch', ' s_waitcnt vm'))): out.append(pend); pend = None
                if m and not t3: n += 1
                if m and not t3 and (n <= 280 or 'y' in cfg.skip):
                    a = int(m.group(1))
                    if m.group(4) == '0': fresh |= {a, a + 8}
                    par[a] = par.get(a, 0) ^ 8; b = a + par[a]
                    z = b in fresh; fresh.discard(b)
                    f = lambda r: f' v_mfma_f32_16x16x32_bf16 v[{r}:{r+3}], {m.group(2)}, {m.group(3)}, ' + ('0' if z else f'v[{r}:{r+3}]')
                    out.append(f(b)); pend = f(b + 4); cnt = 0
                else:
                    out.append(l); cnt += 2 if l.startswith(' ds_read') else 1
            L = out
        body = '\n'.join(L)
    o = f'; {NAME}: generated by gen/gen5.py\n'
    o += f'; @launch grid=(256,1,1) block=(256,1,1) lds={LDS_BYTES}\n'
    o += '.amdgcn_target "amdgcn-amd-amdhsa--gfx950"\n.text\n'
    o += f'.globl {k}\n.p2align 8\n.type {k},@function\n{k}:\n{body}L_code_end:\n s_endpgm\n'
    o += '.section .rodata,"a"\n.p2align 6\n' + KD.format(k=k)
    return o

if __name__ == '__main__':
    cfg = Cfg(); out = None
    for a in sys.argv[1:]:
        if '=' in a:
            k, v = a.split('=', 1); cur = getattr(cfg, k)
            setattr(cfg, k, (v == '1') if isinstance(cur, bool) else type(cur)(v))
        else: out = a
    open(out or f'cdna_kernels/{NAME}.s', 'w').write(build(cfg))
```
